```python
import torch

def _softmax(x, axis=-1):
    return torch.softmax(x, dim=axis)

def _gelu(x):
    return torch.nn.functional.gelu(x, approximate='tanh')

def _silu(x):
    return torch.nn.functional.silu(x)

def _sigmoid(x):
    return torch.sigmoid(x)

def _layernorm(x, axis=-1, eps=1e-05):
    m = x.mean(dim=axis, keepdim=True)
    v = x.var(dim=axis, keepdim=True, unbiased=False)
    return (x - m) / torch.sqrt(v + eps)

def _scatter_add(tgt, idx, src, axis=0):
    return tgt.clone().index_add_(axis, idx, src)

def _segment_sum(src, seg, n):
    out = torch.zeros((n,) + src.shape[1:], dtype=src.dtype)
    return out.index_add_(0, seg, src)

def _pad(x, pw):
    flat = tuple((v for pair in reversed(pw) for v in pair))
    return torch.nn.functional.pad(x, flat)
kernel_name = 'standalone__conformer_conv_module__speech'

def setup_inputs():

    _w = lambda a: (lambda t: t.to(torch.bfloat16) if t.is_floating_point() else t)(torch.as_tensor(a))
    B, T, D, K = (2, 16000, 256, 3)
    return {'x': _w((lambda *s: torch.randn(*s, dtype=torch.bfloat16) * 0.2)(B, T, D)), 'w_pw1': _w((lambda *s: torch.randn(*s, dtype=torch.bfloat16) * 0.2)(D, 2 * D)), 'dw': _w((lambda *s: torch.randn(*s, dtype=torch.bfloat16) * 0.2)(K, D)), 'w_pw2': _w((lambda *s: torch.randn(*s, dtype=torch.bfloat16) * 0.05)(D, D))}

def reference(x, w_pw1, dw, w_pw2):
    B, T, D = x.shape
    K = dw.shape[0]
    h = x @ w_pw1
    a, b = (h[..., :D].clone(), h[..., D:].clone())
    h = a * _sigmoid(b)
    pad = K // 2
    hp = _pad(h, ((0, 0), (pad, pad), (0, 0)))
    out = torch.zeros_like(h)
    for i in range(K):
        out = out + hp[:, i:i + T, :] * dw[i][None, None, :]
    return _silu(out) @ w_pw2
```

```python
import sys, argparse

NAME = "standalone__conformer_conv_module__speech"
LOG2E_NEG = 0xbfb8aa3b

X_BASE, S_BASE, RA_BASE, RB_BASE = 0, 32768, 65536, 98304
O_BASE = RB_BASE

XRE, XRO, SWR, XDMA, C0, C1, DWP, DWC, DWN = 0, 1, 2, 3, 4, 5, 6, 7, 8
W1DMA, W1TR, W2DMA, W2TR, PK0, PK1, TMP = 9, 10, 11, 12, 13, 14, 15
ORD, GST, OWR, SRD_ = PK0, W1DMA, PK1, W1TR
F = [16, 20, 24, 28]
P, Q = 32, 48
W2, W1A, W1B = 64, 128, 192

SX, SW1, SW2, SO, SD = 8, 12, 16, 20, 24
sW, sWQ, sROT1, sROT2, sXH0, sXH1, sXM0, sRING, sRING2, sT0, sT1, sC, sXST = range(28, 41)
sM0A, sM0B = 42, 44
sTS = 48


class Stream:
    def __init__(self, opt):
        self.L = []
        self.vm = []
        self.lg = []
        self.opt = opt
        self.nts = 0

    def e(self, s):
        self.L.append(s)

    def vmop(self, s, tag):
        self.L.append(s); self.vm.append(tag)

    def lgop(self, s, tag):
        self.L.append(s); self.lg.append(tag)

    def _cnt(self, q, tag):
        idx = [i for i, t in enumerate(q) if t == tag]
        if not idx:
            return None
        n = len(q) - 1 - idx[-1]
        del q[:idx[-1] + 1]
        return n

    def wait(self, vm=None, lg=None):
        parts = []
        if vm is not None:
            n = self._cnt(self.vm, vm)
            if n is not None:
                assert n <= 63
                parts.append(f"vmcnt({n})")
        if lg is not None:
            n = self._cnt(self.lg, lg)
            if n is not None:
                parts.append(f"lgkmcnt({min(n, 15)})")
        if parts:
            self.e("s_waitcnt " + " ".join(parts))

    def ts(self):
        if self.opt.ts:
            self.e(f"s_memtime s[{sTS + 2 * self.nts}:{sTS + 2 * self.nts + 1}]")
            self.nts += 1

    def barrier(self):
        self.e("s_barrier")


def vr(a, n):
    return f"v[{a}:{a + n - 1}]"


def mfma(d, a, b, first):
    c = "0" if first else vr(d, 16)
    return f"v_mfma_f32_32x32x16_bf16 {vr(d, 16)}, {vr(a, 4)}, {vr(b, 4)}, {c}"


def x_dma(s, m):
    nt = "nt " if s.opt.xnt else ""
    if m > 0:
        s.e(f"v_add_u32 v{XDMA}, s{sXST}, v{XDMA}")
    for half in range(2):
        s.e(f"s_add_u32 m0, s{sXM0}, {X_BASE + (m & 1) * 16384 + half * 1024}")
        s.e("s_nop 0")
        s.vmop(f"buffer_load_dwordx4 v{XDMA}, s[{SX}:{SX+3}], s{sXH0 + half} offen {nt}lds", f"x{m}")


def w1_dma(s, ks):
    slot = (ks & 7) * 2
    s.e(f"s_add_u32 m0, s{sRING}, {slot * 1024}")
    s.e(f"s_xor_b32 s{sT0}, s{sROT1}, {ks * 16384}")
    s.vmop(f"buffer_load_dwordx4 v{W1DMA}, s[{SW1}:{SW1+3}], s{sT0} offen lds", f"w1a{ks}")
    s.e(f"s_add_u32 m0, s{sRING}, {slot * 1024 + 512}")
    s.e("s_nop 0")
    s.vmop(f"buffer_load_dwordx4 v{W1DMA}, s[{SW1}:{SW1+3}], s{sT0} offen offset:512 lds", f"w1b{ks}")


def w1_tr(s, ks):
    slot = (ks & 7) * 2
    for part, base in ((0, W1A), (1, W1B)):
        for rd in range(2):
            s.lgop(f"ds_read_b64_tr_b16 {vr(base + 4 * ks + 2 * rd, 2)}, v{W1TR} offset:{(slot + part) * 1024 + rd * 256}", f"w1r{ks}")


def w2_dma(s, ks, nslots):
    s.e(f"s_add_u32 m0, s{sRING2}, {(ks % nslots) * 1024}")
    s.e(f"s_xor_b32 s{sT0}, s{sROT2}, {ks * 8192}")
    s.vmop(f"buffer_load_dwordx4 v{W2DMA}, s[{SW2}:{SW2+3}], s{sT0} offen lds", f"w2{ks}")


def w2_tr(s, ks, nslots):
    for rd in range(2):
        s.lgop(f"ds_read_b64_tr_b16 {vr(W2 + 4 * ks + 2 * rd, 2)}, v{W2TR} offset:{(ks % nslots) * 1024 + rd * 512}", f"w2r{ks}")


def x_read(s, m, ks, f):
    a = XRO if ks & 1 else XRE
    s.lgop(f"ds_read_b128 {vr(f, 4)}, v{a} offset:{X_BASE + (m & 1) * 16384 + (ks >> 1) * 256}", f"xr{m}_{ks}")


def s_read(s, m, ks, f):
    for rd in range(2):
        s.lgop(f"ds_read_b64_tr_b16 {vr(f + 2 * rd, 2)}, v{SRD_} offset:{S_BASE + (m & 1) * 16384 + ks * 1024 + rd * 512}", f"sr{m}_{ks}")


def unpack_addrs(s):
    s.e(f"v_lshrrev_b32 v{GST}, 16, v{PK0}")
    s.e(f"v_lshrrev_b32 v{SRD_}, 16, v{PK1}")
    s.e(f"v_and_b32 v{ORD}, 0xffff, v{PK0}")
    s.e(f"v_and_b32 v{OWR}, 0xffff, v{PK1}")
    s.e(f"v_add_u32 v{ORD}, {O_BASE}, v{ORD}")
    s.e(f"v_add_u32 v{OWR}, {O_BASE}, v{OWR}")


def g1_first(s, grp):
    def fetch(ks):
        s.wait(vm=f"w1b{ks}")
        w1_tr(s, ks)
        x_read(s, 0, ks, F[ks % 4])
    fetch(0)
    fetch(1)
    for ks in range(16):
        s.wait(lg=f"xr0_{ks}")
        s.e(mfma(Q, F[ks % 4], W1B + 4 * ks, ks == 0))
        if ks < 8:
            w1_dma(s, ks + 8)
        elif grp == 1:
            w2_dma(s, 2 * (ks - 8), 16)
            w2_dma(s, 2 * (ks - 8) + 1, 16)
        if grp == 0 and ks == 7:
            s.barrier()
        s.e(mfma(P, F[ks % 4], W1A + 4 * ks, ks == 0))
        if ks + 2 < 16:
            fetch(ks + 2)


def merge(s, main, extra, start=0, step=1):
    k = 0
    for i, f in enumerate(main):
        f()
        while k < len(extra) and i >= start + k * step:
            extra[k](); k += 1
    while k < len(extra):
        extra[k](); k += 1


def act_ops(s, m):
    a = lambda v: (C0 if v == 14 else C1 if v == 15 else P + v)
    hsrc = lambda v: (C0 if v == -2 else C1 if v == -1 else a(v))
    tmp = lambda v: (TMP if v == 0 else C0 if v == 1 else P + v - 2)
    st = {}
    for v in range(16):
        b = Q + v
        st[('g', v)] = [
            f"v_mul_f32 v{b}, s{sC}, v{b}",
            f"v_exp_f32 v{b}, v{b}",
            f"v_add_f32 v{b}, 1.0, v{b}",
            f"v_rcp_f32 v{b}, v{b}",
            f"v_mul_f32 v{a(v)}, v{P + v}, v{b}",
        ]
        t = tmp(v)
        st[('c', v)] = [
            f"v_mul_f32 v{b}, v{DWP}, v{hsrc(v - 2)}",
            f"v_fmac_f32 v{b}, v{DWC}, v{hsrc(v - 1)}",
            f"v_fmac_f32 v{b}, v{DWN}, v{hsrc(v)}",
            f"v_exp_f32 v{t}, v{b}",
            f"v_fma_f32 v{t}, v{t}, s{sC}, s{sC}",
            f"v_rcp_f32 v{t}, v{t}",
            f"v_mul_f32 v{b}, v{b}, v{t}",
        ]
    seq = []
    def zip2(x, y):
        for i in range(max(len(x), len(y))):
            if i < len(x): seq.append(x[i])
            if i < len(y): seq.append(y[i])
    zip2(st[('g', 0)], st[('g', 1)])
    if m == 0:
        seq.append(f"v_mov_b32 v{C0}, v{P}")
        seq.append(f"v_mov_b32 v{C1}, v{P}")
    for p in range(8):
        if p < 7:
            zip2(st[('g', 2 * p + 2)], st[('g', 2 * p + 3)])
        if m == 0 and p == 0:
            seq.append(f"v_permlane32_swap_b32 v{C0}, v{C1}")
            seq.append(f"v_cndmask_b32 v{C1}, v{C1}, v{C0}, vcc")
        zip2(st[('c', 2 * p)], st[('c', 2 * p + 1)])
        if p >= 1:
            seq.append(f"v_cvt_pk_bf16_f32 v{Q + p - 1}, v{Q + 2 * p - 2}, v{Q + 2 * p - 1}")
    seq.append(f"v_xor_b32 v{TMP}, 16, v{SWR}")
    seq.append(f"v_cvt_pk_bf16_f32 v{Q + 7}, v{Q + 14}, v{Q + 15}")
    ops = [(lambda t=t: s.e(t)) for t in seq]
    off = S_BASE + (m & 1) * 16384
    ops.append(lambda: s.lgop(f"ds_write_b128 v{SWR}, {vr(Q, 4)} offset:{off}", f"sw{m}"))
    ops.append(lambda: s.lgop(f"ds_write_b128 v{TMP}, {vr(Q + 4, 4)} offset:{off}", f"sw{m}"))
    return ops


def o_read(s, m):
    for i in range(2):
        s.lgop(f"ds_read_b128 {vr(F[i], 4)}, v{ORD} offset:{(m & 1) * 16384 + i * 4096}", f"or{m}_{i}")


def o_store(s, m):
    nt = " nt" if s.opt.ont else ""
    for i in range(2):
        so = (48 - 16 * m) * 512 if i == 0 else (62 + 16 * m) * 512
        s.e(f"s_mov_b32 s{sT1}, {so}")
        s.wait(lg=f"or{m}_{i}")
        if m == 0:
            r = sM0A if i == 0 else sM0B
            s.e(f"s_mov_b64 exec, s[{r}:{r+1}]")
        s.vmop(f"buffer_store_dwordx4 {vr(F[i], 4)}, v{GST}, s[{SO}:{SO+3}], s{sT1} offen{nt}", f"st{m}")
    if m == 0:
        s.e("s_mov_b64 exec, -1")


def o_write(s, m):
    for i in range(8):
        s.e(f"v_cvt_pk_bf16_f32 v{P + i}, v{P + 2 * i}, v{P + 2 * i + 1}")
    s.e(f"v_xor_b32 v{TMP}, 16, v{OWR}")
    off = (m & 1) * 16384
    s.lgop(f"ds_write_b128 v{OWR}, {vr(P, 4)} offset:{off}", f"ow{m}")
    s.lgop(f"ds_write_b128 v{TMP}, {vr(P + 4, 4)} offset:{off}", f"ow{m}")


def prefetch(s, m2, m1):
    for i in range(4):
        if m2 is not None:
            s_read(s, m2, i, F[i])
        else:
            x_read(s, m1, i, F[i])


def mfma_phase(s, m2, m1, pre_bar, post_bar, extra=None):
    extra = dict(extra or {})
    n = 0
    def tick():
        nonlocal n
        n += 1
        if n == 4:
            if pre_bar: pre_bar()
            s.barrier()
            s.ts()
            if post_bar: post_bar()
        if n in extra:
            extra.pop(n)()
    s.e("s_setprio 2")
    if m2 is not None:
        for ks in range(16):
            s.wait(lg=f"sr{m2}_{ks}")
            s.e(mfma(P, W2 + 4 * ks, F[ks % 4], ks == 0))
            if ks + 4 < 16:
                s_read(s, m2, ks + 4, F[ks % 4])
            elif m1 is not None:
                x_read(s, m1, ks - 12, F[ks % 4])
            tick()
        if m1 is not None:
            for ks in range(4):
                s.wait(lg=f"xr{m1}_{ks}")
                s.e(mfma(Q, F[ks], W1B + 4 * ks, ks == 0))
                if ks == 2:
                    s.e("s_nop 7")
                    o_write(s, m2)
                tick()
            for ks in range(4):
                s.e(mfma(P, F[ks], W1A + 4 * ks, ks == 0))
                x_read(s, m1, ks + 4, F[ks])
                tick()
        else:
            s.e("s_nop 11")
            o_write(s, m2)
    k0 = 4 if m2 is not None else 0
    if m1 is not None:
        for ks in range(k0, 16):
            s.wait(lg=f"xr{m1}_{ks}")
            s.e(mfma(Q, F[ks % 4], W1B + 4 * ks, ks == 0))
            tick()
            s.e(mfma(P, F[ks % 4], W1A + 4 * ks, ks == 0))
            if ks + 4 < 16:
                x_read(s, m1, ks + 4, F[ks % 4])
            tick()
    assert not extra
    s.e("s_setprio 0")


def valu_phase(s, m, pre_bar, post_bar, extra=(), estart=40, estep=6, nxt=None, head_nop=True):
    if head_nop:
        s.e("s_nop 10")
    ops = act_ops(s, m)
    nb = s.opt.vbar
    for f in ops[:nb]:
        f()
    if pre_bar: pre_bar()
    s.barrier()
    s.ts()
    if post_bar: post_bar()
    body, tail = ops[nb:-s.opt.vtail], ops[-s.opt.vtail:]
    merge(s, body, list(extra), estart, estep)
    if nxt is not None:
        prefetch(s, *nxt)
    for f in tail:
        f()


def finish(s, grp):
    if s.opt.ts:
        s.e("s_waitcnt vmcnt(0)")
        s.ts()
        s.e("s_memrealtime s[94:95]")
        s.e("s_load_dwordx2 s[96:97], s[0:1], 48")
        s.e("s_waitcnt lgkmcnt(0)")
        s.e("s_mov_b32 s98, 0x100000\ns_mov_b32 s99, 0x20000")
        s.e(f"s_lshl_b32 s3, s2, 3\ns_add_u32 s3, s3, s{sW}\ns_lshl_b32 s3, s3, 7\nv_mov_b32 v1, s3")
        s.e("v_mov_b32 v3, s92\nbuffer_store_dword v3, v1, s[96:99], 0 offen")
        s.e("v_mov_b32 v3, s94\nbuffer_store_dword v3, v1, s[96:99], 0 offen offset:4")
        for m in range(s.nts):
            s.e(f"s_sub_u32 s4, s{sTS + 2 * m}, s90\nv_mov_b32 v3, s4\nbuffer_store_dword v3, v1, s[96:99], 0 offen offset:{8 + 4 * m}")
    s.e("s_endpgm")


def dw_fix(s):
    s.wait(vm="dw")
    for r in (DWP, DWC, DWN):
        s.e(f"v_lshlrev_b32 v{r}, 16, v{r}")
    for r in (DWP, DWC, DWN):
        s.e(f"v_mul_f32 v{r}, s{sC}, v{r}")


def stream_a(s):
    for ks in range(8):
        w1_dma(s, ks)
    addr_setup(s)
    s.wait(vm="x0")
    s.barrier()
    s.ts()
    dw_fix(s)
    s.e("s_setprio 2")
    g1_first(s, 0)
    s.e("s_setprio 0")
    unpack_addrs(s)
    s.e("s_nop 4")
    def pre1(): s.wait(vm="x1")
    valu_phase(s, 0, pre1, None, extra=[(lambda k=k: w2_dma(s, k, 8)) for k in range(8)],
               estart=110, estep=6, nxt=(None, 1), head_nop=False)
    ex = {}
    def rd(k):
        s.wait(vm=f"w2{k}"); w2_tr(s, k, 8)
    def rf(k):
        s.wait(lg=f"w2r{k}"); w2_dma(s, k + 8, 8)
    for k in range(8):
        ex[12 + 2 * k] = (lambda k=k: rd(k))
        ex[17 + 2 * k] = (lambda k=k: rf(k))
    mfma_phase(s, None, 1, lambda: s.wait(lg="sw0"), lambda: x_dma(s, 2), ex)
    valu_phase(s, 1, lambda: None, None, extra=[(lambda k=k: rd(k)) for k in range(8, 16)],
               estart=60, estep=10, nxt=(0, None))
    def pre4(): s.wait(vm="x2", lg="sw1")
    mfma_phase(s, 0, 2, pre4, lambda: x_dma(s, 3))
    valu_phase(s, 2, lambda: s.wait(lg="ow0"), lambda: o_read(s, 0), extra=[lambda: o_store(s, 0)], estart=20, nxt=(1, None))
    def pre6(): s.wait(vm="x3", lg="sw2")
    mfma_phase(s, 1, 3, pre6, None)
    valu_phase(s, 3, lambda: s.wait(lg="ow1"), lambda: o_read(s, 1), extra=[lambda: o_store(s, 1)], estart=20, nxt=(2, None))
    mfma_phase(s, 2, None, lambda: s.wait(lg="sw3"), None)
    prefetch(s, 3, None)
    O2 = W1A
    def post9():
        for i in range(2):
            s.lgop(f"ds_read_b128 {vr(O2 + 4 * i, 4)}, v{ORD} offset:{i * 4096}", f"or2_{i}")
    def st9():
        nt = " nt" if s.opt.ont else ""
        for i in range(2):
            so = (48 - 32) * 512 if i == 0 else (62 + 32) * 512
            s.e(f"s_mov_b32 s{sT1}, {so}")
            s.wait(lg=f"or2_{i}")
            s.vmop(f"buffer_store_dwordx4 {vr(O2 + 4 * i, 4)}, v{GST}, s[{SO}:{SO+3}], s{sT1} offen{nt}", "st2")
    mfma_phase(s, 3, None, lambda: s.wait(lg="ow2"), post9, {9: st9})
    s.wait(lg="ow3")
    s.barrier()
    s.ts()
    o_read(s, 3)
    o_store(s, 3)
    finish(s, 0)


def stream_b(s):
    addr_setup(s)
    s.wait(vm="x0")
    s.barrier()
    s.ts()
    dw_fix(s)
    s.barrier()
    for ks in range(8):
        w1_dma(s, ks)
    s.wait(vm="x1")
    s.barrier()
    s.ts()
    s.e("s_setprio 2")
    g1_first(s, 1)
    s.e("s_setprio 0")
    unpack_addrs(s)
    s.e("s_nop 4")
    def rd(k):
        s.wait(vm=f"w2{k}"); w2_tr(s, k, 16)
    valu_phase(s, 0, None, lambda: x_dma(s, 2), extra=[(lambda k=k: rd(k)) for k in range(16)],
               estart=30, estep=8, nxt=(0, None), head_nop=False)
    mfma_phase(s, 0, 1, lambda: s.wait(lg="sw0"), None)
    def pre4(): s.wait(vm="x2", lg="ow0")
    def post4(): x_dma(s, 3); o_read(s, 0)
    valu_phase(s, 1, pre4, post4, extra=[lambda: o_store(s, 0)], estart=20, nxt=(1, None))
    mfma_phase(s, 1, 2, lambda: s.wait(lg="sw1"), None)
    def pre6(): s.wait(vm="x3", lg="ow1")
    valu_phase(s, 2, pre6, lambda: o_read(s, 1), extra=[lambda: o_store(s, 1)], estart=20, nxt=(2, None))
    mfma_phase(s, 2, 3, lambda: s.wait(lg="sw2"), None)
    valu_phase(s, 3, lambda: s.wait(lg="ow2"), lambda: o_read(s, 2), extra=[lambda: o_store(s, 2)], estart=20, nxt=(3, None))
    mfma_phase(s, 3, None, lambda: s.wait(lg="sw3"), None)
    s.wait(lg="ow3")
    s.barrier()
    s.ts()
    o_read(s, 3)
    o_store(s, 3)
    finish(s, 1)


def prologue(s):
    e = s.e
    o = s.opt
    e("s_cmp_ge_u32 s2, 256")
    e("s_cbranch_scc1 L_done")
    if o.ts:
        e("s_memrealtime s[92:93]")
        e("s_memtime s[90:91]")
    e("s_load_dwordx4 s[4:7], s[0:1], 0")
    e(f"s_load_dwordx2 s[{SD}:{SD+1}], s[0:1], 16")
    e(f"s_load_dwordx2 s[{SW2}:{SW2+1}], s[0:1], 24")
    e(f"s_load_dwordx2 s[{SO}:{SO+1}], s[0:1], 32")
    T = list(range(16, 32))
    L_, J, HH = T[0], T[1], T[2]
    e(f"v_readfirstlane_b32 s{sW}, v0")
    e(f"v_and_b32 v{L_}, 63, v0")
    e(f"v_and_b32 v{J}, 31, v0")
    e(f"v_bfe_u32 v{HH}, v0, 5, 1")
    e(f"s_lshr_b32 s{sW}, s{sW}, 6")
    e(f"s_and_b32 s{sWQ}, s{sW}, 3")
    e(f"s_mov_b32 s{sC}, 0x{LOG2E_NEG:x}")
    e(f"s_lshr_b32 s3, s2, 3")
    e(f"s_and_b32 s3, s3, {7 if o.rot else 0}")
    e(f"s_lshl_b32 s{sROT1}, s3, 15")
    e(f"s_lshl_b32 s{sROT2}, s3, 13")
    e(f"s_and_b32 s{sXH0}, s3, 4")
    e(f"s_lshl_b32 s{sXH0}, s{sXH0}, 6")
    e(f"s_xor_b32 s{sXH1}, s{sXH0}, 256")
    e(f"s_lshl_b32 s{sXM0}, s{sW}, 11")
    a, b, c = T[3], T[4], T[5]
    e(f"v_and_b32 v{a}, 3, v{L_}")
    e(f"v_lshrrev_b32 v{b}, 2, v{L_}")
    e(f"v_lshlrev_b32 v{W2DMA}, 4, v{a}")
    e(f"v_xor_b32 v{a}, s{sWQ}, v{a}")
    e(f"v_lshl_add_u32 v{W1DMA}, v{b}, 10, v{W2DMA}")
    e(f"v_lshl_add_u32 v{W2DMA}, v{b}, 9, v{W2DMA}")
    e(f"v_lshrrev_b32 v{c}, 4, v{L_}")
    e(f"s_and_b32 s{sT0}, s3, 3")
    e(f"v_xor_b32 v{c}, s{sT0}, v{c}")
    e(f"v_lshlrev_b32 v{a}, 4, v{a}")
    e(f"v_lshl_add_u32 v{a}, v{c}, 6, v{a}")
    e(f"v_and_b32 v{b}, 3, v{b}")
    e(f"s_and_b32 s{sT0}, s2, 127")
    e(f"s_mul_i32 s{sT0}, s{sT0}, 125")
    e(f"s_lshr_b32 s{sT1}, s{sW}, 1")
    e(f"s_lshl_b32 s{sT1}, s{sT1}, 2")
    e(f"s_add_u32 s41, s{sT1}, 63")
    e(f"s_sub_u32 s{sT1}, 62, s{sT1}")
    e(f"s_bitcmp1_b32 s{sW}, 0")
    e(f"s_cselect_b32 s{sT1}, s41, s{sT1}")
    e(f"s_cselect_b32 s41, 1, -1")
    e(f"s_lshl_b32 s{sXST}, s41, 13")
    e(f"s_lshl_b32 s41, s41, 9")
    e(f"s_add_u32 s{sT1}, s{sT1}, s{sT0}")
    e(f"s_lshl_b32 s{sT1}, s{sT1}, 9")
    e(f"v_mul_i32_i24 v{b}, s41, v{b}")
    e(f"v_add3_u32 v{XDMA}, v{a}, v{b}, s{sT1}")
    e(f"s_lshl_b32 s41, s{sW}, 6")
    e(f"v_lshl_add_u32 v{a}, v{J}, 1, s41")
    e(f"v_lshl_add_u32 v{b}, v{HH}, 10, v{a}")
    e(f"v_xor_b32 v{c}, 1024, v{b}")
    e(f"s_lshr_b32 s{sT1}, s2, 7")
    e(f"s_mul_i32 s{sT1}, s{sT1}, 8192000")
    e("s_waitcnt lgkmcnt(0)")
    e(f"s_add_u32 s{SX}, s4, s{sT1}")
    e(f"s_addc_u32 s{SX+1}, s5, 0")
    e(f"s_mov_b32 s{SX+2}, 8192000")
    e(f"s_mov_b32 s{SX+3}, 0x20000")
    x_dma(s, 0)
    e(f"s_add_u32 s{SW1}, s6, s41")
    e(f"s_addc_u32 s{SW1+1}, s7, 0")
    e(f"s_sub_u32 s{SW1+2}, 262144, s41")
    e(f"s_mov_b32 s{SW1+3}, 0x20000")
    e(f"s_mov_b32 s{SD+2}, 1536")
    e(f"s_mov_b32 s{SD+3}, 0x20000")
    s.vmop(f"buffer_load_ushort v{DWC}, v{a}, s[{SD}:{SD+3}], 0 offen offset:512", "dw")
    s.vmop(f"buffer_load_ushort v{DWN}, v{b}, s[{SD}:{SD+3}], 0 offen", "dw")
    s.vmop(f"buffer_load_ushort v{DWP}, v{c}, s[{SD}:{SD+3}], 0 offen", "dw")
    x_dma(s, 1)
    e(f"s_add_u32 s{SW2}, s{SW2}, s41")
    e(f"s_addc_u32 s{SW2+1}, s{SW2+1}, 0")
    e(f"s_sub_u32 s{SW2+2}, 131072, s41")
    e(f"s_mov_b32 s{SW2+3}, 0x20000")
    e(f"s_mul_i32 s{sT1}, s2, 64000")
    e(f"s_add_u32 s{SO}, s{SO}, s{sT1}")
    e(f"s_addc_u32 s{SO+1}, s{SO+1}, 0")
    e(f"s_mov_b32 s{SO+2}, 64000")
    e(f"s_mov_b32 s{SO+3}, 0x20000")
    e(f"s_lshl_b32 s{sRING}, s{sW}, 14")
    e(f"s_add_u32 s{sRING}, s{sRING}, {S_BASE}")
    e(f"s_lshl_b32 s{sT0}, s{sWQ}, 13")
    e(f"s_add_u32 s{sT0}, s{sT0}, {RA_BASE}")
    e(f"s_cmp_ge_u32 s{sW}, 4")
    e(f"s_cselect_b32 s{sRING2}, s{sRING}, s{sT0}")


def addr_setup(s):
    e = s.e
    T = list(range(16, 32))
    L_, J, HH = T[0], T[1], T[2]
    a, b, c, G, R, CC = T[3], T[4], T[5], T[6], T[7], T[8]
    d = T[9]
    e(f"v_bfe_u32 v{G}, v{L_}, 4, 1")
    e(f"v_bfe_u32 v{R}, v{L_}, 2, 2")
    e(f"v_and_b32 v{CC}, 3, v{L_}")
    e(f"v_lshrrev_b32 v{a}, 2, v{J}")
    e(f"v_xor_b32 v{b}, v{HH}, v{R}")
    e(f"v_lshlrev_b32 v{b}, 4, v{b}")
    e(f"v_lshl_add_u32 v{b}, v{CC}, 6, v{b}")
    e(f"v_lshl_add_u32 v{XRE}, v{a}, 11, v{b}")
    e(f"v_xor_b32 v{XRO}, 32, v{XRE}")
    e(f"v_lshl_add_u32 v{a}, v{HH}, 3, v{R}")
    e(f"v_lshlrev_b32 v{a}, 6, v{a}")
    e(f"v_lshl_add_u32 v{a}, v{G}, 5, v{a}")
    e(f"v_lshl_add_u32 v{a}, v{CC}, 3, v{a}")
    e(f"v_add_u32 v{W1TR}, s{sRING}, v{a}")
    e(f"v_lshl_add_u32 v{a}, v{HH}, 2, v{R}")
    e(f"v_lshlrev_b32 v{a}, 6, v{a}")
    e(f"v_lshrrev_b32 v{b}, 1, v{CC}")
    e(f"v_lshl_add_u32 v{b}, v{G}, 1, v{b}")
    e(f"v_and_b32 v{c}, 1, v{CC}")
    e(f"v_lshl_add_u32 v{d}, v{c}, 2, v{b}")
    e(f"v_lshl_add_u32 v{d}, v{d}, 3, v{a}")
    e(f"v_add_u32 v{W2TR}, s{sRING2}, v{d}")
    e(f"v_lshrrev_b32 v{d}, 1, v{R}")
    e(f"v_lshl_add_u32 v{d}, v{HH}, 1, v{d}")
    e(f"v_xor_b32 v{b}, v{b}, v{d}")
    e(f"v_lshl_add_u32 v{a}, v{b}, 4, v{a}")
    e(f"v_lshl_add_u32 v{a}, v{c}, 3, v{a}")
    e(f"v_lshlrev_b32 v{PK1}, 16, v{a}")
    e(f"s_lshl_b32 s{sT0}, s{sW}, 1")
    e(f"s_xor_b32 s{sT0}, s{sT0}, s3")
    e(f"v_xor_b32 v{a}, s{sT0}, v{G}")
    e(f"v_and_b32 v{b}, 15, v{J}")
    e(f"v_lshlrev_b32 v{d}, 6, v{b}")
    e(f"v_lshl_add_u32 v{a}, v{a}, 10, v{d}")
    e(f"v_bfe_u32 v{c}, v{J}, 1, 2")
    e(f"v_lshlrev_b32 v{d}, 1, v{HH}")
    e(f"v_xor_b32 v{c}, v{c}, v{d}")
    e(f"v_lshl_add_u32 v{SWR}, v{c}, 4, v{a}")
    e(f"v_sub_u32 v{a}, 1, v{G}")
    e(f"v_mul_u32_u24 v{a}, 15, v{a}")
    e(f"v_xor_b32 v{a}, v{a}, v{J}")
    e(f"s_lshl_b32 s{sT0}, s{sWQ}, 2")
    e(f"v_add_u32 v{d}, s{sT0}, v{d}")
    e(f"v_and_b32 v{c}, 7, v{a}")
    e(f"v_xor_b32 v{d}, v{d}, v{c}")
    e(f"v_lshlrev_b32 v{d}, 4, v{d}")
    e(f"v_lshl_add_u32 v{d}, v{a}, 8, v{d}")
    e(f"s_lshr_b32 s{sT1}, s{sW}, 2")
    e(f"s_lshl_b32 s41, s{sT1}, 13")
    e(f"v_add3_u32 v{PK1}, v{PK1}, v{d}, s41")
    e(f"v_lshrrev_b32 v{a}, 4, v{L_}")
    e(f"v_add_u32 v{a}, s{sT0}, v{a}")
    e(f"v_and_b32 v{c}, 7, v{a}")
    e(f"v_xor_b32 v{c}, v{c}, v{b}")
    e(f"v_lshlrev_b32 v{c}, 4, v{c}")
    e(f"v_lshl_add_u32 v{c}, v{a}, 8, v{c}")
    e(f"v_add_u32 v{c}, s41, v{c}")
    e(f"v_lshlrev_b32 v{b}, 4, v{b}")
    e(f"v_lshl_add_u32 v{b}, v{a}, 9, v{b}")
    e(f"s_lshl_b32 s41, s{sT1}, 8")
    e(f"v_add_u32 v{b}, s41, v{b}")
    e(f"v_lshl_add_u32 v{PK0}, v{b}, 16, v{c}")
    e(f"s_mov_b32 s{sM0A}, -1")
    e(f"s_cmp_eq_u32 s{sWQ}, 3")
    e(f"s_cselect_b32 s{sM0A+1}, 0xffff, -1")
    e(f"s_cmp_eq_u32 s{sWQ}, 0")
    e(f"s_cselect_b32 s{sM0B}, 0xffff0000, -1")
    e(f"s_mov_b32 s{sM0B+1}, -1")
    e("s_mov_b32 vcc_lo, 0")
    e("s_mov_b32 vcc_hi, -1")


def build(opt):
    pro = Stream(opt)
    prologue(pro)
    pro.e("s_cbranch_scc1 L_grp_b")
    sa = Stream(opt); sa.vm = list(pro.vm)
    sb = Stream(opt); sb.vm = list(pro.vm)
    stream_a(sa)
    stream_b(sb)
    ref = open(f"cdna_kernels/{NAME}.s.ref").read().split("\n")
    head = [l for l in ref if l.startswith(";") and "@launch" not in l]
    out = head + ["; @launch grid=(256,1,1) block=(512,1,1) lds=163840",
                  '.amdgcn_target "amdgcn-amd-amdhsa--gfx950"', ".text", f".globl {NAME}_kernel", ".p2align 8",
                  f".type {NAME}_kernel,@function", f"{NAME}_kernel:"]
    out += pro.L + sa.L + [".p2align 6", "L_grp_b:"] + sb.L + ["L_done:", "s_endpgm"]
    out += ['.section .rodata,"a"', ".p2align 6", f".amdhsa_kernel {NAME}_kernel",
            "  .amdhsa_next_free_vgpr 256", "  .amdhsa_next_free_sgpr 102", "  .amdhsa_accum_offset 256",
            "  .amdhsa_group_segment_fixed_size 0", "  .amdhsa_kernarg_size 56", "  .amdhsa_user_sgpr_count 2",
            "  .amdhsa_user_sgpr_kernarg_segment_ptr 1", "  .amdhsa_system_sgpr_workgroup_id_x 1",
            ".end_amdhsa_kernel", ""]
    return "\n".join(out)


if __name__ == "__main__":
    ap = argparse.ArgumentParser()
    ap.add_argument("-o", default=f"cdna_kernels/{NAME}.s")
    ap.add_argument("--ts", type=int, default=0)
    ap.add_argument("--xnt", type=int, default=1)
    ap.add_argument("--ont", type=int, default=0)
    ap.add_argument("--rot", type=int, default=1)
    ap.add_argument("--vbar", type=int, default=20)
    ap.add_argument("--vtail", type=int, default=16)
    opt = ap.parse_args()
    open(opt.o, "w").write(build(opt))
```

```python
import sys, argparse

NAME = "standalone__conformer_conv_module__speech"
LOG2E_NEG = 0xbfb8aa3b

X_BASE, S_BASE, RA_BASE, RB_BASE = 0, 32768, 65536, 98304
O_BASE = RB_BASE

XRE, XRO, SWR, XDMA, C0, C1, DWP, DWC, DWN = 0, 1, 2, 3, 4, 5, 6, 7, 8
W1DMA, W1TR, W2DMA, W2TR, PK0, PK1, TMP = 9, 10, 11, 12, 13, 14, 15
ORD, GST, OWR, SRD_ = PK0, W1DMA, PK1, W1TR
F = [16, 20, 24, 28]
P, Q = 32, 48
W2, W1A, W1B = 64, 128, 192

SX, SW1, SW2, SO, SD = 8, 12, 16, 20, 24
sW, sWQ, sROT1, sROT2, sXH0, sXH1, sXM0, sRING, sRING2, sT0, sT1, sC, sXST = range(28, 41)
sM0A, sM0B = 42, 44
sTS = 48


class Stream:
    def __init__(self, opt):
        self.L = []
        self.vm = []
        self.lg = []
        self.opt = opt
        self.nts = 0

    def e(self, s):
        self.L.append(s)

    def vmop(self, s, tag):
        self.L.append(s); self.vm.append(tag)

    def lgop(self, s, tag):
        self.L.append(s); self.lg.append(tag)

    def _cnt(self, q, tag):
        idx = [i for i, t in enumerate(q) if t == tag]
        if not idx:
            return None
        n = len(q) - 1 - idx[-1]
        del q[:idx[-1] + 1]
        return n

    def wait(self, vm=None, lg=None):
        parts = []
        if vm is not None:
            n = self._cnt(self.vm, vm)
            if n is not None:
                assert n <= 63
                parts.append(f"vmcnt({n})")
        if lg is not None:
            n = self._cnt(self.lg, lg)
            if n is not None:
                parts.append(f"lgkmcnt({min(n, 15)})")
        if parts:
            self.e("s_waitcnt " + " ".join(parts))

    def ts(self):
        if self.opt.probe >= 0:
            if self.nts == self.opt.probe:
                self.e("s_memrealtime s[94:95]")
            self.nts += 1
        if self.opt.ts:
            self.e(f"s_memtime s[{sTS + 2 * self.nts}:{sTS + 2 * self.nts + 1}]")
            self.nts += 1

    def barrier(self):
        self.e("s_barrier")


def vr(a, n):
    return f"v[{a}:{a + n - 1}]"


def mfma(d, a, b, first):
    c = "0" if first else vr(d, 16)
    return f"v_mfma_f32_32x32x16_bf16 {vr(d, 16)}, {vr(a, 4)}, {vr(b, 4)}, {c}"


def x_dma(s, m):
    nt = "nt " if s.opt.xnt else ""
    if m > 0:
        s.e(f"v_add_u32 v{XDMA}, s{sXST}, v{XDMA}")
    for half in range(2):
        s.e(f"s_add_u32 m0, s{sXM0}, {X_BASE + (m & 1) * 16384 + half * 1024}")
        s.e("s_nop 0")
        s.vmop(f"buffer_load_dwordx4 v{XDMA}, s[{SX}:{SX+3}], s{sXH0 + half} offen {nt}lds", f"x{m}")


def w1_dma(s, ks):
    slot = (ks & 7) * 2
    s.e(f"s_add_u32 m0, s{sRING}, {slot * 1024}")
    s.e(f"s_xor_b32 s{sT0}, s{sROT1}, {ks * 16384}")
    s.vmop(f"buffer_load_dwordx4 v{W1DMA}, s[{SW1}:{SW1+3}], s{sT0} offen lds", f"w1a{ks}")
    s.e(f"s_add_u32 m0, s{sRING}, {slot * 1024 + 512}")
    s.e("s_nop 0")
    s.vmop(f"buffer_load_dwordx4 v{W1DMA}, s[{SW1}:{SW1+3}], s{sT0} offen offset:512 lds", f"w1b{ks}")


def w1_tr(s, ks):
    slot = (ks & 7) * 2
    for part, base in ((0, W1A), (1, W1B)):
        for rd in range(2):
            s.lgop(f"ds_read_b64_tr_b16 {vr(base + 4 * ks + 2 * rd, 2)}, v{W1TR} offset:{(slot + part) * 1024 + rd * 256}", f"w1r{ks}")


def w2_dma(s, ks, nslots):
    s.e(f"s_add_u32 m0, s{sRING2}, {(ks % nslots) * 1024}")
    s.e(f"s_xor_b32 s{sT0}, s{sROT2}, {ks * 8192}")
    s.vmop(f"buffer_load_dwordx4 v{W2DMA}, s[{SW2}:{SW2+3}], s{sT0} offen lds", f"w2{ks}")


def w2_tr(s, ks, nslots):
    for rd in range(2):
        s.lgop(f"ds_read_b64_tr_b16 {vr(W2 + 4 * ks + 2 * rd, 2)}, v{W2TR} offset:{(ks % nslots) * 1024 + rd * 512}", f"w2r{ks}")


def x_read(s, m, ks, f):
    a = XRO if ks & 1 else XRE
    s.lgop(f"ds_read_b128 {vr(f, 4)}, v{a} offset:{X_BASE + (m & 1) * 16384 + (ks >> 1) * 256}", f"xr{m}_{ks}")


def s_read(s, m, ks, f):
    for rd in range(2):
        s.lgop(f"ds_read_b64_tr_b16 {vr(f + 2 * rd, 2)}, v{SRD_} offset:{S_BASE + (m & 1) * 16384 + ks * 1024 + rd * 512}", f"sr{m}_{ks}")


def unpack_addrs(s):
    s.e(f"v_lshrrev_b32 v{GST}, 16, v{PK0}")
    s.e(f"v_lshrrev_b32 v{SRD_}, 16, v{PK1}")
    s.e(f"v_and_b32 v{ORD}, 0xffff, v{PK0}")
    s.e(f"v_and_b32 v{OWR}, 0xffff, v{PK1}")
    s.e(f"v_add_u32 v{ORD}, {O_BASE}, v{ORD}")
    s.e(f"v_add_u32 v{OWR}, {O_BASE}, v{OWR}")


def g1_first(s, grp):
    def fetch(ks):
        s.wait(vm=f"w1b{ks}")
        w1_tr(s, ks)
        x_read(s, 0, ks, F[ks % 4])
    fetch(0)
    fetch(1)
    for ks in range(16):
        s.wait(lg=f"xr0_{ks}")
        s.e(mfma(Q, F[ks % 4], W1B + 4 * ks, ks == 0))
        if ks < 8:
            w1_dma(s, ks + 8)
        elif grp == 1:
            w2_dma(s, 2 * (ks - 8), 16)
            w2_dma(s, 2 * (ks - 8) + 1, 16)
        if grp == 0 and ks == 7:
            s.barrier()
        s.e(mfma(P, F[ks % 4], W1A + 4 * ks, ks == 0))
        if ks + 2 < 16:
            fetch(ks + 2)


def merge(s, main, extra, start=0, step=1):
    k = 0
    for i, f in enumerate(main):
        f()
        while k < len(extra) and i >= start + k * step:
            extra[k](); k += 1
    while k < len(extra):
        extra[k](); k += 1


def act_ops(s, m):
    a = lambda v: (C0 if v == 14 else C1 if v == 15 else P + v)
    hsrc = lambda v: (C0 if v == -2 else C1 if v == -1 else a(v))
    tmp = lambda v: (TMP if v == 0 else C0 if v == 1 else P + v - 2)
    st = {}
    for v in range(16):
        b = Q + v
        st[('g', v)] = [
            f"v_mul_f32 v{b}, s{sC}, v{b}",
            f"v_exp_f32 v{b}, v{b}",
            f"v_add_f32 v{b}, 1.0, v{b}",
            f"v_rcp_f32 v{b}, v{b}",
            f"v_mul_f32 v{a(v)}, v{P + v}, v{b}",
        ]
        t = tmp(v)
        st[('c', v)] = [
            f"v_mul_f32 v{b}, v{DWP}, v{hsrc(v - 2)}",
            f"v_fmac_f32 v{b}, v{DWC}, v{hsrc(v - 1)}",
            f"v_fmac_f32 v{b}, v{DWN}, v{hsrc(v)}",
            f"v_exp_f32 v{t}, v{b}",
            f"v_fma_f32 v{t}, v{t}, s{sC}, s{sC}",
            f"v_rcp_f32 v{t}, v{t}",
            f"v_mul_f32 v{b}, v{b}, v{t}",
        ]
    seq = []
    def zip2(x, y):
        for i in range(max(len(x), len(y))):
            if i < len(x): seq.append(x[i])
            if i < len(y): seq.append(y[i])
    zip2(st[('g', 0)], st[('g', 1)])
    if m == 0:
        seq.append(f"v_mov_b32 v{C0}, v{P}")
        seq.append(f"v_mov_b32 v{C1}, v{P}")
    for p in range(8):
        if p < 7:
            zip2(st[('g', 2 * p + 2)], st[('g', 2 * p + 3)])
        if m == 0 and p == 0:
            seq.append(f"v_permlane32_swap_b32 v{C0}, v{C1}")
            seq.append(f"v_cndmask_b32 v{C1}, v{C1}, v{C0}, vcc")
        zip2(st[('c', 2 * p)], st[('c', 2 * p + 1)])
        if p >= 1:
            seq.append(f"v_cvt_pk_bf16_f32 v{Q + p - 1}, v{Q + 2 * p - 2}, v{Q + 2 * p - 1}")
    seq.append(f"v_xor_b32 v{TMP}, 16, v{SWR}")
    seq.append(f"v_cvt_pk_bf16_f32 v{Q + 7}, v{Q + 14}, v{Q + 15}")
    ops = [(lambda t=t: s.e(t)) for t in seq]
    off = S_BASE + (m & 1) * 16384
    ops.append(lambda: s.lgop(f"ds_write_b128 v{SWR}, {vr(Q, 4)} offset:{off}", f"sw{m}"))
    ops.append(lambda: s.lgop(f"ds_write_b128 v{TMP}, {vr(Q + 4, 4)} offset:{off}", f"sw{m}"))
    return ops


def o_read(s, m):
    for i in range(2):
        s.lgop(f"ds_read_b128 {vr(F[i], 4)}, v{ORD} offset:{(m & 1) * 16384 + i * 4096}", f"or{m}_{i}")


def o_store(s, m):
    nt = ["", " nt", " sc1", " sc0 sc1", " sc0 sc1 nt", " sc1 nt"][s.opt.ont]
    for i in range(2):
        so = (48 - 16 * m) * 512 if i == 0 else (62 + 16 * m) * 512
        s.e(f"s_mov_b32 s{sT1}, {so}")
        s.wait(lg=f"or{m}_{i}")
        if m == 0:
            r = sM0A if i == 0 else sM0B
            s.e(f"s_mov_b64 exec, s[{r}:{r+1}]")
        s.vmop(f"buffer_store_dwordx4 {vr(F[i], 4)}, v{GST}, s[{SO}:{SO+3}], s{sT1} offen{nt}", f"st{m}")
    if m == 0:
        s.e("s_mov_b64 exec, -1")


def o_write(s, m):
    for i in range(8):
        s.e(f"v_cvt_pk_bf16_f32 v{P + i}, v{P + 2 * i}, v{P + 2 * i + 1}")
    s.e(f"v_xor_b32 v{TMP}, 16, v{OWR}")
    off = (m & 1) * 16384
    s.lgop(f"ds_write_b128 v{OWR}, {vr(P, 4)} offset:{off}", f"ow{m}")
    s.lgop(f"ds_write_b128 v{TMP}, {vr(P + 4, 4)} offset:{off}", f"ow{m}")


def prefetch(s, m2, m1):
    for i in range(4):
        if m2 is not None:
            s_read(s, m2, i, F[i])
        else:
            x_read(s, m1, i, F[i])


def mfma_phase(s, m2, m1, pre_bar, post_bar, extra=None):
    extra = dict(extra or {})
    n = 0
    def tick():
        nonlocal n
        n += 1
        if n == 4:
            if pre_bar: pre_bar()
            s.barrier()
            s.ts()
            if post_bar: post_bar()
        if n in extra:
            extra.pop(n)()
    s.e("s_setprio 2")
    if m2 is not None:
        for ks in range(16):
            s.wait(lg=f"sr{m2}_{ks}")
            s.e(mfma(P, W2 + 4 * ks, F[ks % 4], ks == 0))
            if ks + 4 < 16:
                s_read(s, m2, ks + 4, F[ks % 4])
            elif m1 is not None:
                x_read(s, m1, ks - 12, F[ks % 4])
            tick()
        if m1 is not None:
            for ks in range(4):
                s.wait(lg=f"xr{m1}_{ks}")
                s.e(mfma(Q, F[ks], W1B + 4 * ks, ks == 0))
                if ks == 2:
                    s.e("s_nop 7")
                    o_write(s, m2)
                tick()
            for ks in range(4):
                s.e(mfma(P, F[ks], W1A + 4 * ks, ks == 0))
                x_read(s, m1, ks + 4, F[ks])
                tick()
        else:
            s.e("s_nop 11")
            o_write(s, m2)
    k0 = 4 if m2 is not None else 0
    if m1 is not None:
        for ks in range(k0, 16):
            s.wait(lg=f"xr{m1}_{ks}")
            s.e(mfma(Q, F[ks % 4], W1B + 4 * ks, ks == 0))
            tick()
            s.e(mfma(P, F[ks % 4], W1A + 4 * ks, ks == 0))
            if ks + 4 < 16:
                x_read(s, m1, ks + 4, F[ks % 4])
            tick()
    assert not extra
    s.e("s_setprio 0")


def valu_phase(s, m, pre_bar, post_bar, extra=(), estart=40, estep=6, nxt=None, head_nop=True):
    if head_nop:
        s.e("s_nop 10")
    ops = act_ops(s, m)
    nb = s.opt.vbar
    for f in ops[:nb]:
        f()
    if pre_bar: pre_bar()
    s.barrier()
    s.ts()
    if post_bar: post_bar()
    body, tail = ops[nb:-s.opt.vtail], ops[-s.opt.vtail:]
    merge(s, body, list(extra), estart, estep)
    if nxt is not None:
        prefetch(s, *nxt)
    for f in tail:
        f()


def finish(s, grp):
    if s.opt.probe >= 0:
        s.e("s_waitcnt vmcnt(0)")
        s.ts()
        s.e("s_memrealtime s[96:97]")
        s.e("s_waitcnt lgkmcnt(0)")
        s.e("s_sub_u32 s94, s94, s92")
        s.e("s_lshl_b32 s94, s94, 2")
        s.e(f"L_spin{grp}:")
        s.e("s_memrealtime s[98:99]")
        s.e("s_waitcnt lgkmcnt(0)")
        s.e("s_sub_u32 s98, s98, s96")
        s.e("s_cmp_lt_u32 s98, s94")
        s.e(f"s_cbranch_scc1 L_spin{grp}")
    if s.opt.ts:
        s.e("s_waitcnt vmcnt(0)")
        s.ts()
        s.e("s_memrealtime s[94:95]")
        s.e("s_load_dwordx2 s[96:97], s[0:1], 48")
        s.e("s_waitcnt lgkmcnt(0)")
        s.e("s_mov_b32 s98, 0x100000\ns_mov_b32 s99, 0x20000")
        s.e(f"s_lshl_b32 s3, s2, 3\ns_add_u32 s3, s3, s{sW}\ns_lshl_b32 s3, s3, 7\nv_mov_b32 v1, s3")
        s.e("v_mov_b32 v3, s92\nbuffer_store_dword v3, v1, s[96:99], 0 offen")
        s.e("v_mov_b32 v3, s94\nbuffer_store_dword v3, v1, s[96:99], 0 offen offset:4")
        for m in range(s.nts):
            s.e(f"s_sub_u32 s4, s{sTS + 2 * m}, s90\nv_mov_b32 v3, s4\nbuffer_store_dword v3, v1, s[96:99], 0 offen offset:{8 + 4 * m}")
    s.e("s_endpgm")


def dw_fix(s):
    s.wait(vm="dw")
    for r in (DWP, DWC, DWN):
        s.e(f"v_lshlrev_b32 v{r}, 16, v{r}")
    for r in (DWP, DWC, DWN):
        s.e(f"v_mul_f32 v{r}, s{sC}, v{r}")


def stream_a(s):
    for ks in range(8):
        w1_dma(s, ks)
    addr_setup(s)
    s.wait(vm="x0")
    s.barrier()
    s.ts()
    dw_fix(s)
    s.e("s_setprio 2")
    g1_first(s, 0)
    s.e("s_setprio 0")
    unpack_addrs(s)
    s.e("s_nop 4")
    def pre1(): s.wait(vm="x1")
    valu_phase(s, 0, pre1, None, extra=[(lambda k=k: w2_dma(s, k, 8)) for k in range(8)],
               estart=110, estep=6, nxt=(None, 1), head_nop=False)
    ex = {}
    def rd(k):
        s.wait(vm=f"w2{k}"); w2_tr(s, k, 8)
    def rf(k):
        s.wait(lg=f"w2r{k}"); w2_dma(s, k + 8, 8)
    for k in range(8):
        ex[12 + 2 * k] = (lambda k=k: rd(k))
        ex[17 + 2 * k] = (lambda k=k: rf(k))
    mfma_phase(s, None, 1, lambda: s.wait(lg="sw0"), lambda: x_dma(s, 2), ex)
    valu_phase(s, 1, lambda: None, None, extra=[(lambda k=k: rd(k)) for k in range(8, 16)],
               estart=60, estep=10, nxt=(0, None))
    def pre4(): s.wait(vm="x2", lg="sw1")
    mfma_phase(s, 0, 2, pre4, lambda: x_dma(s, 3))
    valu_phase(s, 2, lambda: s.wait(lg="ow0"), lambda: o_read(s, 0), extra=[lambda: o_store(s, 0)], estart=20, nxt=(1, None))
    def pre6(): s.wait(vm="x3", lg="sw2")
    mfma_phase(s, 1, 3, pre6, None)
    valu_phase(s, 3, lambda: s.wait(lg="ow1"), lambda: o_read(s, 1), extra=[lambda: o_store(s, 1)], estart=20, nxt=(2, None))
    mfma_phase(s, 2, None, lambda: s.wait(lg="sw3"), None)
    prefetch(s, 3, None)
    O2 = W1A
    def post9():
        for i in range(2):
            s.lgop(f"ds_read_b128 {vr(O2 + 4 * i, 4)}, v{ORD} offset:{i * 4096}", f"or2_{i}")
    def st9():
        nt = ["", " nt", " sc1", " sc0 sc1", " sc0 sc1 nt", " sc1 nt"][s.opt.ont]
        for i in range(2):
            so = (48 - 32) * 512 if i == 0 else (62 + 32) * 512
            s.e(f"s_mov_b32 s{sT1}, {so}")
            s.wait(lg=f"or2_{i}")
            s.vmop(f"buffer_store_dwordx4 {vr(O2 + 4 * i, 4)}, v{GST}, s[{SO}:{SO+3}], s{sT1} offen{nt}", "st2")
    mfma_phase(s, 3, None, lambda: s.wait(lg="ow2"), post9, {9: st9})
    s.wait(lg="ow3")
    s.barrier()
    s.ts()
    o_read(s, 3)
    o_store(s, 3)
    finish(s, 0)


def stream_b(s):
    addr_setup(s)
    s.wait(vm="x0")
    s.barrier()
    s.ts()
    dw_fix(s)
    s.barrier()
    for ks in range(8):
        w1_dma(s, ks)
    s.wait(vm="x1")
    s.barrier()
    s.ts()
    s.e("s_setprio 2")
    g1_first(s, 1)
    s.e("s_setprio 0")
    unpack_addrs(s)
    s.e("s_nop 4")
    def rd(k):
        s.wait(vm=f"w2{k}"); w2_tr(s, k, 16)
    valu_phase(s, 0, None, lambda: x_dma(s, 2), extra=[(lambda k=k: rd(k)) for k in range(16)],
               estart=30, estep=8, nxt=(0, None), head_nop=False)
    mfma_phase(s, 0, 1, lambda: s.wait(lg="sw0"), None)
    def pre4(): s.wait(vm="x2", lg="ow0")
    def post4(): x_dma(s, 3); o_read(s, 0)
    valu_phase(s, 1, pre4, post4, extra=[lambda: o_store(s, 0)], estart=20, nxt=(1, None))
    mfma_phase(s, 1, 2, lambda: s.wait(lg="sw1"), None)
    def pre6(): s.wait(vm="x3", lg="ow1")
    valu_phase(s, 2, pre6, lambda: o_read(s, 1), extra=[lambda: o_store(s, 1)], estart=20, nxt=(2, None))
    mfma_phase(s, 2, 3, lambda: s.wait(lg="sw2"), None)
    valu_phase(s, 3, lambda: s.wait(lg="ow2"), lambda: o_read(s, 2), extra=[lambda: o_store(s, 2)], estart=20, nxt=(3, None))
    mfma_phase(s, 3, None, lambda: s.wait(lg="sw3"), None)
    s.wait(lg="ow3")
    s.barrier()
    s.ts()
    o_read(s, 3)
    o_store(s, 3)
    finish(s, 1)


def prologue(s):
    e = s.e
    o = s.opt
    e("s_cmp_ge_u32 s2, 256")
    e("s_cbranch_scc1 L_done")
    if o.ts or o.probe >= 0:
        e("s_memrealtime s[92:93]")
        e("s_memtime s[90:91]")
    e("s_load_dwordx4 s[4:7], s[0:1], 0")
    e(f"s_load_dwordx2 s[{SD}:{SD+1}], s[0:1], 16")
    e(f"s_load_dwordx2 s[{SW2}:{SW2+1}], s[0:1], 24")
    e(f"s_load_dwordx2 s[{SO}:{SO+1}], s[0:1], 32")
    T = list(range(16, 32))
    L_, J, HH = T[0], T[1], T[2]
    e(f"v_readfirstlane_b32 s{sW}, v0")
    e(f"v_and_b32 v{L_}, 63, v0")
    e(f"v_and_b32 v{J}, 31, v0")
    e(f"v_bfe_u32 v{HH}, v0, 5, 1")
    e(f"s_lshr_b32 s{sW}, s{sW}, 6")
    e(f"s_and_b32 s{sWQ}, s{sW}, 3")
    e(f"s_mov_b32 s{sC}, 0x{LOG2E_NEG:x}")
    e(f"s_lshr_b32 s3, s2, 3")
    e(f"s_and_b32 s3, s3, {7 if o.rot else 0}")
    e(f"s_lshl_b32 s{sROT1}, s3, 15")
    e(f"s_lshl_b32 s{sROT2}, s3, 13")
    e(f"s_and_b32 s{sXH0}, s3, 4")
    e(f"s_lshl_b32 s{sXH0}, s{sXH0}, 6")
    e(f"s_xor_b32 s{sXH1}, s{sXH0}, 256")
    e(f"s_lshl_b32 s{sXM0}, s{sW}, 11")
    a, b, c = T[3], T[4], T[5]
    e(f"v_and_b32 v{a}, 3, v{L_}")
    e(f"v_lshrrev_b32 v{b}, 2, v{L_}")
    e(f"v_lshlrev_b32 v{W2DMA}, 4, v{a}")
    e(f"v_xor_b32 v{a}, s{sWQ}, v{a}")
    e(f"v_lshl_add_u32 v{W1DMA}, v{b}, 10, v{W2DMA}")
    e(f"v_lshl_add_u32 v{W2DMA}, v{b}, 9, v{W2DMA}")
    e(f"v_lshrrev_b32 v{c}, 4, v{L_}")
    e(f"s_and_b32 s{sT0}, s3, 3")
    e(f"v_xor_b32 v{c}, s{sT0}, v{c}")
    e(f"v_lshlrev_b32 v{a}, 4, v{a}")
    e(f"v_lshl_add_u32 v{a}, v{c}, 6, v{a}")
    e(f"v_and_b32 v{b}, 3, v{b}")
    e(f"s_and_b32 s{sT0}, s2, 127")
    e(f"s_mul_i32 s{sT0}, s{sT0}, 125")
    e(f"s_lshr_b32 s{sT1}, s{sW}, 1")
    e(f"s_lshl_b32 s{sT1}, s{sT1}, 2")
    e(f"s_add_u32 s41, s{sT1}, 63")
    e(f"s_sub_u32 s{sT1}, 62, s{sT1}")
    e(f"s_bitcmp1_b32 s{sW}, 0")
    e(f"s_cselect_b32 s{sT1}, s41, s{sT1}")
    e(f"s_cselect_b32 s41, 1, -1")
    e(f"s_lshl_b32 s{sXST}, s41, 13")
    e(f"s_lshl_b32 s41, s41, 9")
    e(f"s_add_u32 s{sT1}, s{sT1}, s{sT0}")
    e(f"s_lshl_b32 s{sT1}, s{sT1}, 9")
    e(f"v_mul_i32_i24 v{b}, s41, v{b}")
    e(f"v_add3_u32 v{XDMA}, v{a}, v{b}, s{sT1}")
    e(f"s_lshl_b32 s41, s{sW}, 6")
    e(f"v_lshl_add_u32 v{a}, v{J}, 1, s41")
    e(f"v_lshl_add_u32 v{b}, v{HH}, 10, v{a}")
    e(f"v_xor_b32 v{c}, 1024, v{b}")
    e(f"s_lshr_b32 s{sT1}, s2, 7")
    e(f"s_mul_i32 s{sT1}, s{sT1}, 8192000")
    e("s_waitcnt lgkmcnt(0)")
    e(f"s_add_u32 s{SX}, s4, s{sT1}")
    e(f"s_addc_u32 s{SX+1}, s5, 0")
    e(f"s_mov_b32 s{SX+2}, 8192000")
    e(f"s_mov_b32 s{SX+3}, 0x20000")
    x_dma(s, 0)
    e(f"s_add_u32 s{SW1}, s6, s41")
    e(f"s_addc_u32 s{SW1+1}, s7, 0")
    e(f"s_sub_u32 s{SW1+2}, 262144, s41")
    e(f"s_mov_b32 s{SW1+3}, 0x20000")
    e(f"s_mov_b32 s{SD+2}, 1536")
    e(f"s_mov_b32 s{SD+3}, 0x20000")
    s.vmop(f"buffer_load_ushort v{DWC}, v{a}, s[{SD}:{SD+3}], 0 offen offset:512", "dw")
    s.vmop(f"buffer_load_ushort v{DWN}, v{b}, s[{SD}:{SD+3}], 0 offen", "dw")
    s.vmop(f"buffer_load_ushort v{DWP}, v{c}, s[{SD}:{SD+3}], 0 offen", "dw")
    x_dma(s, 1)
    e(f"s_add_u32 s{SW2}, s{SW2}, s41")
    e(f"s_addc_u32 s{SW2+1}, s{SW2+1}, 0")
    e(f"s_sub_u32 s{SW2+2}, 131072, s41")
    e(f"s_mov_b32 s{SW2+3}, 0x20000")
    e(f"s_mul_i32 s{sT1}, s2, 64000")
    e(f"s_add_u32 s{SO}, s{SO}, s{sT1}")
    e(f"s_addc_u32 s{SO+1}, s{SO+1}, 0")
    e(f"s_mov_b32 s{SO+2}, 64000")
    e(f"s_mov_b32 s{SO+3}, 0x20000")
    e(f"s_lshl_b32 s{sRING}, s{sW}, 14")
    e(f"s_add_u32 s{sRING}, s{sRING}, {S_BASE}")
    e(f"s_lshl_b32 s{sT0}, s{sWQ}, 13")
    e(f"s_add_u32 s{sT0}, s{sT0}, {RA_BASE}")
    e(f"s_cmp_ge_u32 s{sW}, 4")
    e(f"s_cselect_b32 s{sRING2}, s{sRING}, s{sT0}")


def addr_setup(s):
    e = s.e
    T = list(range(16, 32))
    L_, J, HH = T[0], T[1], T[2]
    a, b, c, G, R, CC = T[3], T[4], T[5], T[6], T[7], T[8]
    d = T[9]
    e(f"v_bfe_u32 v{G}, v{L_}, 4, 1")
    e(f"v_bfe_u32 v{R}, v{L_}, 2, 2")
    e(f"v_and_b32 v{CC}, 3, v{L_}")
    e(f"v_lshrrev_b32 v{a}, 2, v{J}")
    e(f"v_xor_b32 v{b}, v{HH}, v{R}")
    e(f"v_lshlrev_b32 v{b}, 4, v{b}")
    e(f"v_lshl_add_u32 v{b}, v{CC}, 6, v{b}")
    e(f"v_lshl_add_u32 v{XRE}, v{a}, 11, v{b}")
    e(f"v_xor_b32 v{XRO}, 32, v{XRE}")
    e(f"v_lshl_add_u32 v{a}, v{HH}, 3, v{R}")
    e(f"v_lshlrev_b32 v{a}, 6, v{a}")
    e(f"v_lshl_add_u32 v{a}, v{G}, 5, v{a}")
    e(f"v_lshl_add_u32 v{a}, v{CC}, 3, v{a}")
    e(f"v_add_u32 v{W1TR}, s{sRING}, v{a}")
    e(f"v_lshl_add_u32 v{a}, v{HH}, 2, v{R}")
    e(f"v_lshlrev_b32 v{a}, 6, v{a}")
    e(f"v_lshrrev_b32 v{b}, 1, v{CC}")
    e(f"v_lshl_add_u32 v{b}, v{G}, 1, v{b}")
    e(f"v_and_b32 v{c}, 1, v{CC}")
    e(f"v_lshl_add_u32 v{d}, v{c}, 2, v{b}")
    e(f"v_lshl_add_u32 v{d}, v{d}, 3, v{a}")
    e(f"v_add_u32 v{W2TR}, s{sRING2}, v{d}")
    e(f"v_lshrrev_b32 v{d}, 1, v{R}")
    e(f"v_lshl_add_u32 v{d}, v{HH}, 1, v{d}")
    e(f"v_xor_b32 v{b}, v{b}, v{d}")
    e(f"v_lshl_add_u32 v{a}, v{b}, 4, v{a}")
    e(f"v_lshl_add_u32 v{a}, v{c}, 3, v{a}")
    e(f"v_lshlrev_b32 v{PK1}, 16, v{a}")
    e(f"s_lshl_b32 s{sT0}, s{sW}, 1")
    e(f"s_xor_b32 s{sT0}, s{sT0}, s3")
    e(f"v_xor_b32 v{a}, s{sT0}, v{G}")
    e(f"v_and_b32 v{b}, 15, v{J}")
    e(f"v_lshlrev_b32 v{d}, 6, v{b}")
    e(f"v_lshl_add_u32 v{a}, v{a}, 10, v{d}")
    e(f"v_bfe_u32 v{c}, v{J}, 1, 2")
    e(f"v_lshlrev_b32 v{d}, 1, v{HH}")
    e(f"v_xor_b32 v{c}, v{c}, v{d}")
    e(f"v_lshl_add_u32 v{SWR}, v{c}, 4, v{a}")
    e(f"v_sub_u32 v{a}, 1, v{G}")
    e(f"v_mul_u32_u24 v{a}, 15, v{a}")
    e(f"v_xor_b32 v{a}, v{a}, v{J}")
    e(f"s_lshl_b32 s{sT0}, s{sWQ}, 2")
    e(f"v_add_u32 v{d}, s{sT0}, v{d}")
    e(f"v_and_b32 v{c}, 7, v{a}")
    e(f"v_xor_b32 v{d}, v{d}, v{c}")
    e(f"v_lshlrev_b32 v{d}, 4, v{d}")
    e(f"v_lshl_add_u32 v{d}, v{a}, 8, v{d}")
    e(f"s_lshr_b32 s{sT1}, s{sW}, 2")
    e(f"s_lshl_b32 s41, s{sT1}, 13")
    e(f"v_add3_u32 v{PK1}, v{PK1}, v{d}, s41")
    e(f"v_lshrrev_b32 v{a}, 4, v{L_}")
    e(f"v_add_u32 v{a}, s{sT0}, v{a}")
    e(f"v_and_b32 v{c}, 7, v{a}")
    e(f"v_xor_b32 v{c}, v{c}, v{b}")
    e(f"v_lshlrev_b32 v{c}, 4, v{c}")
    e(f"v_lshl_add_u32 v{c}, v{a}, 8, v{c}")
    e(f"v_add_u32 v{c}, s41, v{c}")
    e(f"v_lshlrev_b32 v{b}, 4, v{b}")
    e(f"v_lshl_add_u32 v{b}, v{a}, 9, v{b}")
    e(f"s_lshl_b32 s41, s{sT1}, 8")
    e(f"v_add_u32 v{b}, s41, v{b}")
    e(f"v_lshl_add_u32 v{PK0}, v{b}, 16, v{c}")
    e(f"s_mov_b32 s{sM0A}, -1")
    e(f"s_cmp_eq_u32 s{sWQ}, 3")
    e(f"s_cselect_b32 s{sM0A+1}, 0xffff, -1")
    e(f"s_cmp_eq_u32 s{sWQ}, 0")
    e(f"s_cselect_b32 s{sM0B}, 0xffff0000, -1")
    e(f"s_mov_b32 s{sM0B+1}, -1")
    e("s_mov_b32 vcc_lo, 0")
    e("s_mov_b32 vcc_hi, -1")


def build(opt):
    pro = Stream(opt)
    prologue(pro)
    pro.e("s_cbranch_scc1 L_grp_b")
    sa = Stream(opt); sa.vm = list(pro.vm)
    sb = Stream(opt); sb.vm = list(pro.vm)
    stream_a(sa)
    stream_b(sb)
    ref = open(f"cdna_kernels/{NAME}.s.ref").read().split("\n")
    head = [l for l in ref if l.startswith(";") and "@launch" not in l]
    out = head + ["; @launch grid=(256,1,1) block=(512,1,1) lds=163840",
                  '.amdgcn_target "amdgcn-amd-amdhsa--gfx950"', ".text", f".globl {NAME}_kernel", ".p2align 8",
                  f".type {NAME}_kernel,@function", f"{NAME}_kernel:"]
    out += pro.L + sa.L + [".p2align 6", "L_grp_b:"] + sb.L + ["L_done:", "s_endpgm"]
    out += ['.section .rodata,"a"', ".p2align 6", f".amdhsa_kernel {NAME}_kernel",
            "  .amdhsa_next_free_vgpr 256", "  .amdhsa_next_free_sgpr 102", "  .amdhsa_accum_offset 256",
            "  .amdhsa_group_segment_fixed_size 0", "  .amdhsa_kernarg_size 56", "  .amdhsa_user_sgpr_count 2",
            "  .amdhsa_user_sgpr_kernarg_segment_ptr 1", "  .amdhsa_system_sgpr_workgroup_id_x 1",
            ".end_amdhsa_kernel", ""]
    return "\n".join(out)


if __name__ == "__main__":
    ap = argparse.ArgumentParser()
    ap.add_argument("-o", default=f"cdna_kernels/{NAME}.s")
    ap.add_argument("--ts", type=int, default=0)
    ap.add_argument("--probe", type=int, default=-1)
    ap.add_argument("--xnt", type=int, default=1)
    ap.add_argument("--ont", type=int, default=0)
    ap.add_argument("--rot", type=int, default=1)
    ap.add_argument("--vbar", type=int, default=20)
    ap.add_argument("--vtail", type=int, default=16)
    opt = ap.parse_args()
    open(opt.o, "w").write(build(opt))
```

```python
import sys, argparse, re

NAME = "standalone__conformer_conv_module__speech"
LIT = "0xbfb8aa3b"

S_BASE, X_BASE, R3_BASE = 0, 32768, 98304

XRE, XRO, SWR, C0, C1, DWP, DWC, DWN, VC, WDMA, WTR, SRD_, OWR, ORD, GST, TMP = range(16)
F = [16, 20, 24, 28]
G = 32
XF = [32, 36, 40, 44, 48, 52]
XD0, XD1, W2DMA0, W2TR0, XD2, XD3 = 56, 57, 58, 59, 60, 61
ACC = [64, 96]
W1A, W1B = 128, 192

SX, SW1, SW2, SO, SD = 8, 12, 16, 20, 24
sW, sWQ, sROT1, sROT2, sXH0, sXH1, sXM0, sRING, sRING2, sT0, sT1, sT2 = range(28, 40)
SC = 40
sTS = 48


class Stream:
    def __init__(self, opt):
        self.L = []; self.vm = []; self.lg = []; self.opt = opt; self.nts = 0

    def e(self, s):
        self.L.append(s)

    def vmop(self, s, tag):
        self.L.append(s); self.vm.append(tag)

    def lgop(self, s, tag):
        self.L.append(s); self.lg.append(tag)

    def _cnt(self, q, tag):
        idx = [i for i, t in enumerate(q) if t == tag]
        if not idx:
            return None
        n = len(q) - 1 - idx[-1]
        del q[:idx[-1] + 1]
        return n

    def wait(self, vm=None, lg=None):
        parts = []
        if vm is not None:
            n = self._cnt(self.vm, vm)
            if n is not None:
                assert n <= 63
                parts.append(f"vmcnt({n})")
        if lg is not None:
            n = self._cnt(self.lg, lg)
            if n is not None:
                parts.append(f"lgkmcnt({min(n, 15)})")
        if parts:
            self.e("s_waitcnt " + " ".join(parts))

    def ts(self, lvl=0):
        if lvl != self.opt.tl and lvl != -1:
            return
        if self.opt.probe >= 0:
            if self.nts == self.opt.probe:
                self.e("s_memrealtime s[94:95]")
            self.nts += 1
        if self.opt.ts:
            op = "s_memtime" if self.opt.ts == 1 else "s_memrealtime"
            assert self.nts < 21
            self.e(f"{op} s[{sTS + 2 * self.nts}:{sTS + 2 * self.nts + 1}]")
            self.nts += 1

    def barrier(self, vm=None, lg=None):
        self.wait(vm=vm, lg=lg)
        self.ts(2)
        self.e("s_barrier")
        self.ts(2)

    def prio(self, p):
        self.e(f"s_setprio {p}")


def vr(a, n):
    return f"v[{a}:{a + n - 1}]"


def mfma(d, a, b, first):
    c = "0" if first else vr(d, 16)
    return f"v_mfma_f32_32x32x16_bf16 {vr(d, 16)}, {vr(a, 4)}, {vr(b, 4)}, {c}"


def x_dma1(s, mm, h, half):
    nt = "nt " if s.opt.xnt else ""
    r = XD1 if h else XD0
    s.e(f"s_add_u32 m0, s{sXM0}, {mm * 16384 + h * 2048 + half * 1024}")
    if mm == 1 and half == 0:
        s.e(f"v_add_u32 v{r}, {8192 if h else -8192}, v{r}")
    else:
        s.e("s_nop 0")
    s.vmop(f"buffer_load_dwordx4 v{r}, s[{SX}:{SX+3}], s{sXH0 + half} offen {nt}lds", "x")


def x_dma(s, mm, h):
    for half in range(2):
        x_dma1(s, mm, h, half)


def w_dma1(s, ks, which, part):
    if which == 1 and s.opt.hack & 2: return
    slot = (ks & 7) * 2
    ring, rot, step, srd, off = ((sRING, sROT1, 16384, SW1, 512), (sRING2, sROT2, 8192, SW2, 64))[which]
    if which == 1 and s.opt.hack & 4: srd = SW1
    if which == 1 and s.opt.w2p:
        s.e(f"s_add_u32 m0, s{ring}, {(slot + part) * 1024}")
        s.e(f"s_xor_b32 s{sT0}, s{rot}, {ks * step + part * 4096}")
        s.vmop(f"buffer_load_dwordx4 v{WDMA}, s[{srd}:{srd+3}], s{sT0} offen lds", f"w{which}{'ab'[part]}{ks}")
    elif part == 0:
        s.e(f"s_add_u32 m0, s{ring}, {slot * 1024}")
        s.e(f"s_xor_b32 s{sT0}, s{rot}, {ks * step}")
        s.vmop(f"buffer_load_dwordx4 v{WDMA}, s[{srd}:{srd+3}], s{sT0} offen lds", f"w{which}a{ks}")
        s.e(f"s_add_u32 m0, s{ring}, {slot * 1024 + 1024 - off}")
    else:
        if s.L[-1].startswith("s_add_u32 m0"):
            s.e("s_nop 0")
        s.vmop(f"buffer_load_dwordx4 v{WDMA}, s[{srd}:{srd+3}], s{sT0} offen offset:{off} lds", f"w{which}b{ks}")


def w_dma(s, ks, which):
    w_dma1(s, ks, which, 0)
    w_dma1(s, ks, which, 1)


def w_tr1(s, ks, which, part):
    slot = (ks & 7) * 2
    if not (which == 1 and s.opt.hack & 1): s.wait(vm=f"w{which}{'ab'[part]}{ks}")
    base = (W1A, W1B)[part]
    if which == 1 and s.opt.hack & 8: return
    if which == 1 and s.opt.w2p:
        for ct in range(2):
            s.lgop(f"ds_read_b64_tr_b16 {vr((W1A, W1B)[ct] + 4 * ks + 2 * part, 2)}, v{WTR} offset:{(slot + part) * 1024 + ct * 512}", f"w{which}r{ks}")
        return
    for rd in range(2):
        s.lgop(f"ds_read_b64_tr_b16 {vr(base + 4 * ks + 2 * rd, 2)}, v{WTR} offset:{(slot + part) * 1024 + rd * (512 if which else 256)}", f"w{which}r{ks}")


def w_tr(s, ks, which):
    w_tr1(s, ks, which, 0)
    w_tr1(s, ks, which, 1)


def x_read1(s, mp, ks, mm):
    if s.opt.hack & 32 and mp == 1: return
    a = XRO if ks & 1 else XRE
    s.lgop(f"ds_read_b128 {vr(XF[(ks % 3) * 2 + mm], 4)}, v{a} offset:{(2 * mp + mm) * 16384 + (ks >> 1) * 256}", f"xr{mp}_{ks}_{mm}")


def x_read(s, mp, ks):
    for mm in range(2):
        x_read1(s, mp, ks, mm)


def s_read(s, m, ks, f):
    for rd in range(2):
        s.lgop(f"ds_read_b64_tr_b16 {vr(f + 2 * rd, 2)}, v{SRD_} offset:{S_BASE + m * 16384 + ks * 1024 + rd * 512}", f"sr{m}_{ks}")


def g1(s, mp, stream, hook):
    for ks in range(16):
        for mm in range(2):
            f = XF[(ks % 3) * 2 + mm]
            s.wait(lg=f"xr{mp}_{ks}_{1 if stream else mm}")
            if mm == 0 and ks % 4 == 0: s.ts(1)
            s.e(mfma(ACC[mm] + 16, f, W1B + 4 * ks, ks == 0))
            hook(ks, 2 * mm)
            s.e(mfma(ACC[mm], f, W1A + 4 * ks, ks == 0))
            if ks + 2 < 16:
                if stream:
                    w_tr1(s, ks + 2, 0, mm)
                x_read1(s, mp, ks + 2, mm)
            hook(ks, 2 * mm + 1)


def act2(s, mp, hooks, base, toggle, wfrom=0, pk=None):
    n = s.opt.n
    ng = 32 // n
    a_in = lambda u: ACC[u >> 4] + (u & 15)
    b = lambda u: ACC[u >> 4] + 16 + (u & 15)
    h = lambda u: C0 if u in (-2, 30) else C1 if u in (-1, 31) else a_in(u)
    hooks = dict(hooks)
    cur = [None]
    pend = []
    pk = pk or (ACC[0] + 16, ACC[1] + 16)
    def setp(p):
        if cur[0] != p:
            s.prio(p); cur[0] = p
    hooks = {((k if k >= 0 else ng + 4 + k), t): f for (k, t), f in hooks.items()}
    for j in range(ng + 4):
        e = lambda k: [(j - k) * n + i for i in range(n)] if 0 <= j - k < ng else []
        S = []; T = []
        S += [f"v_mul_f32 v{b(u)}, v{VC}, v{b(u)}" for u in e(0)]
        S += [f"v_mul_f32 v{h(u)}, v{a_in(u)}, v{b(u)}" for u in e(2)]
        if mp == 0 and j == 2:
            S += [f"v_mov_b32 v{C0}, v{a_in(0)}", f"v_mov_b32 v{C1}, v{a_in(0)}"]
        S += [f"v_add_f32 v{b(u)}, 1.0, v{b(u)}" for u in e(1)]
        if mp == 0 and j == 2:
            S += [f"v_permlane32_swap_b32 v{C0}, v{C1}", f"v_cndmask_b32 v{C1}, v{C1}, v{C0}, vcc"]
        S += [f"v_mul_f32 v{b(u)}, v{DWN}, v{h(u)}" for u in e(2)]
        S += [f"v_fmac_f32 v{b(u)}, v{DWC}, v{h(u - 1)}" for u in e(2)]
        S += [f"v_fmac_f32 v{b(u)}, v{DWP}, v{h(u - 2)}" for u in e(2)]
        S += [f"v_fmaak_f32 v{h(u - 2)}, v{VC}, v{h(u - 2)}, {LIT}" for u in e(3)]
        S += [f"v_mul_f32 v{b(u)}, v{b(u)}, v{h(u - 2)}" for u in e(4)]
        T += [f"v_exp_f32 v{b(u)}, v{b(u)}" for u in e(0)]
        T += [f"v_rcp_f32 v{b(u)}, v{b(u)}" for u in e(1)]
        T += [f"v_exp_f32 v{h(u - 2)}, v{b(u)}" for u in e(2)]
        T += [f"v_rcp_f32 v{h(u - 2)}, v{h(u - 2)}" for u in e(3)]
        T += [f"v_cvt_pk_bf16_f32 v{pk[u >> 4] + ((u & 15) >> 1)}, v{b(u)}, v{b(u + 1)}" for u in e(4)[::2]]
        bp = base[0] if j < ng // 2 + 2 else base[1]
        setp(bp)
        if (j, 'S') in hooks: hooks.pop((j, 'S'))()
        if s.opt.hack & 16 and getattr(s, 'isb', 0) and mp == 0: S = []; T = []
        for t in S: s.e(t)
        if toggle: setp(bp + 1)
        if (j, 'T') in hooks: hooks.pop((j, 'T'))()
        for t in T: s.e(t)
        done = (j - 3) * n
        if done > 0 and done % 8 == 0:
            mm = (done - 8) >> 4; q = ((done - 8) >> 3) & 1
            pend.append((f"ds_write_b128 v{TMP if q else SWR}, {vr(pk[mm] + 4 * q, 4)} offset:{S_BASE + (2 * mp + mm) * 16384}", f"sw{2 * mp + mm}"))
        if j >= (wfrom if wfrom >= 0 else ng + 4 + wfrom):
            while pend: s.lgop(*pend.pop(0))
    assert not hooks, hooks
    return [(lambda w=w: s.lgop(*w)) for w in pend]


OW = [OWR, XRE, XRO, WDMA]


def epi_ops(s, m, acc):
    nt = ["", " nt", " sc1", " sc0 sc1", " sc0 sc1 nt", " sc1 nt"][s.opt.ont if m < 3 else s.opt.ont3]
    ops = []
    for ct in range(2):
        for q in range(2):
            d = acc + 16 * ct + 4 * q
            def cv(ct=ct, q=q, d=d):
                for i in range(4):
                    s.e(f"v_cvt_pk_bf16_f32 v{d + i}, v{acc + 16 * ct + 8 * q + 2 * i}, v{acc + 16 * ct + 8 * q + 2 * i + 1}")
            def wr(ct=ct, q=q, d=d):
                s.lgop(f"ds_write_b128 v{OW[2 * ct + q]}, {vr(d, 4)}", f"ow{m}")
            ops += [cv, wr]
    dst = [acc + 8, acc + 12, acc + 24, acc + 28]
    def rd(lo):
        for i in range(lo, lo + 2):
            s.lgop(f"ds_read_b128 {vr(dst[i], 4)}, v{ORD} offset:{i * 1024}", f"or{m}_{i}")
    ops.append(lambda: rd(0))
    ops.append(lambda: rd(2))
    def st(i):
        so = (48 - 16 * m + 8 * i) * 512 if i < 2 else (62 + 16 * m + 8 * (i - 2)) * 512
        s.e(f"s_movk_i32 s{sT1}, {so}" if so < 32768 else f"s_mov_b32 s{sT1}, {so}")
        if m == 0 and i == 1: s.e("s_mov_b32 exec_hi, 0x00ffffff")
        if m == 0 and i == 2: s.e("s_mov_b32 exec_lo, 0xffffff00")
        s.wait(lg=f"or{m}_{i}")
        s.vmop(f"buffer_store_dwordx4 {vr(dst[i], 4)}, v{GST}, s[{SO}:{SO+3}], s{sT1} offen{nt}", f"st{m}")
        if m == 0 and i in (1, 2): s.e("s_mov_b64 exec, -1")
    sts = [(lambda i=i: st(i)) for i in range(4)]
    return ops, sts


def g2_run(s, steps, extra):
    extra = dict(extra)
    n = 0
    for i, (m, ks, acc, pre) in enumerate(steps):
        s.wait(lg=f"sr{m}_{ks}")
        for ct, w in ((0, W1A), (1, W1B)):
            s.e(mfma(acc + 16 * ct, w + 4 * ks, F[i % 4], ks == 0))
            if ct == 1 and i + 4 < len(steps):
                m2, k2, _, pre2 = steps[i + 4]
                if pre2: pre2()
                s_read(s, m2, k2, F[i % 4])
            if n in extra: extra.pop(n)()
            n += 1
    assert not extra, extra


def g2_prefetch(s, steps):
    for i in range(4):
        m, ks, _, pre = steps[i]
        assert pre is None
        s_read(s, m, ks, F[i])


def finish(s, grp):
    if s.opt.probe >= 0:
        s.e("s_waitcnt vmcnt(0)")
        s.ts(-1)
        s.e("s_memrealtime s[96:97]\ns_waitcnt lgkmcnt(0)\ns_sub_u32 s94, s94, s92\ns_lshl_b32 s94, s94, 2")
        s.e(f"L_spin{grp}:")
        s.e("s_memrealtime s[98:99]\ns_waitcnt lgkmcnt(0)\ns_sub_u32 s98, s98, s96\ns_cmp_lt_u32 s98, s94")
        s.e(f"s_cbranch_scc1 L_spin{grp}")
    if s.opt.ts:
        s.e("s_waitcnt vmcnt(0)")
        s.ts(-1)
        s.e("s_memrealtime s[94:95]")
        s.e("s_load_dwordx2 s[96:97], s[0:1], 48")
        s.e("s_waitcnt lgkmcnt(0)")
        s.e("s_mov_b32 s98, 0x100000\ns_mov_b32 s99, 0x20000")
        s.e(f"s_lshl_b32 s3, s2, 3\ns_add_u32 s3, s3, s{sW}\ns_lshl_b32 s3, s3, 7\nv_mov_b32 v1, s3")
        s.e("v_mov_b32 v3, s92\nbuffer_store_dword v3, v1, s[96:99], 0 offen")
        s.e("v_mov_b32 v3, s94\nbuffer_store_dword v3, v1, s[96:99], 0 offen offset:4")
        for m in range(s.nts):
            s.e(f"s_sub_u32 s4, s{sTS + 2 * m}, s{90 if s.opt.ts == 1 else 92}\nv_mov_b32 v3, s4\nbuffer_store_dword v3, v1, s[96:99], 0 offen offset:{8 + 4 * m}")
    s.e("s_endpgm")


def dw_load(s):
    J, HH = 17, 18
    e = s.e
    e(f"s_lshl_b32 s{sT2}, s{sW}, 6")
    e(f"v_lshl_add_u32 v{DWC}, v{J}, 1, s{sT2}")
    e(f"v_lshl_add_u32 v{DWN}, v{HH}, 10, v{DWC}")
    e(f"v_xor_b32 v{DWP}, 1024, v{DWN}")
    e(f"s_mov_b32 s{SD+2}, 1536")
    e(f"s_mov_b32 s{SD+3}, 0x20000")
    s.vmop(f"buffer_load_ushort v{DWC}, v{DWC}, s[{SD}:{SD+3}], 0 offen offset:512", "dw")
    s.vmop(f"buffer_load_ushort v{DWN}, v{DWN}, s[{SD}:{SD+3}], 0 offen", "dw")
    s.vmop(f"buffer_load_ushort v{DWP}, v{DWP}, s[{SD}:{SD+3}], 0 offen", "dw")


def dw_fix(s):
    s.wait(vm="dw")
    for r in (DWP, DWC, DWN):
        s.e(f"v_lshlrev_b32 v{r}, 16, v{r}")
    for r in (DWP, DWC, DWN):
        s.e(f"v_mul_f32 v{r}, v{VC}, v{r}")


def early(s):
    o = s.opt
    def xh(mm, h, half):
        nt = "nt " if o.xnt else ""
        if (mm, h, half) == (0, 0, 0): s.e(f"s_mov_b32 m0, s{sXM0}")
        else: s.e(f"s_addk_i32 m0, {1024 if (h, half) != (0, 0) else 16384 - 3072}")
        r = (XD0, XD1)[h]
        if mm == 1 and half == 0:
            s.e(f"v_add_u32 v{r}, {8192 if h else -8192}, v{r}")
        else:
            s.e("s_nop 0")
        s.vmop(f"buffer_load_dwordx4 v{r}, s[{SX}:{SX+3}], s{sXH0 + half} offen {nt}lds", "x")
    s.e("s_cbranch_scc1 L_e1")
    for i in range(8):
        xh(i >> 2, (i >> 1) & 1, i & 1)
    s.ts(3)
    for ks in range(o.a0):
        w_dma(s, ks, 0)
    s.e("L_e1:")
    s.ts(3)
    addr_common(s)
    dw_load(s)
    s.ts(3)
    s.e(f"s_cmp_ge_u32 s{sW}, 4")
    s.e("s_cbranch_scc1 L_e2")
    for ks in range(o.a0, o.d0):
        w_dma(s, ks, 0)
    s.ts(1)
    s.wait(vm="x")
    s.e("L_e2:")
    s.ts(3)
    s.barrier()
    s.ts(); s.ts(3)
    s.e(f"s_cmp_ge_u32 s{sW}, 4")
    s.e("s_cbranch_scc1 L_grp_b")


def stream_a(s):
    o = s.opt
    D = o.d0
    s.prio(3)
    for ks in range(2):
        w_tr(s, ks, 0)
        x_read(s, 0, ks)
    late = Stream(o)
    addr_a(late)
    late = late.L
    def hook0(ks, pos):
        if pos in (0, 2) and ks + D < 16: w_dma1(s, ks + D, 0, pos >> 1)
        if pos == 2 and ks == o.b0b: s.barrier()
        if pos == 0 and ks == 16 - D: dw_fix(s)
        if ks > 16 - D and pos in (0, 2):
            for _ in range(5):
                if late: s.e(late.pop(0))
        if pos == 3 and ks == 15:
            assert not late
            s.e(f"v_mov_b32 v{WDMA}, v{W2DMA0}")
            s.e(f"v_mov_b32 v{WTR}, v{W2TR0}")
    g1(s, 0, True, hook0)
    s.ts()
    def pre2():
        s.barrier()
        x_read(s, 1, 0); x_read(s, 1, 1)
    wr = act2(s, 0, {(0, 'T'): lambda: s.barrier(), (o.b2a, 'S'): pre2}, (o.pa0, o.pa1), o.tog & 1, 99, (F[0], F[2]))
    s.ts()
    s.prio(3)
    lag = o.lag
    dq = [(k, p) for k in range(16) for p in range(2)]
    def hook1(ks, pos):
        if ks == 0: wr[pos]()
        elif pos in (0, 2) or (ks <= 2 and pos == 1):
            k, p = dq.pop(0)
            if k >= 8: s.wait(lg=f"w1r{k - 8}")
            w_dma1(s, k, 1, p)
        if pos in (1, 3) and ks >= lag: w_tr1(s, ks - lag, 1, pos >> 1)
    g1(s, 1, False, hook1)
    assert not dq and lag == 6
    s.ts()
    accs = [G, ACC[0], ACC[1], G]
    lo = lambda m, f=None: [(m, ks, accs[m], f if ks == 0 else None) for ks in range(8)]
    hi = lambda m, f=None: [(m, ks, accs[m], f if ks == 8 else None) for ks in range(8, 16)]
    st4 = lo(0) + hi(0) + lo(1) + hi(1) + lo(2, lambda: s.barrier(lg="sw3")) + hi(2) + lo(3)
    def owa():
        for i, x in ((1, 16), (2, 64), (3, 80)): s.e(f"v_xor_b32 v{OW[i]}, {x}, v{OWR}")
    wr = act2(s, 1, {(0, 'T'): owa, (o.b4a, 'S'): lambda: s.barrier(), (-1, 'S'): lambda: g2_prefetch(s, st4)}, (o.pa2, o.pa3), o.tog & 4, 99)
    s.ts()
    s.prio(3)
    ex = {}
    for i in range(12): ex[2 * (i >> 1) + (i & 1)] = (lambda i=i: w_tr1(s, 10 + (i >> 1), 1, i & 1))
    for i in range(4): ex[14 + 2 * i] = wr[i]
    for m in range(3):
        ops, sts = epi_ops(s, m, accs[m])
        if m < 2:
            for i, f in enumerate(ops + [None] + sts):
                if f: ex[32 * m + 34 + 2 * i] = f
        else:
            for i, f in enumerate(ops): ex[98 + i] = f
    FF = [ACC[0] + 4 * i for i in range(8)]
    def last(i):
        if i == 0: s.barrier()
        s_read(s, 3, 8 + 2 * i, FF[2 * i]); s_read(s, 3, 9 + 2 * i, FF[2 * i + 1])
    nb = 112 - o.b6a
    for i in range(4):
        if nb + i < 112: ex[nb + i] = (lambda i=i: last(i))
    g2_run(s, st4, ex)
    s.ts()
    for i in range(4):
        if nb + i >= 112: last(i)
    sts2 = sts
    ops, sts = epi_ops(s, 3, accs[3])
    for i in range(8):
        s.wait(lg=f"sr3_{8 + i}")
        s.e(mfma(accs[3], W1A + 4 * (8 + i), FF[i], False))
        if i < 4: sts2[i]()
    for i in range(8):
        s.e(mfma(accs[3] + 16, W1B + 4 * (8 + i), FF[i], False))
        if 2 <= i < 6: ops[i - 2]()
    s.ts()
    s.e("s_nop 11")
    for f in ops[4:] + sts: f()
    finish(s, 0)


def stream_b(s):
    s.isb = 1
    o = s.opt
    D = o.d1
    jt = 16 // o.n + 4
    dw_fix(s)
    s.barrier()
    for ks in range(D):
        w_dma(s, ks, 0)
    for ks in range(2):
        w_tr(s, ks, 0)
        x_read(s, 0, ks)
    s.barrier()
    s.ts()
    s.prio(3)
    dq = [('w', k) for k in range(D, 16)]
    for i in range(4): dq.insert(o.xb + i * o.xbs, ('x', i))
    dq = [(t, k, p) for t, k in dq for p in range(2)]
    def hook0(ks, pos):
        if pos in (0, 2) or (pos == 3 and ks < o.xbe):
            if dq:
                t, k, p = dq.pop(0)
                if t == 'w':
                    assert ks + 2 < k <= ks + 8
                    w_dma1(s, k, 0, p)
                else: x_dma1(s, k >> 1, k & 1, p)
    g1(s, 0, True, hook0)
    assert not dq
    s.ts()
    def pre():
        x_read(s, 1, 0); x_read(s, 1, 1)
    wr = act2(s, 0, {(o.b2b, 'S'): lambda: s.barrier(vm="x"), (-2, 'T'): pre}, (o.pb0, o.pb1), o.tog & 2, 99, (F[0], F[2]))
    s.ts()
    s.prio(3)
    def hook1(ks, pos):
        if pos == 0 and o.wb <= ks < o.wb + 4: wr[ks - o.wb]()
        if pos == 0 and ks == o.b4b: s.barrier(lg="sw1")
    g1(s, 1, False, hook1)
    s.ts()
    act2(s, 1, {(jt + o.b5b, 'T'): lambda: s.barrier(lg="sw2")}, (o.pb2, o.pb3), o.tog & 8)
    s.ts()
    s.barrier(lg="sw3")
    finish(s, 1)


def prefetch_code(s):
    e = s.e
    e(f"s_getpc_b64 s[{SC}:{SC+1}]")
    e("L_pc:")
    e(f"s_mov_b32 s{SC+2}, L_done-L_pc")
    e(f"s_mov_b32 s{SC+3}, 0x20000")
    e(f"s_lshl_b32 s{sT0}, s3, 2")
    e(f"s_add_u32 s{sT0}, s{sT0}, s{sWQ}")
    e(f"s_lshl_b32 s{sT0}, s{sT0}, 6")
    for i in range(10):
        e(f"s_buffer_load_dword s44, s[{SC}:{SC+3}], s{sT0} offset:{2048 * i}")


def prologue(s):
    e = s.e
    o = s.opt
    e("s_cmp_ge_u32 s2, 256")
    e("s_cbranch_scc1 L_done")
    if o.ts or o.probe >= 0:
        e("s_memrealtime s[92:93]")
        e("s_memtime s[90:91]")
    e("s_load_dwordx4 s[4:7], s[0:1], 0")
    e(f"s_load_dwordx2 s[{SD}:{SD+1}], s[0:1], 16")
    e(f"s_load_dwordx2 s[{SW2}:{SW2+1}], s[0:1], 24")
    e(f"s_load_dwordx2 s[{SO}:{SO+1}], s[0:1], 32")
    L_, J, HH, a, b, c, d = range(16, 23)
    e(f"v_readfirstlane_b32 s{sW}, v0")
    e(f"v_and_b32 v{L_}, 63, v0")
    e(f"v_and_b32 v{J}, 31, v0")
    e(f"v_bfe_u32 v{HH}, v0, 5, 1")
    e(f"v_and_b32 v{a}, 3, v0")
    e(f"s_lshr_b32 s{sW}, s{sW}, 6")
    if o.swp: e(f"s_xor_b32 s{sW}, s{sW}, 4")
    e(f"s_and_b32 s{sWQ}, s{sW}, 3")
    e(f"s_bfe_u32 s3, s2, {0x30003 if o.rot else 0}")
    if o.pf:
        e(f"s_cmp_lt_u32 s{sW}, 4")
        e("s_cbranch_scc1 L_e0")
        prefetch_code(s)
        e("L_e0:")
    e(f"s_lshl_b32 s{sROT1}, s3, 15")
    e(f"s_and_b32 s{sXH0}, s3, 4")
    e(f"s_lshl_b32 s{sXH0}, s{sXH0}, 6")
    e(f"s_xor_b32 s{sXH1}, s{sXH0}, 256")
    e(f"s_lshr_b32 s{sT2}, s{sW}, 2")
    e(f"s_lshl_b32 s{sXM0}, s{sT2}, 3")
    e(f"s_add_u32 s{sXM0}, s{sXM0}, s{sWQ}")
    e(f"s_lshl_b32 s{sT1}, s{sXM0}, 2")
    e(f"s_lshl_b32 s{sXM0}, s{sXM0}, 12")
    e(f"s_add_u32 s{sXM0}, s{sXM0}, {X_BASE}")
    e(f"v_lshrrev_b32 v{b}, 2, v{L_}")
    e(f"v_lshlrev_b32 v{d}, 4, v{a}")
    e(f"v_lshl_add_u32 v{WDMA}, v{b}, 10, v{d}")
    e(f"v_lshrrev_b32 v{c}, 4, v{L_}")
    e(f"v_lshl_add_u32 v{d}, v{c}, 6, v{d}")
    e(f"s_lshl_b32 s{sT0}, s3, 1")
    e(f"s_and_b32 s{sT0}, s{sT0}, 6")
    e(f"s_and_b32 s{sRING}, s{sW}, 1")
    e(f"s_add_u32 s{sT0}, s{sT0}, s{sRING}")
    e(f"s_lshl_b32 s{sT0}, s{sT0}, 5")
    e(f"v_xor_b32 v{d}, s{sT0}, v{d}")
    e(f"v_and_b32 v{b}, 3, v{b}")
    e(f"v_add_u32 v{b}, s{sT1}, v{b}")
    e(f"s_and_b32 s{sT0}, s2, 127")
    e(f"s_mul_i32 s{sT0}, s{sT0}, 125")
    e(f"s_add_u32 s{sT0}, s{sT0}, 62")
    e(f"v_sub_u32 v{c}, s{sT0}, v{b}")
    e(f"v_add3_u32 v{b}, v{b}, s{sT0}, 1")
    e(f"v_lshl_add_u32 v{XD0}, v{c}, 9, v{d}")
    e(f"v_xor_b32 v{d}, 16, v{d}")
    e(f"v_lshl_add_u32 v{XD1}, v{b}, 9, v{d}")
    e(f"s_lshl_b32 s{sRING}, s{sRING}, 14")
    e(f"s_and_b32 s{sT0}, s{sW}, 2")
    e(f"s_lshl_b32 s{sT0}, s{sT0}, 15")
    e(f"s_add_u32 s{sRING}, s{sRING}, s{sT0}")
    e(f"s_lshl_b32 s{sRING2}, s{sWQ}, 14")
    e(f"s_add_u32 s{sRING2}, s{sRING2}, {R3_BASE}")
    e(f"s_lshr_b32 s{sT1}, s2, 7")
    e(f"s_mul_i32 s{sT1}, s{sT1}, 8192000")
    e(f"s_lshl_b32 s{sT2}, s{sW}, 6")
    e(f"s_mov_b32 s{SX+2}, 8192000")
    e(f"s_mov_b32 s{SX+3}, 0x20000")
    e(f"s_sub_u32 s{SW1+2}, 262144, s{sT2}")
    e(f"s_mov_b32 s{SW1+3}, 0x20000")
    e("s_waitcnt lgkmcnt(0)")
    s.ts(1); s.ts(3)
    e(f"s_add_u32 s{SX}, s4, s{sT1}")
    e(f"s_addc_u32 s{SX+1}, s5, 0")
    e(f"s_add_u32 s{SW1}, s6, s{sT2}")
    e(f"s_addc_u32 s{SW1+1}, s7, 0")
    e(f"s_cmp_ge_u32 s{sW}, 4")
    e(f"s_cselect_b32 s{sRING}, s{sRING2}, s{sRING}")


def addr_common(s):
    e = s.e
    L_, J, HH, a, b, c, d, Gq, R, CC = range(16, 26)
    e(f"v_mov_b32 v{VC}, {LIT}")
    e(f"v_bfe_u32 v{Gq}, v{L_}, 4, 1")
    e(f"v_bfe_u32 v{R}, v{L_}, 2, 2")
    e(f"v_and_b32 v{CC}, 3, v{L_}")
    e(f"v_lshrrev_b32 v{a}, 2, v{J}")
    e(f"v_xor_b32 v{b}, v{HH}, v{R}")
    e(f"v_lshlrev_b32 v{b}, 4, v{b}")
    e(f"v_lshl_add_u32 v{b}, v{CC}, 6, v{b}")
    e(f"v_add_u32 v{a}, {X_BASE >> 11}, v{a}")
    e(f"v_lshl_add_u32 v{XRE}, v{a}, 11, v{b}")
    e(f"v_xor_b32 v{XRO}, 32, v{XRE}")
    e(f"v_lshl_add_u32 v{a}, v{HH}, 3, v{R}")
    e(f"v_lshl_add_u32 v{a}, v{a}, 1, v{Gq}")
    e(f"v_lshl_add_u32 v{a}, v{a}, 2, v{CC}")
    e(f"v_lshl_add_u32 v{WTR}, v{a}, 3, s{sRING}")
    e(f"s_lshl_b32 s{sT0}, s{sW}, 1")
    e(f"s_xor_b32 s{sT0}, s{sT0}, s3")
    e(f"s_lshl_b32 s{sT0}, s{sT0}, 4")
    e(f"v_xor_b32 v{a}, s{sT0}, v{J}")
    e(f"v_bfe_u32 v{c}, v{J}, 1, 2")
    e(f"v_lshlrev_b32 v{d}, 1, v{HH}")
    e(f"v_xor_b32 v{c}, v{c}, v{d}")
    e(f"v_lshl_add_u32 v{a}, v{a}, 2, v{c}")
    e(f"v_lshlrev_b32 v{SWR}, 4, v{a}")
    e(f"v_xor_b32 v{TMP}, 16, v{SWR}")
    e("s_mov_b32 vcc_lo, 0")
    e("s_mov_b32 vcc_hi, -1")


def addr_a(s):
    e = s.e
    L_, J, HH, a, b, c, d, Gq, R, CC, t = range(16, 27)
    e(f"s_lshl_b32 s{sROT2}, s3, 13")
    e(f"s_lshl_b32 s{sT2}, s{sWQ}, 7")
    e(f"s_add_u32 s{SW2}, s{SW2}, s{sT2}")
    e(f"s_addc_u32 s{SW2+1}, s{SW2+1}, 0")
    e(f"s_sub_u32 s{SW2+2}, 131072, s{sT2}")
    e(f"s_mov_b32 s{SW2+3}, 0x20000")
    e(f"s_mul_i32 s{sT1}, s2, 64000")
    e(f"s_add_u32 s{SO}, s{SO}, s{sT1}")
    e(f"s_addc_u32 s{SO+1}, s{SO+1}, 0")
    e(f"s_mov_b32 s{SO+2}, 64000")
    e(f"s_mov_b32 s{SO+3}, 0x20000")
    if s.opt.w2p:
        e(f"v_lshrrev_b32 v{a}, 2, v{J}")
        e(f"v_lshl_add_u32 v{a}, v{a}, 3, v{HH}")
        e(f"v_lshl_add_u32 v{a}, v{a}, 2, v{CC}")
        e(f"v_lshlrev_b32 v{W2DMA0}, 4, v{a}")
    else:
        e(f"v_lshrrev_b32 v{a}, 2, v{L_}")
        e(f"v_lshl_add_u32 v{a}, v{a}, 5, v{CC}")
        e(f"v_lshlrev_b32 v{W2DMA0}, 4, v{a}")
    e(f"v_lshl_add_u32 v{a}, v{HH}, 2, v{R}")
    e(f"v_lshrrev_b32 v{b}, 1, v{CC}")
    e(f"v_lshl_add_u32 v{b}, v{Gq}, 1, v{b}")
    e(f"v_and_b32 v{c}, 1, v{CC}")
    e(f"v_lshl_add_u32 v{t}, v{a}, 1, v{c}")
    e(f"v_lshl_add_u32 v{t}, v{t}, 2, v{b}")
    e(f"v_lshl_add_u32 v{W2TR0}, v{t}, 3, s{sRING2}")
    e(f"v_lshrrev_b32 v{t}, 1, v{a}")
    e(f"v_xor_b32 v{b}, v{b}, v{t}")
    e(f"v_lshl_add_u32 v{a}, v{a}, 2, v{b}")
    e(f"v_lshl_add_u32 v{a}, v{a}, 1, v{c}")
    e(f"v_lshlrev_b32 v{SRD_}, 3, v{a}")
    e(f"v_sub_u32 v{a}, 1, v{Gq}")
    e(f"v_mul_u32_u24 v{a}, 15, v{a}")
    e(f"v_xor_b32 v{a}, v{a}, v{J}")
    e(f"v_and_b32 v{c}, 7, v{a}")
    e(f"v_xor_b32 v{c}, v{c}, v{d}")
    e(f"v_lshl_add_u32 v{a}, v{a}, 3, v{c}")
    e(f"v_lshl_add_u32 v{OWR}, v{a}, 4, s{sRING2}")
    e(f"v_lshrrev_b32 v{a}, 3, v{L_}")
    e(f"v_xor_b32 v{b}, v{a}, v{L_}")
    e(f"v_lshl_add_u32 v{ORD}, v{b}, 4, s{sRING2}")
    e(f"v_and_b32 v{b}, 7, v{L_}")
    e(f"v_lshl_add_u32 v{b}, v{a}, 5, v{b}")
    e(f"v_lshl_add_u32 v{GST}, v{b}, 4, s{sT2}")


TRANS = ("v_exp_f32", "v_rcp_f32")


def check(lines):
    ins = [l for x in lines for l in x.split("\n") if l and not l.endswith(":") and not l.startswith(".")]
    for p, q in zip(ins, ins[1:]):
        if p.startswith(TRANS) and q.startswith("v_") and not q.startswith(TRANS):
            d = re.match(r"\S+ (v\d+)", p).group(1)
            assert not re.search(r"\b" + d + r"\b", q), (p, q)


def flat(L):
    return [l for x in L for l in x.split("\n")]


def isize(l):
    if l.endswith(":") or l.startswith("."): return 0
    op = l.split()[0]
    if op.startswith(("v_mfma", "ds_", "buffer_", "v_cvt_pk", "v_fmaak", "v_lshl_add", "v_add3", "v_bfe", "s_load", "s_buffer", "s_mem")): return 8
    lits = re.findall(r"(?<![\w\[:(])(-?(?:0x[0-9a-f]+|\d+))(?![\w\].:)])", l.split(None, 1)[1] if " " in l else "")
    if op in ("s_nop", "s_setprio", "s_waitcnt"): return 4
    for x in lits:
        v = int(x, 0)
        if v > 64 or v < -16: return 8
    return 4


def add_pads(la, lb, opt):
    pos = []
    for si, L in enumerate((la, lb)):
        acc = 0; nxt = opt.hop0
        for i, l in enumerate(L):
            acc += isize(l)
            if acc >= nxt and l.startswith("v_") and "exec" not in "".join(L[max(0, i - 4):i + 4]):
                pos.append((acc + si * opt.hopb, si, i)); nxt = acc + opt.hop
    pos.sort()
    n = len(pos); c = opt.nch
    ins = {}
    for k, (_, si, i) in enumerate(pos):
        tgt = f"L_pad{k + c}" if k + c < n else "L_padend"
        ins[(si, i)] = [f"L_pad{k}:", f"s_cbranch_execz {tgt}"]
    res = []
    for si, L in enumerate((la, lb)):
        o = []
        for i, l in enumerate(L):
            o.append(l); o += ins.get((si, i), [])
        res.append(o)
    return res[0], res[1], ["L_padend:", "s_mov_b64 exec, -1", "s_branch L_back"]


def build(opt):
    pro = Stream(opt)
    prologue(pro)
    early(pro)
    sa = Stream(opt); sa.nts = pro.nts; sa.vm = list(pro.vm)
    sb = Stream(opt); sb.nts = pro.nts; sb.vm = ["dw"] * 3
    stream_a(sa)
    stream_b(sb)
    assert sa.L.count("s_barrier") == sb.L.count("s_barrier")
    check(sa.L); check(sb.L)
    ref = open(f"cdna_kernels/{NAME}.s.ref").read().split("\n")
    head = [l for l in ref if l.startswith(";") and "@launch" not in l]
    out = head + ["; @launch grid=(256,1,1) block=(512,1,1) lds=163840",
                  '.amdgcn_target "amdgcn-amd-amdhsa--gfx950"', ".text", f".globl {NAME}_kernel", ".p2align 8",
                  f".type {NAME}_kernel,@function", f"{NAME}_kernel:"]
    la, lb = flat(sa.L), flat(sb.L)
    tail = []
    if opt.hop:
        la, lb, tail = add_pads(la, lb, opt)
    out += pro.L + la + [".p2align 6", "L_grp_b:"] + lb + tail + ["L_done:", "s_endpgm"]
    out += ['.section .rodata,"a"', ".p2align 6", f".amdhsa_kernel {NAME}_kernel",
            "  .amdhsa_next_free_vgpr 256", "  .amdhsa_next_free_sgpr 102", "  .amdhsa_accum_offset 256",
            "  .amdhsa_group_segment_fixed_size 0", "  .amdhsa_kernarg_size 56", "  .amdhsa_user_sgpr_count 2",
            "  .amdhsa_user_sgpr_kernarg_segment_ptr 1", "  .amdhsa_system_sgpr_workgroup_id_x 1",
            ".end_amdhsa_kernel", ""]
    return "\n".join(out)


if __name__ == "__main__":
    ap = argparse.ArgumentParser()
    ap.add_argument("-o", default=f"cdna_kernels/{NAME}.s")
    for k, v in dict(ts=0, probe=-1, tl=0, xnt=1, ont=2, rot=1, pf=4, a0=2, d0=6, d1=6, b0b=9, b2a=-1, b6a=4, b2b=1, b3b=-1, b4b=12, b4a=10, xb=10, xbs=1, xbe=0, ont3=2, b5b=0, a3=4, n=2, w2e=2, hack=0, wa=2, wb=5, hop=0, hop0=1500, hopb=1000, nch=4, hopw=0, swp=0, w2p=1, xs=-1,
                     lag=6, tog=0, pa0=0, pa1=1, pa2=0, pa3=1, pb0=0, pb1=1, pb2=0, pb3=1).items():
        ap.add_argument("--" + k, type=int, default=v)
    opt = ap.parse_args()
    open(opt.o, "w").write(build(opt))
```

```python
import sys, argparse, re

NAME = "standalone__conformer_conv_module__speech"
LIT = "0xbfb8aa3b"

S_BASE, X_BASE, R3_BASE = 0, 32768, 98304

XRE, XRO, SWR, C0, C1, DWP, DWC, DWN, VC, WDMA, WTR, SRD_, OWR, ORD, GST, TMP = range(16)
F = [16, 20, 24, 28]
G = 32
XF = [32, 36, 40, 44, 48, 52]
XD0, XD1, W2DMA0, W2TR0, XD2, XD3 = 56, 57, 58, 59, 60, 61
ACC = [64, 96]
W1A, W1B = 128, 192

SX, SW1, SW2, SO, SD = 8, 12, 16, 20, 24
sW, sWQ, sROT1, sROT2, sXH0, sXH1, sXM0, sRING, sRING2, sT0, sT1, sT2 = range(28, 40)
SC = 40
sTS = 48


class Stream:
    def __init__(self, opt):
        self.L = []; self.vm = []; self.lg = []; self.opt = opt; self.nts = 0

    def e(self, s):
        self.L.append(s)

    def vmop(self, s, tag):
        self.L.append(s); self.vm.append(tag)

    def lgop(self, s, tag):
        self.L.append(s); self.lg.append(tag)

    def _cnt(self, q, tag):
        idx = [i for i, t in enumerate(q) if t == tag]
        if not idx:
            return None
        n = len(q) - 1 - idx[-1]
        del q[:idx[-1] + 1]
        return n

    def wait(self, vm=None, lg=None):
        parts = []
        if vm is not None:
            n = self._cnt(self.vm, vm)
            if n is not None:
                assert n <= 63
                parts.append(f"vmcnt({n})")
        if lg is not None:
            n = self._cnt(self.lg, lg)
            if n is not None:
                parts.append(f"lgkmcnt({min(n, 15)})")
        if parts:
            self.e("s_waitcnt " + " ".join(parts))

    def ts(self, lvl=0):
        if lvl != self.opt.tl and lvl != -1:
            return
        if self.opt.probe >= 0:
            if self.nts == self.opt.probe:
                self.e("s_memrealtime s[94:95]")
            self.nts += 1
        if self.opt.ts:
            op = "s_memtime" if self.opt.ts == 1 else "s_memrealtime"
            assert self.nts < 21
            self.e(f"{op} s[{sTS + 2 * self.nts}:{sTS + 2 * self.nts + 1}]")
            self.nts += 1

    def barrier(self, vm=None, lg=None):
        self.wait(vm=vm, lg=lg)
        self.ts(2)
        self.e("s_barrier")
        self.ts(2)

    def prio(self, p):
        self.e(f"s_setprio {p}")


def vr(a, n):
    return f"v[{a}:{a + n - 1}]"


def mfma(d, a, b, first):
    c = "0" if first else vr(d, 16)
    return f"v_mfma_f32_32x32x16_bf16 {vr(d, 16)}, {vr(a, 4)}, {vr(b, 4)}, {c}"


def x_dma1(s, mm, h, half):
    nt = "nt " if s.opt.xnt else ""
    r = (XD0, XD1, XD2, XD3)[2 * mm + h]
    s.e(f"s_add_u32 m0, s{sXM0}, {mm * 16384 + h * 2048 + half * 1024}")
    s.e("s_nop 0")
    s.vmop(f"buffer_load_dwordx4 v{r}, s[{SX}:{SX+3}], s{sXH0 + half} offen {nt}lds", f"x{half}")


def w_dma1(s, ks, which, part):
    if which == 1 and s.opt.hack & 2: return
    slot = (ks & 7) * 2
    ring, rot, step, srd, off = ((sRING, sROT1, 16384, SW1, 512), (sRING2, sROT2, 8192, SW2, 64))[which]
    if which == 1 and s.opt.hack & 4: srd = SW1
    if which == 1 and s.opt.w2p:
        s.e(f"s_add_u32 m0, s{ring}, {(slot + part) * 1024}")
        s.e(f"s_xor_b32 s{sT0}, s{rot}, {ks * step + part * 4096}")
        s.vmop(f"buffer_load_dwordx4 v{WDMA}, s[{srd}:{srd+3}], s{sT0} offen lds", f"w{which}{'ab'[part]}{ks}")
    elif part == 0:
        s.e(f"s_add_u32 m0, s{ring}, {slot * 1024}")
        s.e(f"s_xor_b32 s{sT0}, s{rot}, {ks * step}")
        s.vmop(f"buffer_load_dwordx4 v{WDMA}, s[{srd}:{srd+3}], s{sT0} offen lds", f"w{which}a{ks}")
        s.e(f"s_add_u32 m0, s{ring}, {slot * 1024 + 1024 - off}")
    else:
        if s.L[-1].startswith("s_add_u32 m0"):
            s.e("s_nop 0")
        s.vmop(f"buffer_load_dwordx4 v{WDMA}, s[{srd}:{srd+3}], s{sT0} offen offset:{off} lds", f"w{which}b{ks}")


def w_dma(s, ks, which):
    w_dma1(s, ks, which, 0)
    w_dma1(s, ks, which, 1)


def w_tr1(s, ks, which, part):
    slot = (ks & 7) * 2
    if not (which == 1 and s.opt.hack & 1): s.wait(vm=f"w{which}{'ab'[part]}{ks}")
    base = (W1A, W1B)[part]
    if which == 1 and s.opt.hack & 8: return
    if which == 1 and s.opt.w2p:
        for ct in range(2):
            s.lgop(f"ds_read_b64_tr_b16 {vr((W1A, W1B)[ct] + 4 * ks + 2 * part, 2)}, v{WTR} offset:{(slot + part) * 1024 + ct * 512}", f"w{which}r{ks}")
        return
    for rd in range(2):
        s.lgop(f"ds_read_b64_tr_b16 {vr(base + 4 * ks + 2 * rd, 2)}, v{WTR} offset:{(slot + part) * 1024 + rd * (512 if which else 256)}", f"w{which}r{ks}")


def w_tr(s, ks, which):
    w_tr1(s, ks, which, 0)
    w_tr1(s, ks, which, 1)


def x_read1(s, mp, ks, mm):
    if s.opt.hack & 32 and mp == 1: return
    a = XRO if ks & 1 else XRE
    s.lgop(f"ds_read_b128 {vr(XF[(ks % 3) * 2 + mm], 4)}, v{a} offset:{(2 * mp + mm) * 16384 + (ks >> 1) * 256}", f"xr{mp}_{ks}_{mm}")


def x_read(s, mp, ks):
    for mm in range(2):
        x_read1(s, mp, ks, mm)


def s_read(s, m, ks, f):
    for rd in range(2):
        s.lgop(f"ds_read_b64_tr_b16 {vr(f + 2 * rd, 2)}, v{SRD_} offset:{S_BASE + m * 16384 + ks * 1024 + rd * 512}", f"sr{m}_{ks}")


def g1(s, mp, stream, hook):
    for ks in range(16):
        for mm in range(2):
            f = XF[(ks % 3) * 2 + mm]
            s.wait(lg=f"xr{mp}_{ks}_{1 if stream else mm}")
            if mm == 0 and ks % 4 == 0: s.ts(1)
            s.e(mfma(ACC[mm] + 16, f, W1B + 4 * ks, ks == 0))
            hook(ks, 2 * mm)
            s.e(mfma(ACC[mm], f, W1A + 4 * ks, ks == 0))
            if ks + 2 < 16:
                if stream:
                    w_tr1(s, ks + 2, 0, mm)
                x_read1(s, mp, ks + 2, mm)
            hook(ks, 2 * mm + 1)


def act2(s, mp, hooks, base, toggle, wfrom=0, pk=None):
    n = s.opt.n
    ng = 32 // n
    a_in = lambda u: ACC[u >> 4] + (u & 15)
    b = lambda u: ACC[u >> 4] + 16 + (u & 15)
    h = lambda u: C0 if u in (-2, 30) else C1 if u in (-1, 31) else a_in(u)
    hooks = dict(hooks)
    cur = [None]
    pend = []
    pk = pk or (ACC[0] + 16, ACC[1] + 16)
    def setp(p):
        if cur[0] != p:
            s.prio(p); cur[0] = p
    hooks = {((k if k >= 0 else ng + 4 + k), t): f for (k, t), f in hooks.items()}
    for j in range(ng + 4):
        e = lambda k: [(j - k) * n + i for i in range(n)] if 0 <= j - k < ng else []
        S = []; T = []
        S += [f"v_mul_f32 v{b(u)}, v{VC}, v{b(u)}" for u in e(0)]
        S += [f"v_mul_f32 v{h(u)}, v{a_in(u)}, v{b(u)}" for u in e(2)]
        if mp == 0 and j == 2:
            S += [f"v_mov_b32 v{C0}, v{a_in(0)}", f"v_mov_b32 v{C1}, v{a_in(0)}"]
        S += [f"v_add_f32 v{b(u)}, 1.0, v{b(u)}" for u in e(1)]
        if mp == 0 and j == 2:
            S += [f"v_permlane32_swap_b32 v{C0}, v{C1}", f"v_cndmask_b32 v{C1}, v{C1}, v{C0}, vcc"]
        S += [f"v_mul_f32 v{b(u)}, v{DWN}, v{h(u)}" for u in e(2)]
        S += [f"v_fmac_f32 v{b(u)}, v{DWC}, v{h(u - 1)}" for u in e(2)]
        S += [f"v_fmac_f32 v{b(u)}, v{DWP}, v{h(u - 2)}" for u in e(2)]
        S += [f"v_fmaak_f32 v{h(u - 2)}, v{VC}, v{h(u - 2)}, {LIT}" for u in e(3)]
        S += [f"v_mul_f32 v{b(u)}, v{b(u)}, v{h(u - 2)}" for u in e(4)]
        T += [f"v_exp_f32 v{b(u)}, v{b(u)}" for u in e(0)]
        T += [f"v_rcp_f32 v{b(u)}, v{b(u)}" for u in e(1)]
        T += [f"v_exp_f32 v{h(u - 2)}, v{b(u)}" for u in e(2)]
        T += [f"v_rcp_f32 v{h(u - 2)}, v{h(u - 2)}" for u in e(3)]
        T += [f"v_cvt_pk_bf16_f32 v{pk[u >> 4] + ((u & 15) >> 1)}, v{b(u)}, v{b(u + 1)}" for u in e(4)[::2]]
        bp = base[0] if j < ng // 2 + 2 else base[1]
        setp(bp)
        if (j, 'S') in hooks: hooks.pop((j, 'S'))()
        if s.opt.hack & 16 and getattr(s, 'isb', 0) and mp == 0: S = []; T = []
        for t in S: s.e(t)
        if toggle: setp(bp + 1)
        if (j, 'T') in hooks: hooks.pop((j, 'T'))()
        for t in T: s.e(t)
        done = (j - 3) * n
        if done > 0 and done % 8 == 0:
            mm = (done - 8) >> 4; q = ((done - 8) >> 3) & 1
            pend.append((f"ds_write_b128 v{TMP if q else SWR}, {vr(pk[mm] + 4 * q, 4)} offset:{S_BASE + (2 * mp + mm) * 16384}", f"sw{2 * mp + mm}"))
        if j >= (wfrom if wfrom >= 0 else ng + 4 + wfrom):
            while pend: s.lgop(*pend.pop(0))
    assert not hooks, hooks
    return [(lambda w=w: s.lgop(*w)) for w in pend]


OW = [OWR, XRE, XRO, WDMA]


def epi_ops(s, m, acc):
    nt = ["", " nt", " sc1", " sc0 sc1", " sc0 sc1 nt", " sc1 nt"][s.opt.ont if m < 3 else s.opt.ont3]
    ops = []
    for ct in range(2):
        for q in range(2):
            d = acc + 16 * ct + 4 * q
            def cv(ct=ct, q=q, d=d):
                for i in range(4):
                    s.e(f"v_cvt_pk_bf16_f32 v{d + i}, v{acc + 16 * ct + 8 * q + 2 * i}, v{acc + 16 * ct + 8 * q + 2 * i + 1}")
            def wr(ct=ct, q=q, d=d):
                s.lgop(f"ds_write_b128 v{OW[2 * ct + q]}, {vr(d, 4)}", f"ow{m}")
            ops += [cv, wr]
    dst = [acc + 8, acc + 12, acc + 24, acc + 28]
    def rd(lo):
        for i in range(lo, lo + 2):
            s.lgop(f"ds_read_b128 {vr(dst[i], 4)}, v{ORD} offset:{i * 1024}", f"or{m}_{i}")
    ops.append(lambda: rd(0))
    ops.append(lambda: rd(2))
    def st(i):
        so = (48 - 16 * m + 8 * i) * 512 if i < 2 else (62 + 16 * m + 8 * (i - 2)) * 512
        s.e(f"s_movk_i32 s{sT1}, {so}" if so < 32768 else f"s_mov_b32 s{sT1}, {so}")
        if m == 0 and i == 1: s.e("s_mov_b32 exec_hi, 0x00ffffff")
        if m == 0 and i == 2: s.e("s_mov_b32 exec_lo, 0xffffff00")
        s.wait(lg=f"or{m}_{i}")
        s.vmop(f"buffer_store_dwordx4 {vr(dst[i], 4)}, v{GST}, s[{SO}:{SO+3}], s{sT1} offen{nt}", f"st{m}")
        if m == 0 and i in (1, 2): s.e("s_mov_b64 exec, -1")
    sts = [(lambda i=i: st(i)) for i in range(4)]
    return ops, sts


def g2_run(s, steps, extra):
    extra = dict(extra)
    n = 0
    for i, (m, ks, acc, pre) in enumerate(steps):
        s.wait(lg=f"sr{m}_{ks}")
        for ct, w in ((0, W1A), (1, W1B)):
            s.e(mfma(acc + 16 * ct, w + 4 * ks, F[i % 4], ks == 0))
            if ct == 1 and i + 4 < len(steps):
                m2, k2, _, pre2 = steps[i + 4]
                if pre2: pre2()
                s_read(s, m2, k2, F[i % 4])
            if n in extra: extra.pop(n)()
            n += 1
    assert not extra, extra


def g2_prefetch(s, steps):
    for i in range(4):
        m, ks, _, pre = steps[i]
        assert pre is None
        s_read(s, m, ks, F[i])


def finish(s, grp):
    if s.opt.probe >= 0:
        s.e("s_waitcnt vmcnt(0)")
        s.ts(-1)
        if grp == 1:
            s.e("s_endpgm")
            return
        s.e("s_memrealtime s[96:97]\ns_waitcnt lgkmcnt(0)\ns_sub_u32 s94, s94, s92\ns_lshl_b32 s94, s94, 2")
        s.e(f"L_spin{grp}:")
        s.e("s_memrealtime s[98:99]\ns_waitcnt lgkmcnt(0)\ns_sub_u32 s98, s98, s96\ns_cmp_lt_u32 s98, s94")
        s.e(f"s_cbranch_scc1 L_spin{grp}")
    if s.opt.ts:
        s.e("s_waitcnt vmcnt(0)")
        s.ts(-1)
        s.e("s_memrealtime s[94:95]")
        s.e("s_load_dwordx2 s[96:97], s[0:1], 48")
        s.e("s_waitcnt lgkmcnt(0)")
        s.e("s_mov_b32 s98, 0x100000\ns_mov_b32 s99, 0x20000")
        s.e(f"s_lshl_b32 s3, s2, 3\ns_add_u32 s3, s3, s{sW}\ns_lshl_b32 s3, s3, 7\nv_mov_b32 v1, s3")
        s.e("v_mov_b32 v3, s92\nbuffer_store_dword v3, v1, s[96:99], 0 offen")
        s.e("v_mov_b32 v3, s94\nbuffer_store_dword v3, v1, s[96:99], 0 offen offset:4")
        for m in range(s.nts):
            s.e(f"s_sub_u32 s4, s{sTS + 2 * m}, s{90 if s.opt.ts == 1 else 92}\nv_mov_b32 v3, s4\nbuffer_store_dword v3, v1, s[96:99], 0 offen offset:{8 + 4 * m}")
    s.e("s_endpgm")


def dw_load(s):
    J, HH = 17, 18
    e = s.e
    e(f"s_lshl_b32 s{sT2}, s{sW}, 6")
    e(f"v_lshl_add_u32 v{DWC}, v{J}, 1, s{sT2}")
    e(f"v_lshl_add_u32 v{DWN}, v{HH}, 10, v{DWC}")
    e(f"v_xor_b32 v{DWP}, 1024, v{DWN}")
    e(f"s_mov_b32 s{SD+2}, 1536")
    e(f"s_mov_b32 s{SD+3}, 0x20000")
    s.vmop(f"buffer_load_ushort v{DWC}, v{DWC}, s[{SD}:{SD+3}], 0 offen offset:512", "dw")
    s.vmop(f"buffer_load_ushort v{DWN}, v{DWN}, s[{SD}:{SD+3}], 0 offen", "dw")
    s.vmop(f"buffer_load_ushort v{DWP}, v{DWP}, s[{SD}:{SD+3}], 0 offen", "dw")


def dw_fix(s):
    s.wait(vm="dw")
    for r in (DWP, DWC, DWN):
        s.e(f"v_lshlrev_b32 v{r}, 16, v{r}")
    for r in (DWP, DWC, DWN):
        s.e(f"v_mul_f32 v{r}, v{VC}, v{r}")


def early(s):
    o = s.opt
    def xh(mm, h, half):
        nt = "nt " if o.xnt else ""
        if (mm, h, half) == (0, 0, 0): s.e(f"s_mov_b32 m0, s{sXM0}")
        else: s.e(f"s_addk_i32 m0, {1024 if (h, half) != (0, 0) else 16384 - 3072}")
        r = (XD0, XD1)[h]
        if mm == 1 and half == 0:
            s.e(f"v_add_u32 v{r}, {8192 if h else -8192}, v{r}")
        else:
            s.e("s_nop 0")
        s.vmop(f"buffer_load_dwordx4 v{r}, s[{SX}:{SX+3}], s{sXH0 + half} offen {nt}lds", "x")
    s.e("s_cbranch_scc1 L_e1")
    for i in range(8):
        xh(i >> 2, (i >> 1) & 1, i & 1)
    s.ts(3)
    for ks in range(o.a0):
        w_dma(s, ks, 0)
    s.e("L_e1:")
    s.ts(3)
    addr_common(s)
    dw_load(s)
    s.ts(3)
    s.e(f"s_cmp_ge_u32 s{sW}, 4")
    s.e("s_cbranch_scc1 L_e2")
    for ks in range(o.a0, o.d0):
        w_dma(s, ks, 0)
    s.ts(1)
    s.wait(vm="x")
    s.e("L_e2:")
    s.ts(3)
    s.barrier()
    s.ts(); s.ts(3)
    s.e(f"s_cmp_ge_u32 s{sW}, 4")
    s.e("s_cbranch_scc1 L_grp_b")


def stream_a(s):
    o = s.opt
    D = o.d0
    s.prio(3)
    for ks in range(2):
        w_tr(s, ks, 0)
        x_read(s, 0, ks)
    late = Stream(o)
    addr_a(late)
    late = late.L
    def hook0(ks, pos):
        if pos in (0, 2) and ks + D < 16: w_dma1(s, ks + D, 0, pos >> 1)
        if pos == 2 and ks == o.b0b: s.barrier()
        if pos == 0 and ks == 16 - D: dw_fix(s)
        if ks > 16 - D and pos in (0, 2):
            for _ in range(5):
                if late: s.e(late.pop(0))
        if pos == 3 and ks == 15:
            assert not late
            s.e(f"v_mov_b32 v{WDMA}, v{W2DMA0}")
            s.e(f"v_mov_b32 v{WTR}, v{W2TR0}")
    g1(s, 0, True, hook0)
    s.ts()
    def pre2():
        s.barrier()
        x_read(s, 1, 0); x_read(s, 1, 1)
    wr = act2(s, 0, {(0, 'T'): lambda: s.barrier(), (o.b2a, 'S'): pre2}, (o.pa0, o.pa1), o.tog & 1, 99, (F[0], F[2]))
    s.ts()
    s.prio(3)
    dq = [(k, p) for k in range(8) for p in range(2)]
    tq = list(dq)
    def hook1(ks, pos):
        n = 4 * ks + pos
        if n == 24: s.barrier()
        if 25 <= n <= 28: wr[n - 25]()
        if n >= 30 and pos in (0, 2) and dq:
            k, p = dq.pop(0); w_dma1(s, k, 1, p)
        if n >= 30 + 4 * o.lag and pos in (1, 3):
            k, p = tq.pop(0); w_tr1(s, k, 1, p)
    g1(s, 1, False, hook1)
    assert not dq
    s.ts()
    accs = [G, ACC[0], ACC[1], G]
    lo = lambda m, f=None: [(m, ks, accs[m], f if ks == 0 else None) for ks in range(8)]
    hi = lambda m, f=None: [(m, ks, accs[m], f if ks == 8 else None) for ks in range(8, 16)]
    st4 = lo(0) + hi(0) + lo(1) + hi(1) + lo(2, lambda: s.barrier(lg="sw3")) + hi(2) + lo(3)
    def owa():
        for i, x in ((1, 16), (2, 64), (3, 80)): s.e(f"v_xor_b32 v{OW[i]}, {x}, v{OWR}")
        for k, p in tq: w_tr1(s, k, 1, p)
    wr = act2(s, 1, {(0, 'T'): owa, (o.b3a, 'S'): lambda: s.barrier(lg="w1r7"), (o.b4a, 'S'): lambda: s.barrier(), (-1, 'S'): lambda: g2_prefetch(s, st4)}, (o.pa2, o.pa3), o.tog & 4, 99)
    s.ts()
    s.prio(3)
    ex = {}
    for i in range(16): ex[i] = (lambda i=i: w_tr1(s, 8 + (i >> 1), 1, i & 1))
    for i in range(4): ex[16 + 2 * i] = wr[i]
    for m in range(3):
        ops, sts = epi_ops(s, m, accs[m])
        if m < 2:
            for i, f in enumerate(ops + [None] + sts):
                if f: ex[32 * m + 34 + 2 * i] = f
        else:
            for i, f in enumerate(ops): ex[98 + i] = f
    FF = [ACC[0] + 4 * i for i in range(8)]
    def last(i):
        if i == 0: s.barrier()
        s_read(s, 3, 8 + 2 * i, FF[2 * i]); s_read(s, 3, 9 + 2 * i, FF[2 * i + 1])
    nb = 112 - o.b6a
    for i in range(4):
        if nb + i < 112: ex[nb + i] = (lambda i=i: last(i))
    g2_run(s, st4, ex)
    s.ts()
    for i in range(4):
        if nb + i >= 112: last(i)
    sts2 = sts
    ops, sts = epi_ops(s, 3, accs[3])
    for i in range(8):
        s.wait(lg=f"sr3_{8 + i}")
        s.e(mfma(accs[3], W1A + 4 * (8 + i), FF[i], False))
        if i < 4: sts2[i]()
    for i in range(8):
        s.e(mfma(accs[3] + 16, W1B + 4 * (8 + i), FF[i], False))
        if 2 <= i < 6: ops[i - 2]()
    s.ts()
    s.e("s_nop 11")
    for f in ops[4:] + sts: f()
    finish(s, 0)


def stream_b(s):
    s.isb = 1
    o = s.opt
    D = o.d1
    jt = 16 // o.n + 4
    dw_fix(s)
    addr_w2(s)
    s.e(f"v_add_u32 v{XD2}, -8192, v{XD0}")
    s.e(f"v_add_u32 v{XD3}, 8192, v{XD1}")
    s.barrier()
    for ks in range(D):
        w_dma(s, ks, 0)
    for ks in range(2):
        w_tr(s, ks, 0)
        x_read(s, 0, ks)
    s.barrier()
    s.ts()
    s.prio(3)
    dq = [('w', k) for k in range(D, 16)]
    dq[o.xb1:o.xb1] = [('x', 2), ('x', 3)]
    dq[o.xb0:o.xb0] = [('x', 0), ('x', 1)]
    dq = [(t, k, p) for t, k in dq for p in range(2)]
    def hook0(ks, pos):
        if pos in (0, 2) or (dq and dq[0][0] == 'x' and o.xbe):
            if dq:
                t, k, p = dq.pop(0)
                if t == 'w':
                    assert ks + 2 < k <= ks + 8
                    w_dma1(s, k, 0, p)
                else: x_dma1(s, k & 1, p, k >> 1)
    g1(s, 0, True, hook0)
    assert not dq
    s.ts()
    def pre():
        x_read(s, 1, 0); x_read(s, 1, 1)
        s.e(f"v_mov_b32 v{WDMA}, v{W2DMA0}")
    wr = act2(s, 0, {(o.b2b, 'S'): lambda: s.barrier(vm="x0"), (o.b2c, 'S'): lambda: s.barrier(vm="x1"), (-2, 'T'): pre},
              (o.pb0, o.pb1), o.tog & 2, 99, (F[0], F[2]))
    s.ts()
    s.prio(3)
    def hook1(ks, pos):
        if pos in (0, 2) and o.wb <= ks < o.wb + 2: wr[2 * (ks - o.wb) + (pos >> 1)]()
        if pos == 3 and ks == o.b3b: s.barrier()
        if pos in (0, 2) and o.b3b < ks <= o.b3b + 8: w_dma1(s, ks - o.b3b + 7, 1, pos >> 1)
    assert o.wb + 2 <= o.b3b + 1
    g1(s, 1, False, hook1)
    s.ts()
    act2(s, 1, {(o.b4b, 'T'): lambda: s.barrier(vm="w1b15", lg="sw1"), (jt + o.b5b, 'T'): lambda: s.barrier(lg="sw2")}, (o.pb2, o.pb3), o.tog & 8)
    s.ts()
    s.barrier(lg="sw3")
    finish(s, 1)


def prefetch_code(s):
    e = s.e
    e(f"s_getpc_b64 s[{SC}:{SC+1}]")
    e("L_pc:")
    e(f"s_mov_b32 s{SC+2}, L_done-L_pc")
    e(f"s_mov_b32 s{SC+3}, 0x20000")
    e(f"s_lshl_b32 s{sT0}, s3, 2")
    e(f"s_add_u32 s{sT0}, s{sT0}, s{sWQ}")
    e(f"s_lshl_b32 s{sT0}, s{sT0}, 6")
    for i in range(10):
        e(f"s_buffer_load_dword s44, s[{SC}:{SC+3}], s{sT0} offset:{2048 * i}")


def prologue(s):
    e = s.e
    o = s.opt
    e("s_cmp_ge_u32 s2, 256")
    e("s_cbranch_scc1 L_done")
    if o.ts or o.probe >= 0:
        e("s_memrealtime s[92:93]")
        e("s_memtime s[90:91]")
    e("s_load_dwordx4 s[4:7], s[0:1], 0")
    e(f"s_load_dwordx2 s[{SD}:{SD+1}], s[0:1], 16")
    e(f"s_load_dwordx2 s[{SW2}:{SW2+1}], s[0:1], 24")
    e(f"s_load_dwordx2 s[{SO}:{SO+1}], s[0:1], 32")
    L_, J, HH, a, b, c, d = range(16, 23)
    e(f"v_readfirstlane_b32 s{sW}, v0")
    e(f"v_and_b32 v{L_}, 63, v0")
    e(f"v_and_b32 v{J}, 31, v0")
    e(f"v_bfe_u32 v{HH}, v0, 5, 1")
    e(f"v_and_b32 v{a}, 3, v0")
    e(f"s_lshr_b32 s{sW}, s{sW}, 6")
    if o.swp: e(f"s_xor_b32 s{sW}, s{sW}, 4")
    e(f"s_and_b32 s{sWQ}, s{sW}, 3")
    e(f"s_bfe_u32 s3, s2, {0x30003 if o.rot else 0}")
    if o.pf:
        e(f"s_cmp_lt_u32 s{sW}, 4")
        e("s_cbranch_scc1 L_e0")
        prefetch_code(s)
        e("L_e0:")
    e(f"s_lshl_b32 s{sROT1}, s3, 15")
    e(f"s_and_b32 s{sXH0}, s3, 4")
    e(f"s_lshl_b32 s{sXH0}, s{sXH0}, 6")
    e(f"s_xor_b32 s{sXH1}, s{sXH0}, 256")
    e(f"s_lshr_b32 s{sT2}, s{sW}, 2")
    e(f"s_lshl_b32 s{sXM0}, s{sT2}, 3")
    e(f"s_add_u32 s{sXM0}, s{sXM0}, s{sWQ}")
    e(f"s_lshl_b32 s{sT1}, s{sXM0}, 2")
    e(f"s_lshl_b32 s{sXM0}, s{sXM0}, 12")
    e(f"s_add_u32 s{sXM0}, s{sXM0}, {X_BASE}")
    e(f"v_lshrrev_b32 v{b}, 2, v{L_}")
    e(f"v_lshlrev_b32 v{d}, 4, v{a}")
    e(f"v_lshl_add_u32 v{WDMA}, v{b}, 10, v{d}")
    e(f"v_lshrrev_b32 v{c}, 4, v{L_}")
    e(f"v_lshl_add_u32 v{d}, v{c}, 6, v{d}")
    e(f"s_lshl_b32 s{sT0}, s3, 1")
    e(f"s_and_b32 s{sT0}, s{sT0}, 6")
    e(f"s_and_b32 s{sRING}, s{sW}, 1")
    e(f"s_add_u32 s{sT0}, s{sT0}, s{sRING}")
    e(f"s_lshl_b32 s{sT0}, s{sT0}, 5")
    e(f"v_xor_b32 v{d}, s{sT0}, v{d}")
    e(f"v_and_b32 v{b}, 3, v{b}")
    e(f"v_add_u32 v{b}, s{sT1}, v{b}")
    e(f"s_and_b32 s{sT0}, s2, 127")
    e(f"s_mul_i32 s{sT0}, s{sT0}, 125")
    e(f"s_add_u32 s{sT0}, s{sT0}, 62")
    e(f"v_sub_u32 v{c}, s{sT0}, v{b}")
    e(f"v_add3_u32 v{b}, v{b}, s{sT0}, 1")
    e(f"v_lshl_add_u32 v{XD0}, v{c}, 9, v{d}")
    e(f"v_xor_b32 v{d}, 16, v{d}")
    e(f"v_lshl_add_u32 v{XD1}, v{b}, 9, v{d}")
    e(f"s_lshl_b32 s{sRING}, s{sRING}, 14")
    e(f"s_and_b32 s{sT0}, s{sW}, 2")
    e(f"s_lshl_b32 s{sT0}, s{sT0}, 15")
    e(f"s_add_u32 s{sRING}, s{sRING}, s{sT0}")
    e(f"s_lshl_b32 s{sRING2}, s{sWQ}, 14")
    e(f"s_add_u32 s{sRING2}, s{sRING2}, {R3_BASE}")
    e(f"s_lshr_b32 s{sT1}, s2, 7")
    e(f"s_mul_i32 s{sT1}, s{sT1}, 8192000")
    e(f"s_lshl_b32 s{sT2}, s{sW}, 6")
    e(f"s_mov_b32 s{SX+2}, 8192000")
    e(f"s_mov_b32 s{SX+3}, 0x20000")
    e(f"s_sub_u32 s{SW1+2}, 262144, s{sT2}")
    e(f"s_mov_b32 s{SW1+3}, 0x20000")
    e("s_waitcnt lgkmcnt(0)")
    s.ts(1); s.ts(3)
    e(f"s_add_u32 s{SX}, s4, s{sT1}")
    e(f"s_addc_u32 s{SX+1}, s5, 0")
    e(f"s_add_u32 s{SW1}, s6, s{sT2}")
    e(f"s_addc_u32 s{SW1+1}, s7, 0")
    e(f"s_cmp_ge_u32 s{sW}, 4")
    e(f"s_cselect_b32 s{sRING}, s{sRING2}, s{sRING}")


def addr_common(s):
    e = s.e
    L_, J, HH, a, b, c, d, Gq, R, CC = range(16, 26)
    e(f"v_mov_b32 v{VC}, {LIT}")
    e(f"v_bfe_u32 v{Gq}, v{L_}, 4, 1")
    e(f"v_bfe_u32 v{R}, v{L_}, 2, 2")
    e(f"v_and_b32 v{CC}, 3, v{L_}")
    e(f"v_lshrrev_b32 v{a}, 2, v{J}")
    e(f"v_xor_b32 v{b}, v{HH}, v{R}")
    e(f"v_lshlrev_b32 v{b}, 4, v{b}")
    e(f"v_lshl_add_u32 v{b}, v{CC}, 6, v{b}")
    e(f"v_add_u32 v{a}, {X_BASE >> 11}, v{a}")
    e(f"v_lshl_add_u32 v{XRE}, v{a}, 11, v{b}")
    e(f"v_xor_b32 v{XRO}, 32, v{XRE}")
    e(f"v_lshl_add_u32 v{a}, v{HH}, 3, v{R}")
    e(f"v_lshl_add_u32 v{a}, v{a}, 1, v{Gq}")
    e(f"v_lshl_add_u32 v{a}, v{a}, 2, v{CC}")
    e(f"v_lshl_add_u32 v{WTR}, v{a}, 3, s{sRING}")
    e(f"s_lshl_b32 s{sT0}, s{sW}, 1")
    e(f"s_xor_b32 s{sT0}, s{sT0}, s3")
    e(f"s_lshl_b32 s{sT0}, s{sT0}, 4")
    e(f"v_xor_b32 v{a}, s{sT0}, v{J}")
    e(f"v_bfe_u32 v{c}, v{J}, 1, 2")
    e(f"v_lshlrev_b32 v{d}, 1, v{HH}")
    e(f"v_xor_b32 v{c}, v{c}, v{d}")
    e(f"v_lshl_add_u32 v{a}, v{a}, 2, v{c}")
    e(f"v_lshlrev_b32 v{SWR}, 4, v{a}")
    e(f"v_xor_b32 v{TMP}, 16, v{SWR}")
    e("s_mov_b32 vcc_lo, 0")
    e("s_mov_b32 vcc_hi, -1")


def addr_w2(s):
    e = s.e
    L_, J, HH, a, b, c, d, Gq, R, CC, t = range(16, 27)
    e(f"s_lshl_b32 s{sROT2}, s3, 13")
    e(f"s_lshl_b32 s{sT2}, s{sWQ}, 7")
    e(f"s_add_u32 s{SW2}, s{SW2}, s{sT2}")
    e(f"s_addc_u32 s{SW2+1}, s{SW2+1}, 0")
    e(f"s_sub_u32 s{SW2+2}, 131072, s{sT2}")
    e(f"s_mov_b32 s{SW2+3}, 0x20000")
    e(f"v_lshrrev_b32 v{a}, 2, v{J}")
    e(f"v_lshl_add_u32 v{a}, v{a}, 3, v{HH}")
    e(f"v_lshl_add_u32 v{a}, v{a}, 2, v{CC}")
    e(f"v_lshlrev_b32 v{W2DMA0}, 4, v{a}")


def addr_a(s):
    e = s.e
    L_, J, HH, a, b, c, d, Gq, R, CC, t = range(16, 27)
    addr_w2(s)
    e(f"s_mul_i32 s{sT1}, s2, 64000")
    e(f"s_add_u32 s{SO}, s{SO}, s{sT1}")
    e(f"s_addc_u32 s{SO+1}, s{SO+1}, 0")
    e(f"s_mov_b32 s{SO+2}, 64000")
    e(f"s_mov_b32 s{SO+3}, 0x20000")
    e(f"v_lshl_add_u32 v{a}, v{HH}, 2, v{R}")
    e(f"v_lshrrev_b32 v{b}, 1, v{CC}")
    e(f"v_lshl_add_u32 v{b}, v{Gq}, 1, v{b}")
    e(f"v_and_b32 v{c}, 1, v{CC}")
    e(f"v_lshl_add_u32 v{t}, v{a}, 1, v{c}")
    e(f"v_lshl_add_u32 v{t}, v{t}, 2, v{b}")
    e(f"v_lshl_add_u32 v{W2TR0}, v{t}, 3, s{sRING2}")
    e(f"v_lshrrev_b32 v{t}, 1, v{a}")
    e(f"v_xor_b32 v{b}, v{b}, v{t}")
    e(f"v_lshl_add_u32 v{a}, v{a}, 2, v{b}")
    e(f"v_lshl_add_u32 v{a}, v{a}, 1, v{c}")
    e(f"v_lshlrev_b32 v{SRD_}, 3, v{a}")
    e(f"v_sub_u32 v{a}, 1, v{Gq}")
    e(f"v_mul_u32_u24 v{a}, 15, v{a}")
    e(f"v_xor_b32 v{a}, v{a}, v{J}")
    e(f"v_and_b32 v{c}, 7, v{a}")
    e(f"v_xor_b32 v{c}, v{c}, v{d}")
    e(f"v_lshl_add_u32 v{a}, v{a}, 3, v{c}")
    e(f"v_lshl_add_u32 v{OWR}, v{a}, 4, s{sRING2}")
    e(f"v_lshrrev_b32 v{a}, 3, v{L_}")
    e(f"v_xor_b32 v{b}, v{a}, v{L_}")
    e(f"v_lshl_add_u32 v{ORD}, v{b}, 4, s{sRING2}")
    e(f"v_and_b32 v{b}, 7, v{L_}")
    e(f"v_lshl_add_u32 v{b}, v{a}, 5, v{b}")
    e(f"v_lshl_add_u32 v{GST}, v{b}, 4, s{sT2}")


TRANS = ("v_exp_f32", "v_rcp_f32")


def check(lines):
    ins = [l for x in lines for l in x.split("\n") if l and not l.endswith(":") and not l.startswith(".")]
    for p, q in zip(ins, ins[1:]):
        if p.startswith(TRANS) and q.startswith("v_") and not q.startswith(TRANS):
            d = re.match(r"\S+ (v\d+)", p).group(1)
            assert not re.search(r"\b" + d + r"\b", q), (p, q)


def flat(L):
    return [l for x in L for l in x.split("\n")]


def isize(l):
    if l.endswith(":") or l.startswith("."): return 0
    op = l.split()[0]
    if op.startswith(("v_mfma", "ds_", "buffer_", "v_cvt_pk", "v_fmaak", "v_lshl_add", "v_add3", "v_bfe", "s_load", "s_buffer", "s_mem")): return 8
    lits = re.findall(r"(?<![\w\[:(])(-?(?:0x[0-9a-f]+|\d+))(?![\w\].:)])", l.split(None, 1)[1] if " " in l else "")
    if op in ("s_nop", "s_setprio", "s_waitcnt"): return 4
    for x in lits:
        v = int(x, 0)
        if v > 64 or v < -16: return 8
    return 4


def add_pads(la, lb, opt):
    pos = []
    for si, L in enumerate((la, lb)):
        acc = 0; nxt = opt.hop0
        for i, l in enumerate(L):
            acc += isize(l)
            if acc >= nxt and l.startswith("v_") and "exec" not in "".join(L[max(0, i - 4):i + 4]):
                pos.append((acc + si * opt.hopb, si, i)); nxt = acc + opt.hop
    pos.sort()
    n = len(pos); c = opt.nch
    ins = {}
    for k, (_, si, i) in enumerate(pos):
        tgt = f"L_pad{k + c}" if k + c < n else "L_padend"
        ins[(si, i)] = [f"L_pad{k}:", f"s_cbranch_execz {tgt}"]
    res = []
    for si, L in enumerate((la, lb)):
        o = []
        for i, l in enumerate(L):
            o.append(l); o += ins.get((si, i), [])
        res.append(o)
    return res[0], res[1], ["L_padend:", "s_mov_b64 exec, -1", "s_branch L_back"]


def build(opt):
    pro = Stream(opt)
    prologue(pro)
    early(pro)
    sa = Stream(opt); sa.nts = pro.nts; sa.vm = list(pro.vm)
    sb = Stream(opt); sb.nts = pro.nts; sb.vm = ["dw"] * 3
    stream_a(sa)
    stream_b(sb)
    assert sa.L.count("s_barrier") == sb.L.count("s_barrier")
    check(sa.L); check(sb.L)
    ref = open(f"cdna_kernels/{NAME}.s.ref").read().split("\n")
    head = [l for l in ref if l.startswith(";") and "@launch" not in l]
    out = head + ["; @launch grid=(256,1,1) block=(512,1,1) lds=163840",
                  '.amdgcn_target "amdgcn-amd-amdhsa--gfx950"', ".text", f".globl {NAME}_kernel", ".p2align 8",
                  f".type {NAME}_kernel,@function", f"{NAME}_kernel:"]
    la, lb = flat(sa.L), flat(sb.L)
    tail = []
    if opt.hop:
        la, lb, tail = add_pads(la, lb, opt)
    out += pro.L + la + [".p2align 6", "L_grp_b:"] + lb + tail + ["L_done:", "s_endpgm"]
    out += ['.section .rodata,"a"', ".p2align 6", f".amdhsa_kernel {NAME}_kernel",
            "  .amdhsa_next_free_vgpr 256", "  .amdhsa_next_free_sgpr 102", "  .amdhsa_accum_offset 256",
            "  .amdhsa_group_segment_fixed_size 0", "  .amdhsa_kernarg_size 56", "  .amdhsa_user_sgpr_count 2",
            "  .amdhsa_user_sgpr_kernarg_segment_ptr 1", "  .amdhsa_system_sgpr_workgroup_id_x 1",
            ".end_amdhsa_kernel", ""]
    return "\n".join(out)


if __name__ == "__main__":
    ap = argparse.ArgumentParser()
    ap.add_argument("-o", default=f"cdna_kernels/{NAME}.s")
    for k, v in dict(ts=0, probe=-1, tl=0, xnt=1, ont=2, ont3=2, rot=1, pf=4, a0=2, d0=6, d1=6, b0b=9, n=2, hack=0, swp=0, w2p=1, hop=0,
                     b2a=-1, b2b=1, b2c=7, b3a=2, b3b=2, b4a=14, b4b=0, b5b=0, b6a=4, xb0=0, xb1=10, xbe=1, wb=0, lag=5,
                     tog=0, pa0=0, pa1=1, pa2=0, pa3=1, pb0=0, pb1=1, pb2=0, pb3=1).items():
        ap.add_argument("--" + k, type=int, default=v)
    opt = ap.parse_args()
    open(opt.o, "w").write(build(opt))
```

```python
import sys, argparse, re

NAME = "standalone__conformer_conv_module__speech"
LIT = "0xbfb8aa3b"

S_BASE, X_BASE, R3_BASE = 0, 32768, 98304

XRE, XRO, SWR, C0, C1, DWP, DWC, DWN, VC, WDMA, WTR, SRD_, OWR, ORD, GST, TMP = range(16)
F = [16, 20, 24, 28]
G = 32
XF = [32, 36, 40, 44, 48, 52]
XD0, XD1, W2DMA0, W2TR0, XD2, XD3 = 56, 57, 58, 59, 60, 61
ACC = [64, 96]
W1A, W1B = 128, 192

SX, SW1, SW2, SO, SD = 8, 12, 16, 20, 24
sW, sWQ, sROT1, sROT2, sXH0, sXH1, sXM0, sRING, sRING2, sT0, sT1, sT2 = range(28, 40)
SC = 40
sXB = 46
sTS = 48


class Stream:
    def __init__(self, opt):
        self.L = []; self.vm = []; self.lg = []; self.opt = opt; self.nts = 0

    def e(self, s):
        self.L.append(s)

    def vmop(self, s, tag):
        self.L.append(s); self.vm.append(tag)

    def lgop(self, s, tag):
        self.L.append(s); self.lg.append(tag)

    def _cnt(self, q, tag):
        idx = [i for i, t in enumerate(q) if t == tag]
        if not idx:
            return None
        n = len(q) - 1 - idx[-1]
        del q[:idx[-1] + 1]
        return n

    def wait(self, vm=None, lg=None):
        parts = []
        if vm is not None:
            n = self._cnt(self.vm, vm)
            if n is not None:
                assert n <= 63
                parts.append(f"vmcnt({n})")
        if lg is not None:
            n = self._cnt(self.lg, lg)
            if n is not None:
                parts.append(f"lgkmcnt({min(n, 15)})")
        if parts:
            self.e("s_waitcnt " + " ".join(parts))

    def ts(self, lvl=0):
        if lvl != self.opt.tl and lvl != -1:
            return
        if self.opt.probe >= 0:
            if self.nts == self.opt.probe:
                self.e("s_memrealtime s[94:95]")
            self.nts += 1
        if self.opt.ts:
            op = "s_memtime" if self.opt.ts == 1 else "s_memrealtime"
            assert self.nts < 21
            self.e(f"{op} s[{sTS + 2 * self.nts}:{sTS + 2 * self.nts + 1}]")
            self.nts += 1

    def barrier(self, vm=None, lg=None):
        self.wait(vm=vm, lg=lg)
        self.ts(2)
        self.e("s_barrier")
        self.ts(2)

    def prio(self, p):
        self.e(f"s_setprio {p}")


def vr(a, n):
    return f"v[{a}:{a + n - 1}]"


def mfma(d, a, b, first):
    c = "0" if first else vr(d, 16)
    return f"v_mfma_f32_32x32x16_bf16 {vr(d, 16)}, {vr(a, 4)}, {vr(b, 4)}, {c}"


def x_dma1(s, mm, h, half):
    nt = "nt " if s.opt.xnt else ""
    r = (XD0, XD1, XD2, XD3)[2 * mm + h]
    s.e(f"s_add_u32 m0, s{sXM0}, {mm * 16384 + h * 2048 + half * 1024}")
    s.e("s_nop 0")
    s.vmop(f"buffer_load_dwordx4 v{r}, s[{SX}:{SX+3}], s{sXH0 + half} offen {nt}lds", f"x{half}")


def w_dma1(s, ks, which, part):
    wnt = ["", "nt ", "sc1 ", "sc0 sc1 "][s.opt.wnt]
    if which == 1 and s.opt.hack & 2: return
    slot = (ks & 7) * 2
    ring, rot, step, srd, off = ((sRING, sROT1, 16384, SW1, 512), (sRING2, sROT2, 8192, SW2, 64))[which]
    if which == 1 and s.opt.hack & 4: srd = SW1
    if which == 1 and s.opt.w2p:
        s.e(f"s_add_u32 m0, s{ring}, {(slot + part) * 1024}")
        s.e(f"s_xor_b32 s{sT0}, s{rot}, {ks * step + part * 4096}")
        s.vmop(f"buffer_load_dwordx4 v{WDMA}, s[{srd}:{srd+3}], s{sT0} offen {wnt}lds", f"w{which}{'ab'[part]}{ks}")
    elif part == 0:
        s.e(f"s_add_u32 m0, s{ring}, {slot * 1024}")
        s.e(f"s_xor_b32 s{sT0}, s{rot}, {ks * step}")
        s.vmop(f"buffer_load_dwordx4 v{WDMA}, s[{srd}:{srd+3}], s{sT0} offen {wnt}lds", f"w{which}a{ks}")
        s.e(f"s_add_u32 m0, s{ring}, {slot * 1024 + 1024 - off}")
    else:
        if s.L[-1].startswith("s_add_u32 m0"):
            s.e("s_nop 0")
        s.vmop(f"buffer_load_dwordx4 v{WDMA}, s[{srd}:{srd+3}], s{sT0} offen offset:{off} {wnt}lds", f"w{which}b{ks}")


def w_dma(s, ks, which):
    w_dma1(s, ks, which, 0)
    w_dma1(s, ks, which, 1)


def w_tr1(s, ks, which, part):
    slot = (ks & 7) * 2
    if not (which == 1 and s.opt.hack & 1): s.wait(vm=f"w{which}{'ab'[part]}{ks}")
    base = (W1A, W1B)[part]
    if which == 1 and s.opt.hack & 8: return
    if which == 1 and s.opt.w2p:
        for ct in range(2):
            s.lgop(f"ds_read_b64_tr_b16 {vr((W1A, W1B)[ct] + 4 * ks + 2 * part, 2)}, v{WTR} offset:{(slot + part) * 1024 + ct * 512}", f"w{which}r{ks}")
        return
    for rd in range(2):
        s.lgop(f"ds_read_b64_tr_b16 {vr(base + 4 * ks + 2 * rd, 2)}, v{WTR} offset:{(slot + part) * 1024 + rd * (512 if which else 256)}", f"w{which}r{ks}")


def w_tr(s, ks, which):
    w_tr1(s, ks, which, 0)
    w_tr1(s, ks, which, 1)


def x_read1(s, mp, ks, mm):
    if s.opt.hack & 32 and mp == 1: return
    a = XRO if ks & 1 else XRE
    s.lgop(f"ds_read_b128 {vr(XF[(ks % 3) * 2 + mm], 4)}, v{a} offset:{(2 * mp + mm) * 16384 + (ks >> 1) * 256}", f"xr{mp}_{ks}_{mm}")


def x_read(s, mp, ks):
    for mm in range(2):
        x_read1(s, mp, ks, mm)


def s_read(s, m, ks, f):
    for rd in range(2):
        s.lgop(f"ds_read_b64_tr_b16 {vr(f + 2 * rd, 2)}, v{SRD_} offset:{S_BASE + m * 16384 + ks * 1024 + rd * 512}", f"sr{m}_{ks}")


def g1(s, mp, stream, hook):
    for ks in range(16):
        for mm in range(2):
            f = XF[(ks % 3) * 2 + mm]
            s.wait(lg=f"xr{mp}_{ks}_{1 if stream else mm}")
            if mm == 0 and ks % 4 == 0: s.ts(1)
            s.e(mfma(ACC[mm] + 16, f, W1B + 4 * ks, ks == 0))
            hook(ks, 2 * mm)
            s.e(mfma(ACC[mm], f, W1A + 4 * ks, ks == 0))
            if ks + 2 < 16:
                if stream:
                    w_tr1(s, ks + 2, 0, mm)
                x_read1(s, mp, ks + 2, mm)
            hook(ks, 2 * mm + 1)


def act2(s, mp, hooks, base, toggle, wfrom=0, pk=None):
    n = s.opt.n
    ng = 32 // n
    a_in = lambda u: ACC[u >> 4] + (u & 15)
    b = lambda u: ACC[u >> 4] + 16 + (u & 15)
    h = lambda u: C0 if u in (-2, 30) else C1 if u in (-1, 31) else a_in(u)
    hooks = dict(hooks)
    cur = [None]
    pend = []
    pk = pk or (ACC[0] + 16, ACC[1] + 16)
    def setp(p):
        if cur[0] != p:
            s.prio(p); cur[0] = p
    hooks = {((k if k >= 0 else ng + 4 + k), t): f for (k, t), f in hooks.items()}
    for j in range(ng + 4):
        e = lambda k: [(j - k) * n + i for i in range(n)] if 0 <= j - k < ng else []
        S = []; T = []
        S += [f"v_mul_f32 v{b(u)}, v{VC}, v{b(u)}" for u in e(0)]
        S += [f"v_mul_f32 v{h(u)}, v{a_in(u)}, v{b(u)}" for u in e(2)]
        if mp == 0 and j == 2:
            S += [f"v_mov_b32 v{C0}, v{a_in(0)}", f"v_mov_b32 v{C1}, v{a_in(0)}"]
        S += [f"v_add_f32 v{b(u)}, 1.0, v{b(u)}" for u in e(1)]
        if mp == 0 and j == 2:
            S += [f"v_permlane32_swap_b32 v{C0}, v{C1}", f"v_cndmask_b32 v{C1}, v{C1}, v{C0}, vcc"]
        S += [f"v_mul_f32 v{b(u)}, v{DWN}, v{h(u)}" for u in e(2)]
        S += [f"v_fmac_f32 v{b(u)}, v{DWC}, v{h(u - 1)}" for u in e(2)]
        S += [f"v_fmac_f32 v{b(u)}, v{DWP}, v{h(u - 2)}" for u in e(2)]
        S += [f"v_fmaak_f32 v{h(u - 2)}, v{VC}, v{h(u - 2)}, {LIT}" for u in e(3)]
        S += [f"v_mul_f32 v{b(u)}, v{b(u)}, v{h(u - 2)}" for u in e(4)]
        T += [f"v_exp_f32 v{b(u)}, v{b(u)}" for u in e(0)]
        T += [f"v_rcp_f32 v{b(u)}, v{b(u)}" for u in e(1)]
        T += [f"v_exp_f32 v{h(u - 2)}, v{b(u)}" for u in e(2)]
        T += [f"v_rcp_f32 v{h(u - 2)}, v{h(u - 2)}" for u in e(3)]
        T += [f"v_cvt_pk_bf16_f32 v{pk[u >> 4] + ((u & 15) >> 1)}, v{b(u)}, v{b(u + 1)}" for u in e(4)[::2]]
        bp = base[0] if j < ng // 2 + 2 else base[1]
        setp(bp)
        if (j, 'S') in hooks: hooks.pop((j, 'S'))()
        if s.opt.hack & 16 and getattr(s, 'isb', 0) and mp == 0: S = []; T = []
        for t in S: s.e(t)
        if toggle: setp(bp + 1)
        if (j, 'T') in hooks: hooks.pop((j, 'T'))()
        for t in T: s.e(t)
        done = (j - 3) * n
        if done > 0 and done % 8 == 0:
            mm = (done - 8) >> 4; q = ((done - 8) >> 3) & 1
            pend.append((f"ds_write_b128 v{TMP if q else SWR}, {vr(pk[mm] + 4 * q, 4)} offset:{S_BASE + (2 * mp + mm) * 16384}", f"sw{2 * mp + mm}"))
        if j >= (wfrom if wfrom >= 0 else ng + 4 + wfrom):
            while pend: s.lgop(*pend.pop(0))
    assert not hooks, hooks
    return [(lambda w=w: s.lgop(*w)) for w in pend]


OW = [OWR, XRE, XRO, WDMA]


def epi_ops(s, m, acc):
    nt = ["", " nt", " sc1", " sc0 sc1", " sc0 sc1 nt", " sc1 nt"][s.opt.ont if m < 3 else s.opt.ont3]
    ops = []
    for ct in range(2):
        for q in range(2):
            d = acc + 16 * ct + 4 * q
            def cv(ct=ct, q=q, d=d, lo=0, hi=4):
                for i in range(lo, hi):
                    s.e(f"v_cvt_pk_bf16_f32 v{d + i}, v{acc + 16 * ct + 8 * q + 2 * i}, v{acc + 16 * ct + 8 * q + 2 * i + 1}")
            def wr(ct=ct, q=q, d=d):
                s.lgop(f"ds_write_b128 v{OW[2 * ct + q]}, {vr(d, 4)}", f"ow{m}")
            ops += [cv, wr]
    dst = [acc + 8, acc + 12, acc + 24, acc + 28]
    def rd(lo):
        for i in range(lo, lo + 2):
            s.lgop(f"ds_read_b128 {vr(dst[i], 4)}, v{ORD} offset:{i * 1024}", f"or{m}_{i}")
    ops.append(lambda: rd(0))
    ops.append(lambda: rd(2))
    def st(i):
        so = (48 - 16 * m + 8 * i) * 512 if i < 2 else (62 + 16 * m + 8 * (i - 2)) * 512
        s.e(f"s_movk_i32 s{sT1}, {so}" if so < 32768 else f"s_mov_b32 s{sT1}, {so}")
        if m == 0 and i == 1: s.e("s_mov_b32 exec_hi, 0x00ffffff")
        if m == 0 and i == 2: s.e("s_mov_b32 exec_lo, 0xffffff00")
        s.wait(lg=f"or{m}_{i}")
        s.vmop(f"buffer_store_dwordx4 {vr(dst[i], 4)}, v{GST}, s[{SO}:{SO+3}], s{sT1} offen{nt}", f"st{m}")
        if m == 0 and i in (1, 2): s.e("s_mov_b64 exec, -1")
    sts = [(lambda i=i: st(i)) for i in range(4)]
    return ops, sts


def g2_run(s, steps, extra):
    extra = dict(extra)
    n = 0
    for i, (m, ks, acc, pre) in enumerate(steps):
        s.wait(lg=f"sr{m}_{ks}")
        for ct, w in ((0, W1A), (1, W1B)):
            s.e(mfma(acc + 16 * ct, w + 4 * ks, F[i % 4], ks == 0))
            if ct == 1 and i + 4 < len(steps):
                m2, k2, _, pre2 = steps[i + 4]
                if pre2: pre2()
                s_read(s, m2, k2, F[i % 4])
            if n in extra: extra.pop(n)()
            n += 1
    assert not extra, extra


def g2_prefetch(s, steps):
    for i in range(4):
        m, ks, _, pre = steps[i]
        assert pre is None
        s_read(s, m, ks, F[i])


def finish(s, grp):
    if s.opt.probe >= 0:
        s.e("s_waitcnt vmcnt(0)")
        s.ts(-1)
        if grp == 1:
            s.e("s_endpgm")
            return
        s.e("s_memrealtime s[96:97]\ns_waitcnt lgkmcnt(0)\ns_sub_u32 s94, s94, s92\ns_lshl_b32 s94, s94, 2")
        s.e(f"L_spin{grp}:")
        s.e("s_memrealtime s[98:99]\ns_waitcnt lgkmcnt(0)\ns_sub_u32 s98, s98, s96\ns_cmp_lt_u32 s98, s94")
        s.e(f"s_cbranch_scc1 L_spin{grp}")
    if s.opt.ts:
        s.e("s_waitcnt vmcnt(0)")
        s.ts(-1)
        s.e("s_memrealtime s[94:95]")
        s.e("s_load_dwordx2 s[96:97], s[0:1], 48")
        s.e("s_waitcnt lgkmcnt(0)")
        s.e("s_mov_b32 s98, 0x100000\ns_mov_b32 s99, 0x20000")
        s.e(f"s_lshl_b32 s3, s2, 3\ns_add_u32 s3, s3, s{sW}\ns_lshl_b32 s3, s3, 7\nv_mov_b32 v1, s3")
        s.e("v_mov_b32 v3, s92\nbuffer_store_dword v3, v1, s[96:99], 0 offen")
        s.e("v_mov_b32 v3, s94\nbuffer_store_dword v3, v1, s[96:99], 0 offen offset:4")
        for m in range(s.nts):
            s.e(f"s_sub_u32 s4, s{sTS + 2 * m}, s{90 if s.opt.ts == 1 else 92}\nv_mov_b32 v3, s4\nbuffer_store_dword v3, v1, s[96:99], 0 offen offset:{8 + 4 * m}")
    s.e("s_endpgm")


def dw_load(s):
    J, HH = 17, 18
    e = s.e
    e(f"s_lshl_b32 s{sT2}, s{sW}, 6")
    e(f"v_lshl_add_u32 v{DWC}, v{J}, 1, s{sT2}")
    e(f"v_lshl_add_u32 v{DWN}, v{HH}, 10, v{DWC}")
    e(f"v_xor_b32 v{DWP}, 1024, v{DWN}")
    e(f"s_mov_b32 s{SD+2}, 1536")
    e(f"s_mov_b32 s{SD+3}, 0x20000")
    s.vmop(f"buffer_load_ushort v{DWC}, v{DWC}, s[{SD}:{SD+3}], 0 offen offset:512", "dw")
    s.vmop(f"buffer_load_ushort v{DWN}, v{DWN}, s[{SD}:{SD+3}], 0 offen", "dw")
    s.vmop(f"buffer_load_ushort v{DWP}, v{DWP}, s[{SD}:{SD+3}], 0 offen", "dw")


def dw_fix(s):
    s.wait(vm="dw")
    for r in (DWP, DWC, DWN):
        s.e(f"v_lshlrev_b32 v{r}, 16, v{r}")
    for r in (DWP, DWC, DWN):
        s.e(f"v_mul_f32 v{r}, v{VC}, v{r}")


def early(s):
    o = s.opt
    e = s.e
    L_, J, HH, a, b, c, d = range(16, 23)
    e("s_cmp_ge_u32 s2, 256")
    e("s_cbranch_scc1 L_done")
    if o.ts or o.probe >= 0:
        e("s_memrealtime s[92:93]")
        e("s_memtime s[90:91]")
    e("s_load_dwordx4 s[4:7], s[0:1], 0")
    e(f"v_readfirstlane_b32 s{sW}, v0")
    e(f"v_and_b32 v{a}, 3, v0")
    e(f"v_bfe_u32 v{c}, v0, 4, 2")
    e(f"v_bfe_u32 v{b}, v0, 2, 2")
    e(f"s_lshr_b32 s3, s2, 3")
    e(f"s_and_b32 s3, s3, {7 if o.rot else 0}")
    e(f"s_lshr_b32 s{sW}, s{sW}, 6")
    e(f"s_and_b32 s{sWQ}, s{sW}, 3")
    e(f"s_mov_b32 s{SX+3}, 0x20000")
    if o.pf & 4:
        e(f"s_cmp_lt_u32 s{sW}, 4")
        e("s_cbranch_scc1 L_e0")
        prefetch_code(s)
        e("L_e0:")
    e(f"s_and_b32 s{sT1}, s{sW}, 4")
    e(f"s_add_u32 s{sT1}, s{sT1}, s{sW}")
    e(f"s_add_u32 s{sXM0}, s{sT1}, {X_BASE >> 12}")
    e(f"s_lshl_b32 s{sXM0}, s{sXM0}, 12")
    e(f"v_lshl_add_u32 v{b}, s{sT1}, 2, v{b}")
    e(f"v_lshl_add_u32 v{d}, v{c}, 2, v{a}")
    e(f"s_lshl_b32 s{sT0}, s3, 1")
    e(f"s_and_b32 s{sXH0}, s{sT0}, 8")
    e(f"s_and_b32 s{sT0}, s{sT0}, 6")
    e(f"s_and_b32 s{sRING}, s{sW}, 1")
    e(f"s_add_u32 s{sT0}, s{sT0}, s{sRING}")
    e(f"s_lshl_b32 s{sT0}, s{sT0}, 1")
    e(f"v_xor_b32 v{d}, s{sT0}, v{d}")
    e(f"s_xor_b32 s{sXH1}, s{sXH0}, 8")
    e(f"s_lshl_b32 s{sXH0}, s{sXH0}, 5")
    e(f"s_lshl_b32 s{sXH1}, s{sXH1}, 5")
    e(f"s_lshr_b32 s{sT1}, s2, 7")
    e(f"s_lshl_b32 s{sT0}, s{sT1}, 7")
    e(f"s_sub_u32 s{sT0}, s2, s{sT0}")
    e(f"s_mulk_i32 s{sT0}, 125")
    e(f"s_add_u32 s{sT0}, s{sT0}, 62")
    e(f"v_sub_u32 v{c}, s{sT0}, v{b}")
    e(f"v_add3_u32 v{b}, v{b}, s{sT0}, 1")
    e(f"v_lshl_add_u32 v{XD0}, v{c}, 5, v{d}")
    e(f"v_xor_b32 v{d}, 1, v{d}")
    e(f"v_lshl_add_u32 v{XD1}, v{b}, 5, v{d}")
    e(f"v_lshlrev_b32 v{XD0}, 4, v{XD0}")
    e(f"v_lshlrev_b32 v{XD1}, 4, v{XD1}")
    e(f"s_mov_b32 s{SX+2}, 8192000")
    e(f"s_mul_i32 s{sXB}, s{sT1}, s{SX+2}")
    e(f"v_add_u32 v{XD2}, -8192, v{XD0}")
    e(f"v_add_u32 v{XD3}, 8192, v{XD1}")
    e(f"s_cmp_ge_u32 s{sW}, 4")
    e("s_cbranch_scc1 L_e1")
    e(f"s_mov_b32 m0, s{sXM0}")
    e("s_waitcnt lgkmcnt(0)")
    s.ts(1); s.ts(3)
    e(f"s_add_u32 s{SX}, s4, s{sXB}")
    e(f"s_addc_u32 s{SX+1}, s5, 0")
    nt = "nt " if o.xnt else ""
    cur = 0
    for i in range(o.xn):
        mm, h, half = (i >> 1) & 1, i & 1, i >> 2
        if o.xn == 8 and o.xo: mm, h, half = i >> 2, (i >> 1) & 1, i & 1
        pos = mm * 16384 + h * 2048 + half * 1024
        if i:
            e(f"s_addk_i32 m0, {pos - cur}")
            e("s_nop 0")
        cur = pos
        s.vmop(f"buffer_load_dwordx4 v{(XD0, XD1, XD2, XD3)[2 * mm + h]}, s[{SX}:{SX+3}], s{sXH0 + half} offen {nt}lds", f"x{half}")
    s.ts(3)
    e("L_e1:")
    e(f"s_load_dwordx2 s[{SD}:{SD+1}], s[0:1], 16")
    e(f"s_load_dwordx2 s[{SW2}:{SW2+1}], s[0:1], 24")
    e(f"s_load_dwordx2 s[{SO}:{SO+1}], s[0:1], 32")
    e(f"v_and_b32 v{L_}, 63, v0")
    e(f"v_and_b32 v{J}, 31, v0")
    e(f"v_bfe_u32 v{HH}, v0, 5, 1")
    e(f"v_lshrrev_b32 v{b}, 2, v{L_}")
    e(f"v_lshl_add_u32 v{b}, v{b}, 6, v{a}")
    e(f"v_lshlrev_b32 v{WDMA}, 4, v{b}")
    e(f"s_lshl_b32 s{sROT1}, s3, 15")
    e(f"s_and_b32 s{sT0}, s{sW}, 2")
    e(f"s_lshl_b32 s{sT0}, s{sT0}, 1")
    e(f"s_add_u32 s{sRING}, s{sRING}, s{sT0}")
    e(f"s_add_u32 s{sRING2}, s{sWQ}, {R3_BASE >> 14}")
    e(f"s_cmp_ge_u32 s{sW}, 4")
    e(f"s_cselect_b32 s{sRING}, s{sRING2}, s{sRING}")
    e(f"s_lshl_b32 s{sRING}, s{sRING}, 14")
    e(f"s_lshl_b32 s{sRING2}, s{sRING2}, 14")
    e(f"s_lshl_b32 s{sT2}, s{sW}, 6")
    e(f"s_sub_u32 s{SW1+2}, 262144, s{sT2}")
    e(f"s_mov_b32 s{SW1+3}, s{SX+3}")
    if o.a0:
        e(f"s_cmp_ge_u32 s{sW}, 4")
        e("s_cbranch_scc1 L_e4")
        e(f"s_add_u32 s{SW1}, s6, s{sT2}")
        e(f"s_addc_u32 s{SW1+1}, s7, 0")
        for ks in range(o.a0):
            w_dma(s, ks, 0)
        e("L_e4:")
    addr_common(s)
    e("s_waitcnt lgkmcnt(0)")
    e(f"s_add_u32 s{SX}, s4, s{sXB}")
    e(f"s_addc_u32 s{SX+1}, s5, 0")
    e(f"s_add_u32 s{SW1}, s6, s{sT2}")
    e(f"s_addc_u32 s{SW1+1}, s7, 0")
    dw_load(s)
    s.ts(3)
    e(f"s_cmp_ge_u32 s{sW}, 4")
    e("s_cbranch_scc1 L_e3")
    for ks in range(o.a0, o.d0):
        w_dma(s, ks, 0)
        i = o.xn + ks - o.xs
        if o.xn <= i < 8: x_dma1(s, (i >> 1) & 1, i & 1, 1)
    s.ts(1)
    s.wait(vm="x0" if o.xn < 8 else "x1")
    if o.pf & 2:
        e("s_branch L_e2")
        e("L_e3:")
        prefetch_w(s)
    else:
        e("L_e3:")
    e("L_e2:")
    s.ts(3)
    s.barrier()
    s.ts(); s.ts(3)
    e(f"s_cmp_ge_u32 s{sW}, 4")
    e("s_cbranch_scc1 L_grp_b")


def stream_a(s):
    o = s.opt
    D = max(o.d0, 6)
    wq = [(k, p) for k in range(o.d0, 16) for p in range(2)]
    s.prio(3)
    for ks in range(2):
        w_tr(s, ks, 0)
        x_read(s, 0, ks)
    late = Stream(o)
    addr_a(late)
    late = late.L
    def hook0(ks, pos):
        if pos in (0, 2) and wq:
            k, p = wq.pop(0); w_dma1(s, k, 0, p)
        if pos == 3:
            i = o.xn + ks + o.d0 - o.xs
            if o.xn <= i < 8: x_dma1(s, (i >> 1) & 1, i & 1, 1)
        if pos == 3 and o.dx <= ks < o.dx + D - o.d0:
            for _ in range(2):
                k, p = wq.pop(0); w_dma1(s, k, 0, p)
        if pos == 0 and ks == 6 and o.xn < 8: s.barrier(vm="x1")
        if pos == 2 and ks == o.b0b: s.barrier()
        if pos == 0 and ks == 16 - D: dw_fix(s)
        if ks > 16 - D and pos in (0, 2):
            for _ in range(5):
                if late: s.e(late.pop(0))
        if pos == 3 and ks == 15:
            assert not late
            s.e(f"v_mov_b32 v{WDMA}, v{W2DMA0}")
            s.e(f"v_mov_b32 v{WTR}, v{W2TR0}")
    g1(s, 0, True, hook0)
    s.ts()
    def pre2():
        s.barrier()
        x_read(s, 1, 0); x_read(s, 1, 1)
    wr = act2(s, 0, {(o.b1a, 'T'): lambda: s.barrier(), (o.b2a, 'S'): pre2}, (o.pa0, o.pa1), o.tog & 1, 99, (F[0], F[2]))
    s.ts()
    s.prio(3)
    dq = [(k, p) for k in range(8) for p in range(2)]
    tq = list(dq)
    def hook1(ks, pos):
        n = 4 * ks + pos
        if n == 24: s.barrier()
        if 25 <= n <= 28: wr[n - 25]()
        if n >= 30 and pos in (0, 2) and dq:
            k, p = dq.pop(0); w_dma1(s, k, 1, p)
        if n >= 30 + 4 * o.lag and pos in (1, 3):
            k, p = tq.pop(0); w_tr1(s, k, 1, p)
    g1(s, 1, False, hook1)
    assert not dq
    s.ts()
    accs = [G, ACC[0], ACC[1], G]
    lo = lambda m, f=None: [(m, ks, accs[m], f if ks == 0 else None) for ks in range(8)]
    hi = lambda m, f=None: [(m, ks, accs[m], f if ks == 8 else None) for ks in range(8, 16)]
    st4 = lo(0) + hi(0) + lo(1) + hi(1) + lo(2, lambda: s.barrier(lg="sw3")) + hi(2) + lo(3)
    def owa():
        for i, x in ((1, 16), (2, 64), (3, 80)): s.e(f"v_xor_b32 v{OW[i]}, {x}, v{OWR}")
        for k, p in tq: w_tr1(s, k, 1, p)
    wr = act2(s, 1, {(o.b3a - 1 - o.tra, 'T'): owa, (o.b3a, 'S'): lambda: s.barrier(lg="w1r7"), (o.b4a, 'S'): lambda: s.barrier(), (-1, 'S'): lambda: g2_prefetch(s, st4)}, (o.pa2, o.pa3), o.tog & 4, 99)
    s.ts()
    s.prio(3)
    ex = {}
    for i in range(16): ex[i] = (lambda i=i: w_tr1(s, 8 + (i >> 1), 1, i & 1))
    for i in range(4): ex[16 + 2 * i] = wr[i]
    for m in range(3):
        ops, sts = epi_ops(s, m, accs[m])
        if m < 2:
            for i, f in enumerate(ops + [None] + sts):
                n = 32 * m + 34 + 2 * i
                if i < 8 and i % 2 == 0 and o.epf:
                    ex[n - 1] = (lambda f=f: f(hi=1)); ex[n] = (lambda f=f: f(lo=1, hi=3)); ex[n + 1] = (lambda f=f: f(lo=3))
                elif f: ex[n] = f
        else:
            for i, f in enumerate(ops): ex[98 + i] = f
    FF = [ACC[0] + 4 * i for i in range(8)]
    def last(i):
        if i == 0: s.barrier()
        s_read(s, 3, 8 + 2 * i, FF[2 * i]); s_read(s, 3, 9 + 2 * i, FF[2 * i + 1])
    nb = 112 - o.b6a
    for i in range(4):
        if nb + i < 112: ex[nb + i] = (lambda i=i: last(i))
    g2_run(s, st4, ex)
    s.ts()
    for i in range(4):
        if nb + i >= 112: last(i)
    sts2 = sts
    ops, sts = epi_ops(s, 3, accs[3])
    for i in range(8):
        s.wait(lg=f"sr3_{8 + i}")
        s.e(mfma(accs[3], W1A + 4 * (8 + i), FF[i], False))
        if i < 4: sts2[i]()
    for i in range(8):
        s.e(mfma(accs[3] + 16, W1B + 4 * (8 + i), FF[i], False))
        if 2 <= i < 6: ops[i - 2]()
    s.ts()
    s.e("s_nop 11")
    for f in ops[4:] + sts: f()
    finish(s, 0)


def stream_b(s):
    s.isb = 1
    o = s.opt
    D = o.d1
    jt = 16 // o.n + 4
    dw_fix(s)
    addr_w2(s)
    s.prio(0)
    if o.xn < 8: s.barrier()
    s.barrier()
    for ks in range(D):
        w_dma(s, ks, 0)
    for ks in range(2):
        w_tr(s, ks, 0)
        x_read(s, 0, ks)
    if o.b1b < 0: s.barrier()
    s.ts()
    s.prio(o.pbg)
    assert o.b1b <= o.xb0
    dq = [(k, p) for k in range(D, 16) for p in range(2)]
    xq = {}
    for i in range(8):
        n = 4 * o.xb0 + 3 + o.xsp0 * i if i < 4 else 4 * o.xb1 + 3 + o.xsp1 * (i - 4)
        xq.setdefault(n, []).append(i)
    def hook0(ks, pos):
        if pos == 3 and ks == o.b1b: s.barrier()
        if pos in (0, 2) and dq:
            k, p = dq.pop(0); w_dma1(s, k, 0, p)
        for i in xq.pop(4 * ks + pos, []):
            assert len(dq) % 2 == 0
            x_dma1(s, (i >> 1) & 1, i & 1, i >> 2)
    g1(s, 0, True, hook0)
    assert not dq and not xq
    s.ts()
    def pre():
        x_read(s, 1, 0); x_read(s, 1, 1)
        s.e(f"v_mov_b32 v{WDMA}, v{W2DMA0}")
    wr = act2(s, 0, {(o.b2b, 'S'): lambda: s.barrier(vm="x0"), (o.b2c, 'S'): lambda: s.barrier(vm="x1"), (-2, 'T'): pre},
              (o.pb0, o.pb1), o.tog & 2, 99, (F[0], F[2]))
    s.ts()
    s.prio(3)
    def hook1(ks, pos):
        if pos in (0, 2) and o.wb <= ks < o.wb + 2: wr[2 * (ks - o.wb) + (pos >> 1)]()
        if pos == 3 and ks == o.b3b: s.barrier()
        if pos in (0, 2) and o.b3b < ks <= o.b3b + 8: w_dma1(s, ks - o.b3b + 7, 1, pos >> 1)
    assert o.wb + 2 <= o.b3b + 1
    g1(s, 1, False, hook1)
    s.ts()
    act2(s, 1, {(o.b4b, 'T'): lambda: s.barrier(vm="w1b15", lg="sw1"), (jt + o.b5b, 'T'): lambda: s.barrier(lg="sw2")}, (o.pb2, o.pb3), o.tog & 8)
    s.ts()
    s.barrier(lg="sw3")
    finish(s, 1)


def prefetch_w(s):
    e = s.e
    e(f"v_lshlrev_b32 v{C0}, 7, v16")
    e(f"s_bfe_u32 s{sT0}, s2, 0x50003")
    e(f"s_lshl_b32 s{sT0}, s{sT0}, 2")
    e(f"s_add_u32 s{sT0}, s{sT0}, s{sWQ}")
    e(f"s_lshl_b32 s{sT1}, s{sT0}, 10")
    e(f"s_lshl_b32 s{sT0}, s{sT0}, 11")
    e(f"s_mov_b32 s{SC}, s6\ns_mov_b32 s{SC+1}, s7\ns_mov_b32 s{SC+2}, 262144\ns_mov_b32 s{SC+3}, 0x20000")
    e(f"s_mov_b32 s{SW2+2}, 131072\ns_mov_b32 s{SW2+3}, 0x20000")
    e("s_mov_b64 exec, 0xffff")
    e(f"buffer_load_dword v{C1}, v{C0}, s[{SC}:{SC+3}], s{sT0} offen")
    e("s_mov_b64 exec, 0xff")
    e(f"buffer_load_dword v{OWR}, v{C0}, s[{SW2}:{SW2+3}], s{sT1} offen")
    e("s_mov_b64 exec, -1")


def prefetch_code(s):
    e = s.e
    if s.opt.pbs: e("s_setprio 3")
    e(f"s_getpc_b64 s[{SC}:{SC+1}]")
    e("L_pc:")
    e(f"s_mov_b32 s{SC+2}, L_done-L_pc")
    e(f"s_mov_b32 s{SC+3}, s{SX+3}")
    e(f"s_lshl_b32 s{sT0}, s3, 2")
    e(f"s_add_u32 s{sT0}, s{sT0}, s{sWQ}")
    e(f"s_lshl_b32 s{sT0}, s{sT0}, 6")
    e("L_pfl:")
    e(f"s_buffer_load_dword s44, s[{SC}:{SC+3}], s{sT0}")
    e(f"s_buffer_load_dword s45, s[{SC}:{SC+3}], s{sT0} offset:2048")
    e(f"s_addk_i32 s{sT0}, 4096")
    e(f"s_cmp_lt_u32 s{sT0}, s{SC+2}")
    e("s_cbranch_scc1 L_pfl")


def addr_common(s):
    e = s.e
    L_, J, HH, a, b, c, d, Gq, R, CC = range(16, 26)
    e(f"v_mov_b32 v{VC}, {LIT}")
    e(f"v_bfe_u32 v{Gq}, v{L_}, 4, 1")
    e(f"v_bfe_u32 v{R}, v{L_}, 2, 2")
    e(f"v_and_b32 v{CC}, 3, v{L_}")
    e(f"v_lshrrev_b32 v{a}, 2, v{J}")
    e(f"v_xor_b32 v{b}, v{HH}, v{R}")
    e(f"v_lshlrev_b32 v{b}, 4, v{b}")
    e(f"v_lshl_add_u32 v{b}, v{CC}, 6, v{b}")
    e(f"v_add_u32 v{a}, {X_BASE >> 11}, v{a}")
    e(f"v_lshl_add_u32 v{XRE}, v{a}, 11, v{b}")
    e(f"v_xor_b32 v{XRO}, 32, v{XRE}")
    e(f"v_lshl_add_u32 v{a}, v{HH}, 3, v{R}")
    e(f"v_lshl_add_u32 v{a}, v{a}, 1, v{Gq}")
    e(f"v_lshl_add_u32 v{a}, v{a}, 2, v{CC}")
    e(f"v_lshl_add_u32 v{WTR}, v{a}, 3, s{sRING}")
    e(f"s_lshl_b32 s{sT0}, s{sW}, 1")
    e(f"s_xor_b32 s{sT0}, s{sT0}, s3")
    e(f"s_lshl_b32 s{sT0}, s{sT0}, 4")
    e(f"v_xor_b32 v{a}, s{sT0}, v{J}")
    e(f"v_bfe_u32 v{c}, v{J}, 1, 2")
    e(f"v_lshlrev_b32 v{d}, 1, v{HH}")
    e(f"v_xor_b32 v{c}, v{c}, v{d}")
    e(f"v_lshl_add_u32 v{a}, v{a}, 2, v{c}")
    e(f"v_lshlrev_b32 v{SWR}, 4, v{a}")
    e(f"v_xor_b32 v{TMP}, 16, v{SWR}")
    e("s_mov_b32 vcc_lo, 0")
    e("s_mov_b32 vcc_hi, -1")


def addr_w2(s):
    e = s.e
    L_, J, HH, a, b, c, d, Gq, R, CC, t = range(16, 27)
    e(f"s_lshl_b32 s{sROT2}, s3, 13")
    e(f"s_lshl_b32 s{sT2}, s{sWQ}, 7")
    e(f"s_add_u32 s{SW2}, s{SW2}, s{sT2}")
    e(f"s_addc_u32 s{SW2+1}, s{SW2+1}, 0")
    e(f"s_sub_u32 s{SW2+2}, 131072, s{sT2}")
    e(f"s_mov_b32 s{SW2+3}, 0x20000")
    e(f"v_lshrrev_b32 v{a}, 2, v{J}")
    e(f"v_lshl_add_u32 v{a}, v{a}, 3, v{HH}")
    e(f"v_lshl_add_u32 v{a}, v{a}, 2, v{CC}")
    e(f"v_lshlrev_b32 v{W2DMA0}, 4, v{a}")


def addr_a(s):
    e = s.e
    L_, J, HH, a, b, c, d, Gq, R, CC, t = range(16, 27)
    addr_w2(s)
    e(f"s_mul_i32 s{sT1}, s2, 64000")
    e(f"s_add_u32 s{SO}, s{SO}, s{sT1}")
    e(f"s_addc_u32 s{SO+1}, s{SO+1}, 0")
    e(f"s_mov_b32 s{SO+2}, 64000")
    e(f"s_mov_b32 s{SO+3}, 0x20000")
    e(f"v_lshl_add_u32 v{a}, v{HH}, 2, v{R}")
    e(f"v_lshrrev_b32 v{b}, 1, v{CC}")
    e(f"v_lshl_add_u32 v{b}, v{Gq}, 1, v{b}")
    e(f"v_and_b32 v{c}, 1, v{CC}")
    e(f"v_lshl_add_u32 v{t}, v{a}, 1, v{c}")
    e(f"v_lshl_add_u32 v{t}, v{t}, 2, v{b}")
    e(f"v_lshl_add_u32 v{W2TR0}, v{t}, 3, s{sRING2}")
    e(f"v_lshrrev_b32 v{t}, 1, v{a}")
    e(f"v_xor_b32 v{b}, v{b}, v{t}")
    e(f"v_lshl_add_u32 v{a}, v{a}, 2, v{b}")
    e(f"v_lshl_add_u32 v{a}, v{a}, 1, v{c}")
    e(f"v_lshlrev_b32 v{SRD_}, 3, v{a}")
    e(f"v_sub_u32 v{a}, 1, v{Gq}")
    e(f"v_mul_u32_u24 v{a}, 15, v{a}")
    e(f"v_xor_b32 v{a}, v{a}, v{J}")
    e(f"v_and_b32 v{c}, 7, v{a}")
    e(f"v_xor_b32 v{c}, v{c}, v{d}")
    e(f"v_lshl_add_u32 v{a}, v{a}, 3, v{c}")
    e(f"v_lshl_add_u32 v{OWR}, v{a}, 4, s{sRING2}")
    e(f"v_lshrrev_b32 v{a}, 3, v{L_}")
    e(f"v_xor_b32 v{b}, v{a}, v{L_}")
    e(f"v_lshl_add_u32 v{ORD}, v{b}, 4, s{sRING2}")
    e(f"v_and_b32 v{b}, 7, v{L_}")
    e(f"v_lshl_add_u32 v{b}, v{a}, 5, v{b}")
    e(f"v_lshl_add_u32 v{GST}, v{b}, 4, s{sT2}")


TRANS = ("v_exp_f32", "v_rcp_f32")


def check(lines):
    ins = [l for x in lines for l in x.split("\n") if l and not l.endswith(":") and not l.startswith(".")]
    for p, q in zip(ins, ins[1:]):
        if p.startswith(TRANS) and q.startswith("v_") and not q.startswith(TRANS):
            d = re.match(r"\S+ (v\d+)", p).group(1)
            assert not re.search(r"\b" + d + r"\b", q), (p, q)


def flat(L):
    return [l for x in L for l in x.split("\n")]


def isize(l):
    if l.endswith(":") or l.startswith("."): return 0
    op = l.split()[0]
    if op.startswith(("v_mfma", "ds_", "buffer_", "v_cvt_pk", "v_fmaak", "v_lshl_add", "v_add3", "v_bfe", "s_load", "s_buffer", "s_mem")): return 8
    lits = re.findall(r"(?<![\w\[:(])(-?(?:0x[0-9a-f]+|\d+))(?![\w\].:)])", l.split(None, 1)[1] if " " in l else "")
    if op in ("s_nop", "s_setprio", "s_waitcnt"): return 4
    for x in lits:
        v = int(x, 0)
        if v > 64 or v < -16: return 8
    return 4


def add_pads(la, lb, opt):
    pos = []
    for si, L in enumerate((la, lb)):
        acc = 0; nxt = opt.hop0
        for i, l in enumerate(L):
            acc += isize(l)
            if acc >= nxt and l.startswith("v_") and "exec" not in "".join(L[max(0, i - 4):i + 4]):
                pos.append((acc + si * opt.hopb, si, i)); nxt = acc + opt.hop
    pos.sort()
    n = len(pos); c = opt.nch
    ins = {}
    for k, (_, si, i) in enumerate(pos):
        tgt = f"L_pad{k + c}" if k + c < n else "L_padend"
        ins[(si, i)] = [f"L_pad{k}:", f"s_cbranch_execz {tgt}"]
    res = []
    for si, L in enumerate((la, lb)):
        o = []
        for i, l in enumerate(L):
            o.append(l); o += ins.get((si, i), [])
        res.append(o)
    return res[0], res[1], ["L_padend:", "s_mov_b64 exec, -1", "s_branch L_back"]


def build(opt):
    pro = Stream(opt)
    early(pro)
    sa = Stream(opt); sa.nts = pro.nts; sa.vm = list(pro.vm)
    sb = Stream(opt); sb.nts = pro.nts; sb.vm = ["dw"] * 3
    stream_a(sa)
    stream_b(sb)
    assert sa.L.count("s_barrier") == sb.L.count("s_barrier")
    check(sa.L); check(sb.L)
    ref = open(f"cdna_kernels/{NAME}.s.ref").read().split("\n")
    head = [l for l in ref if l.startswith(";") and "@launch" not in l]
    out = head + ["; @launch grid=(256,1,1) block=(512,1,1) lds=163840",
                  '.amdgcn_target "amdgcn-amd-amdhsa--gfx950"', ".text", f".globl {NAME}_kernel", ".p2align 8",
                  f".type {NAME}_kernel,@function", f"{NAME}_kernel:"]
    la, lb = flat(sa.L), flat(sb.L)
    tail = []
    if opt.hop:
        la, lb, tail = add_pads(la, lb, opt)
    out += pro.L + la + [".p2align 6", "L_grp_b:"] + lb + tail + ["L_done:", "s_endpgm"]
    out += ['.section .rodata,"a"', ".p2align 6", f".amdhsa_kernel {NAME}_kernel",
            "  .amdhsa_next_free_vgpr 256", "  .amdhsa_next_free_sgpr 102", "  .amdhsa_accum_offset 256",
            "  .amdhsa_group_segment_fixed_size 0", "  .amdhsa_kernarg_size 56", "  .amdhsa_user_sgpr_count 2",
            "  .amdhsa_user_sgpr_kernarg_segment_ptr 1", "  .amdhsa_system_sgpr_workgroup_id_x 1",
            ".end_amdhsa_kernel", ""]
    return "\n".join(out)


if __name__ == "__main__":
    ap = argparse.ArgumentParser()
    ap.add_argument("-o", default=f"cdna_kernels/{NAME}.s")
    for k, v in dict(ts=0, probe=-1, tl=0, xnt=1, ont=2, ont3=2, rot=1, pf=4, wnt=0, a0=2, d0=6, d1=6, b0b=9, n=2, hack=0, swp=0, w2p=1, hop=0,
                     b2a=-1, b2b=2, b2c=8, b1a=3, b1b=2, pbg=2, tra=0, epf=1, b3a=5, b3b=3, b4a=14, b4b=0, b5b=0, b6a=4, xb0=4, xb1=9, xsp0=0, xsp1=1, xn=8, xo=1, pbs=1, xs=0, dx=3, wb=0, lag=5,
                     tog=0, pa0=0, pa1=1, pa2=0, pa3=1, pb0=0, pb1=1, pb2=0, pb3=1).items():
        ap.add_argument("--" + k, type=int, default=v)
    opt = ap.parse_args()
    open(opt.o, "w").write(build(opt))
```

```python
import sys, argparse, re

NAME = "standalone__conformer_conv_module__speech"
LIT = "0xbfb8aa3b"

S_BASE, X_BASE, R3_BASE = 0, 32768, 98304

XRE, XRO, SWR, C0, C1, DWP, DWC, DWN, VC, WDMA, WTR, SRD_, OWR, ORD, GST, TMP = range(16)
F = [16, 20, 24, 28]
G = 32
XF = [32, 36, 40, 44, 48, 52]
XD0, XD1, W2DMA0, W2TR0, XD2, XD3 = 56, 57, 58, 59, 60, 61
ACC = [64, 96]
W1A, W1B = 128, 192

SX, SW1, SW2, SO, SD = 8, 12, 16, 20, 24
sW, sWQ, sROT1, sROT2, sXH0, sXH1, sXM0, sRING, sRING2, sT0, sT1, sT2 = range(28, 40)
SC = 40
sXB = 46
sTS = 48


class Stream:
    def __init__(self, opt):
        self.L = []; self.vm = []; self.lg = []; self.opt = opt; self.nts = 0

    def e(self, s):
        self.L.append(s)

    def vmop(self, s, tag):
        self.L.append(s); self.vm.append(tag)

    def lgop(self, s, tag):
        self.L.append(s); self.lg.append(tag)

    def _cnt(self, q, tag):
        idx = [i for i, t in enumerate(q) if t == tag]
        if not idx:
            return None
        n = len(q) - 1 - idx[-1]
        del q[:idx[-1] + 1]
        return n

    def wait(self, vm=None, lg=None):
        parts = []
        if vm is not None:
            n = self._cnt(self.vm, vm)
            if n is not None:
                assert n <= 63
                parts.append(f"vmcnt({n})")
        if lg is not None:
            n = self._cnt(self.lg, lg)
            if n is not None:
                parts.append(f"lgkmcnt({min(n, 15)})")
        if parts:
            self.e("s_waitcnt " + " ".join(parts))

    def ts(self, lvl=0):
        if lvl != self.opt.tl and lvl != -1:
            return
        if self.opt.probe >= 0:
            if self.nts == self.opt.probe:
                self.e("s_memrealtime s[94:95]")
            self.nts += 1
        if self.opt.ts:
            op = "s_memtime" if self.opt.ts == 1 else "s_memrealtime"
            assert self.nts < 21
            self.e(f"{op} s[{sTS + 2 * self.nts}:{sTS + 2 * self.nts + 1}]")
            self.nts += 1

    def barrier(self, vm=None, lg=None):
        self.wait(vm=vm, lg=lg)
        self.ts(2)
        self.e("s_barrier")
        self.ts(2)

    def prio(self, p):
        self.e(f"s_setprio {p}")


def vr(a, n):
    return f"v[{a}:{a + n - 1}]"


def mfma(d, a, b, first):
    c = "0" if first else vr(d, 16)
    return f"v_mfma_f32_32x32x16_bf16 {vr(d, 16)}, {vr(a, 4)}, {vr(b, 4)}, {c}"


def x_dma1(s, mm, h, half):
    nt = "nt " if s.opt.xnt else ""
    r = (XD0, XD1, XD2, XD3)[2 * mm + h]
    s.e(f"s_add_u32 m0, s{sXM0}, {mm * 16384 + h * 2048 + half * 1024}")
    s.e("s_nop 0")
    s.vmop(f"buffer_load_dwordx4 v{r}, s[{SX}:{SX+3}], s{sXH0 + half} offen {nt}lds", f"x{half}")


def w_dma1(s, ks, which, part):
    wnt = ["", "nt ", "sc1 ", "sc0 sc1 "][s.opt.wnt]
    if which == 1 and s.opt.hack & 2: return
    slot = (ks & 7) * 2
    ring, rot, step, srd, off = ((sRING, sROT1, 16384, SW1, 512), (sRING2, sROT2, 8192, SW2, 64))[which]
    if which == 1 and s.opt.hack & 4: srd = SW1
    if which == 1 and s.opt.w2p:
        s.e(f"s_add_u32 m0, s{ring}, {(slot + part) * 1024}")
        s.e(f"s_xor_b32 s{sT0}, s{rot}, {ks * step + part * 4096}")
        s.vmop(f"buffer_load_dwordx4 v{WDMA}, s[{srd}:{srd+3}], s{sT0} offen {wnt}lds", f"w{which}{'ab'[part]}{ks}")
    elif part == 0:
        s.e(f"s_add_u32 m0, s{ring}, {slot * 1024}")
        s.e(f"s_xor_b32 s{sT0}, s{rot}, {ks * step}")
        s.vmop(f"buffer_load_dwordx4 v{WDMA}, s[{srd}:{srd+3}], s{sT0} offen {wnt}lds", f"w{which}a{ks}")
        s.e(f"s_add_u32 m0, s{ring}, {slot * 1024 + 1024 - off}")
    else:
        if s.L[-1].startswith("s_add_u32 m0"):
            s.e("s_nop 0")
        s.vmop(f"buffer_load_dwordx4 v{WDMA}, s[{srd}:{srd+3}], s{sT0} offen offset:{off} {wnt}lds", f"w{which}b{ks}")


def w_dma(s, ks, which):
    w_dma1(s, ks, which, 0)
    w_dma1(s, ks, which, 1)


def w_tr1(s, ks, which, part):
    slot = (ks & 7) * 2
    if not (which == 1 and s.opt.hack & 1): s.wait(vm=f"w{which}{'ab'[part]}{ks}")
    base = (W1A, W1B)[part]
    if which == 1 and s.opt.hack & 8: return
    if which == 1 and s.opt.w2p:
        for ct in range(2):
            s.lgop(f"ds_read_b64_tr_b16 {vr((W1A, W1B)[ct] + 4 * ks + 2 * part, 2)}, v{WTR} offset:{(slot + part) * 1024 + ct * 512}", f"w{which}r{ks}")
        return
    for rd in range(2):
        s.lgop(f"ds_read_b64_tr_b16 {vr(base + 4 * ks + 2 * rd, 2)}, v{WTR} offset:{(slot + part) * 1024 + rd * (512 if which else 256)}", f"w{which}r{ks}")


def w_tr(s, ks, which):
    w_tr1(s, ks, which, 0)
    w_tr1(s, ks, which, 1)


def x_read1(s, mp, ks, mm):
    if s.opt.hack & 32 and mp == 1: return
    a = XRO if ks & 1 else XRE
    s.lgop(f"ds_read_b128 {vr(XF[(ks % 3) * 2 + mm], 4)}, v{a} offset:{(2 * mp + mm) * 16384 + (ks >> 1) * 256}", f"xr{mp}_{ks}_{mm}")


def x_read(s, mp, ks):
    for mm in range(2):
        x_read1(s, mp, ks, mm)


def s_read(s, m, ks, f):
    for rd in range(2):
        s.lgop(f"ds_read_b64_tr_b16 {vr(f + 2 * rd, 2)}, v{SRD_} offset:{S_BASE + m * 16384 + ks * 1024 + rd * 512}", f"sr{m}_{ks}")


def g1(s, mp, stream, hook):
    for ks in range(16):
        for mm in range(2):
            f = XF[(ks % 3) * 2 + mm]
            s.wait(lg=f"xr{mp}_{ks}_{1 if stream else mm}")
            if mm == 0 and ks % 4 == 0: s.ts(1)
            s.e(mfma(ACC[mm] + 16, f, W1B + 4 * ks, ks == 0))
            hook(ks, 2 * mm)
            s.e(mfma(ACC[mm], f, W1A + 4 * ks, ks == 0))
            if ks + 2 < 16:
                if stream:
                    w_tr1(s, ks + 2, 0, mm)
                x_read1(s, mp, ks + 2, mm)
            hook(ks, 2 * mm + 1)


def act2(s, mp, hooks, base, toggle, wfrom=0, pk=None, inj=(), inj0=99, injc=0, wonce=-99):
    n = s.opt.n
    ng = 32 // n
    a_in = lambda u: ACC[u >> 4] + (u & 15)
    b = lambda u: ACC[u >> 4] + 16 + (u & 15)
    h = lambda u: C0 if u in (-2, 30) else C1 if u in (-1, 31) else a_in(u)
    hooks = dict(hooks)
    cur = [None]
    pend = []
    pk = pk or (ACC[0] + 16, ACC[1] + 16)
    inj = list(inj); cost = [0]
    def emit(t, j):
        s.e(t)
        if j >= inj0 and inj:
            cost[0] += 8 if t.startswith(TRANS) else 4
            if cost[0] >= injc:
                inj.pop(0)(); cost[0] = 0
    def setp(p):
        if cur[0] != p:
            s.prio(p); cur[0] = p
    hooks = {((k if k >= 0 else ng + 4 + k), t): f for (k, t), f in hooks.items()}
    for j in range(ng + 4):
        e = lambda k: [(j - k) * n + i for i in range(n)] if 0 <= j - k < ng else []
        S = []; T = []
        S += [f"v_mul_f32 v{b(u)}, v{VC}, v{b(u)}" for u in e(0)]
        S += [f"v_mul_f32 v{h(u)}, v{a_in(u)}, v{b(u)}" for u in e(2)]
        if mp == 0 and j == 2:
            S += [f"v_mov_b32 v{C0}, v{a_in(0)}", f"v_mov_b32 v{C1}, v{a_in(0)}"]
        S += [f"v_add_f32 v{b(u)}, 1.0, v{b(u)}" for u in e(1)]
        if mp == 0 and j == 2:
            S += [f"v_permlane32_swap_b32 v{C0}, v{C1}", f"v_cndmask_b32 v{C1}, v{C1}, v{C0}, vcc"]
        S += [f"v_mul_f32 v{b(u)}, v{DWN}, v{h(u)}" for u in e(2)]
        S += [f"v_fmac_f32 v{b(u)}, v{DWC}, v{h(u - 1)}" for u in e(2)]
        S += [f"v_fmac_f32 v{b(u)}, v{DWP}, v{h(u - 2)}" for u in e(2)]
        S += [f"v_fmaak_f32 v{h(u - 2)}, v{VC}, v{h(u - 2)}, {LIT}" for u in e(3)]
        S += [f"v_mul_f32 v{b(u)}, v{b(u)}, v{h(u - 2)}" for u in e(4)]
        T += [f"v_exp_f32 v{b(u)}, v{b(u)}" for u in e(0)]
        T += [f"v_rcp_f32 v{b(u)}, v{b(u)}" for u in e(1)]
        T += [f"v_exp_f32 v{h(u - 2)}, v{b(u)}" for u in e(2)]
        T += [f"v_rcp_f32 v{h(u - 2)}, v{h(u - 2)}" for u in e(3)]
        T += [f"v_cvt_pk_bf16_f32 v{pk[u >> 4] + ((u & 15) >> 1)}, v{b(u)}, v{b(u + 1)}" for u in e(4)[::2]]
        bp = base[0] if j < ng // 2 + 2 else base[1]
        setp(bp)
        if (j, 'S') in hooks: hooks.pop((j, 'S'))()
        if s.opt.hack & 16 and getattr(s, 'isb', 0) and mp == 1: S = []; T = []
        for t in S: emit(t, j)
        if toggle: setp(bp + 1)
        if (j, 'T') in hooks: hooks.pop((j, 'T'))()
        for t in T: emit(t, j)
        done = (j - 3) * n
        if done > 0 and done % 8 == 0:
            mm = (done - 8) >> 4; q = ((done - 8) >> 3) & 1
            pend.append((f"ds_write_b128 v{TMP if q else SWR}, {vr(pk[mm] + 4 * q, 4)} offset:{S_BASE + (2 * mp + mm) * 16384}", f"sw{2 * mp + mm}"))
        if j >= (wfrom if wfrom >= 0 else ng + 4 + wfrom) or j == wonce:
            while pend: s.lgop(*pend.pop(0))
    assert not hooks and not inj, (hooks, len(inj))
    return [(lambda w=w: s.lgop(*w)) for w in pend]


OW = [OWR, XRE, XRO, WDMA]


def epi_ops(s, m, acc):
    nt = ["", " nt", " sc1", " sc0 sc1", " sc0 sc1 nt", " sc1 nt"][s.opt.ont if m < 3 else s.opt.ont3]
    ops = []
    for ct in range(2):
        for q in range(2):
            d = acc + 16 * ct + 4 * q
            def cv(ct=ct, q=q, d=d, lo=0, hi=4):
                for i in range(lo, hi):
                    if s.opt.hack & 64 and m < 3: continue
                    s.e(f"v_cvt_pk_bf16_f32 v{d + i}, v{acc + 16 * ct + 8 * q + 2 * i}, v{acc + 16 * ct + 8 * q + 2 * i + 1}")
            def wr(ct=ct, q=q, d=d):
                if s.opt.hack & 128 and m < 3: return
                s.lgop(f"ds_write_b128 v{OW[2 * ct + q]}, {vr(d, 4)}", f"ow{m}")
            ops += [cv, wr]
    dst = [acc + 8, acc + 12, acc + 24, acc + 28]
    def rd(lo):
        if s.opt.hack & 512 and m < 3: return
        for i in range(lo, lo + 2):
            s.lgop(f"ds_read_b128 {vr(dst[i], 4)}, v{ORD} offset:{i * 1024}", f"or{m}_{i}")
    ops.append(lambda: rd(0))
    ops.append(lambda: rd(2))
    def st(i):
        if s.opt.hack & 256 and m < 3: return
        so = (48 - 16 * m + 8 * i) * 512 if i < 2 else (62 + 16 * m + 8 * (i - 2)) * 512
        s.e(f"s_movk_i32 s{sT1}, {so}" if so < 32768 else f"s_mov_b32 s{sT1}, {so}")
        if m == 0 and i == 1: s.e("s_mov_b32 exec_hi, 0x00ffffff")
        if m == 0 and i == 2: s.e("s_mov_b32 exec_lo, 0xffffff00")
        s.wait(lg=f"or{m}_{i}")
        s.vmop(f"buffer_store_dwordx4 {vr(dst[i], 4)}, v{GST}, s[{SO}:{SO+3}], s{sT1} offen{nt}", f"st{m}")
        if m == 0 and i in (1, 2): s.e("s_mov_b64 exec, -1")
    sts = [(lambda i=i: st(i)) for i in range(4)]
    return ops, sts


def s_read1(s, m, ks, f, rd):
    s.lgop(f"ds_read_b64_tr_b16 {vr(f + 2 * rd, 2)}, v{SRD_} offset:{S_BASE + m * 16384 + ks * 1024 + rd * 512}", f"sr{m}_{ks}")


def g2_ops(s, steps, extra):
    def one(i, ct):
        m, ks, acc, _ = steps[i]
        if ct == 0: s.wait(lg=f"sr{m}_{ks}")
        s.e(mfma(acc + 16 * ct, (W1A, W1B)[ct] + 4 * ks, F[i % 4], ks == 0))
        if i + 3 < len(steps):
            m2, k2, _, pre2 = steps[i + 3]
            if pre2 and ct == 0: pre2()
            if m2 == 0 and k2 >= 8: w_tr1(s, k2, 1, ct)
            s_read1(s, m2, k2, F[(i + 3) % 4], ct)
        if 2 * i + ct in extra: extra.pop(2 * i + ct)()
    return [(lambda i=i, ct=ct: one(i, ct)) for i in range(len(steps)) for ct in range(2)]


def g2_prefetch(s, steps):
    for i in range(3):
        m, ks, _, pre = steps[i]
        assert pre is None
        s_read(s, m, ks, F[i])


def finish(s, grp):
    if s.opt.probe >= 0:
        s.e("s_waitcnt vmcnt(0)")
        s.ts(-1)
        if grp == 1:
            s.e("s_endpgm")
            return
        s.e("s_memrealtime s[96:97]\ns_waitcnt lgkmcnt(0)\ns_sub_u32 s94, s94, s92\ns_lshl_b32 s94, s94, 2")
        s.e(f"L_spin{grp}:")
        s.e("s_memrealtime s[98:99]\ns_waitcnt lgkmcnt(0)\ns_sub_u32 s98, s98, s96\ns_cmp_lt_u32 s98, s94")
        s.e(f"s_cbranch_scc1 L_spin{grp}")
    if s.opt.ts:
        s.e("s_waitcnt vmcnt(0)")
        s.ts(-1)
        s.e("s_memrealtime s[94:95]")
        s.e("s_load_dwordx2 s[96:97], s[0:1], 48")
        s.e("s_waitcnt lgkmcnt(0)")
        s.e("s_mov_b32 s98, 0x100000\ns_mov_b32 s99, 0x20000")
        s.e(f"s_lshl_b32 s3, s2, 3\ns_add_u32 s3, s3, s{sW}\ns_lshl_b32 s3, s3, 7\nv_mov_b32 v1, s3")
        s.e("v_mov_b32 v3, s92\nbuffer_store_dword v3, v1, s[96:99], 0 offen")
        s.e("v_mov_b32 v3, s94\nbuffer_store_dword v3, v1, s[96:99], 0 offen offset:4")
        for m in range(s.nts):
            s.e(f"s_sub_u32 s4, s{sTS + 2 * m}, s{90 if s.opt.ts == 1 else 92}\nv_mov_b32 v3, s4\nbuffer_store_dword v3, v1, s[96:99], 0 offen offset:{8 + 4 * m}")
    s.e("s_endpgm")


def dw_load(s):
    J, HH = 17, 18
    e = s.e
    e(f"s_lshl_b32 s{sT2}, s{sW}, 6")
    e(f"v_lshl_add_u32 v{DWC}, v{J}, 1, s{sT2}")
    e(f"v_lshl_add_u32 v{DWN}, v{HH}, 10, v{DWC}")
    e(f"v_xor_b32 v{DWP}, 1024, v{DWN}")
    e(f"s_mov_b32 s{SD+2}, 1536")
    e(f"s_mov_b32 s{SD+3}, 0x20000")
    s.vmop(f"buffer_load_ushort v{DWC}, v{DWC}, s[{SD}:{SD+3}], 0 offen offset:512", "dw")
    s.vmop(f"buffer_load_ushort v{DWN}, v{DWN}, s[{SD}:{SD+3}], 0 offen", "dw")
    s.vmop(f"buffer_load_ushort v{DWP}, v{DWP}, s[{SD}:{SD+3}], 0 offen", "dw")


def dw_fix(s):
    s.wait(vm="dw")
    for r in (DWP, DWC, DWN):
        s.e(f"v_lshlrev_b32 v{r}, 16, v{r}")
    for r in (DWP, DWC, DWN):
        s.e(f"v_mul_f32 v{r}, v{VC}, v{r}")


def early(s):
    o = s.opt
    e = s.e
    L_, J, HH, a, b, c, d = range(16, 23)
    e("s_cmp_ge_u32 s2, 256")
    e("s_cbranch_scc1 L_done")
    if o.ts or o.probe >= 0:
        e("s_memrealtime s[92:93]")
        e("s_memtime s[90:91]")
    e("s_load_dwordx4 s[4:7], s[0:1], 0")
    e(f"v_readfirstlane_b32 s{sW}, v0")
    e(f"v_and_b32 v{a}, 3, v0")
    e(f"v_bfe_u32 v{c}, v0, 4, 2")
    e(f"v_bfe_u32 v{b}, v0, 2, 2")
    e(f"s_lshr_b32 s3, s2, 3")
    e(f"s_and_b32 s3, s3, {7 if o.rot else 0}")
    e(f"s_lshr_b32 s{sW}, s{sW}, 6")
    e(f"s_and_b32 s{sWQ}, s{sW}, 3")
    e(f"s_mov_b32 s{SX+3}, 0x20000")
    if o.pf & 4:
        e(f"s_cmp_lt_u32 s{sW}, 4")
        e("s_cbranch_scc1 L_e0")
        prefetch_code(s)
        e("L_e0:")
    e(f"s_and_b32 s{sT1}, s{sW}, 4")
    e(f"s_add_u32 s{sT1}, s{sT1}, s{sW}")
    e(f"s_add_u32 s{sXM0}, s{sT1}, {X_BASE >> 12}")
    e(f"s_lshl_b32 s{sXM0}, s{sXM0}, 12")
    e(f"v_lshl_add_u32 v{b}, s{sT1}, 2, v{b}")
    e(f"v_lshl_add_u32 v{d}, v{c}, 2, v{a}")
    e(f"s_lshl_b32 s{sT0}, s3, 1")
    e(f"s_and_b32 s{sXH0}, s{sT0}, 8")
    e(f"s_and_b32 s{sT0}, s{sT0}, 6")
    e(f"s_and_b32 s{sRING}, s{sW}, 1")
    e(f"s_add_u32 s{sT0}, s{sT0}, s{sRING}")
    e(f"s_lshl_b32 s{sT0}, s{sT0}, 1")
    e(f"v_xor_b32 v{d}, s{sT0}, v{d}")
    e(f"s_xor_b32 s{sXH1}, s{sXH0}, 8")
    e(f"s_lshl_b32 s{sXH0}, s{sXH0}, 5")
    e(f"s_lshl_b32 s{sXH1}, s{sXH1}, 5")
    e(f"s_lshr_b32 s{sT1}, s2, 7")
    e(f"s_lshl_b32 s{sT0}, s{sT1}, 7")
    e(f"s_sub_u32 s{sT0}, s2, s{sT0}")
    e(f"s_mulk_i32 s{sT0}, 125")
    e(f"s_add_u32 s{sT0}, s{sT0}, 62")
    e(f"v_sub_u32 v{c}, s{sT0}, v{b}")
    e(f"v_add3_u32 v{b}, v{b}, s{sT0}, 1")
    e(f"v_lshl_add_u32 v{XD0}, v{c}, 5, v{d}")
    e(f"v_xor_b32 v{d}, 1, v{d}")
    e(f"v_lshl_add_u32 v{XD1}, v{b}, 5, v{d}")
    e(f"v_lshlrev_b32 v{XD0}, 4, v{XD0}")
    e(f"v_lshlrev_b32 v{XD1}, 4, v{XD1}")
    e(f"s_mov_b32 s{SX+2}, 8192000")
    e(f"s_mul_i32 s{sXB}, s{sT1}, s{SX+2}")
    e(f"v_add_u32 v{XD2}, -8192, v{XD0}")
    e(f"v_add_u32 v{XD3}, 8192, v{XD1}")
    e(f"s_cmp_ge_u32 s{sW}, 4")
    e("s_cbranch_scc1 L_e1")
    e(f"s_mov_b32 m0, s{sXM0}")
    e("s_waitcnt lgkmcnt(0)")
    s.ts(1); s.ts(3)
    e(f"s_add_u32 s{SX}, s4, s{sXB}")
    e(f"s_addc_u32 s{SX+1}, s5, 0")
    nt = "nt " if o.xnt else ""
    cur = 0
    for i in range(o.xn):
        mm, h, half = (i >> 1) & 1, i & 1, i >> 2
        if o.xn == 8 and o.xo: mm, h, half = i >> 2, (i >> 1) & 1, i & 1
        pos = mm * 16384 + h * 2048 + half * 1024
        if i:
            e(f"s_addk_i32 m0, {pos - cur}")
            e("s_nop 0")
        cur = pos
        s.vmop(f"buffer_load_dwordx4 v{(XD0, XD1, XD2, XD3)[2 * mm + h]}, s[{SX}:{SX+3}], s{sXH0 + half} offen {nt}lds", f"x{half}")
    if o.pf & 8:
        e(f"v_and_b32 v{c}, 15, v0")
        e(f"s_mov_b32 s{SC}, s6\ns_mov_b32 s{SC+1}, s7\ns_mov_b32 s{SC+2}, 262144\ns_mov_b32 s{SC+3}, s{SX+3}")
        e(f"v_lshlrev_b32 v{c}, 7, v{c}")
        e(f"s_lshr_b32 s{sT0}, s2, 3\ns_lshl_b32 s{sT0}, s{sT0}, 2\ns_add_u32 s{sT0}, s{sT0}, s{sWQ}\ns_lshl_b32 s{sT0}, s{sT0}, 11")
        s.vmop(f"buffer_load_dword v{C1}, v{c}, s[{SC}:{SC+3}], s{sT0} offen{' nt' if o.pnt else ''}", "pf")
    s.ts(3)
    e("L_e1:")
    e(f"s_load_dwordx2 s[{SD}:{SD+1}], s[0:1], 16")
    e(f"s_load_dwordx2 s[{SW2}:{SW2+1}], s[0:1], 24")
    e(f"s_load_dwordx2 s[{SO}:{SO+1}], s[0:1], 32")
    e(f"v_and_b32 v{L_}, 63, v0")
    e(f"v_and_b32 v{J}, 31, v0")
    e(f"v_bfe_u32 v{HH}, v0, 5, 1")
    e(f"v_lshrrev_b32 v{b}, 2, v{L_}")
    e(f"v_lshl_add_u32 v{b}, v{b}, 6, v{a}")
    e(f"v_lshlrev_b32 v{WDMA}, 4, v{b}")
    e(f"s_lshl_b32 s{sROT1}, s3, 15")
    e(f"s_and_b32 s{sT0}, s{sW}, 2")
    e(f"s_lshl_b32 s{sT0}, s{sT0}, 1")
    e(f"s_add_u32 s{sRING}, s{sRING}, s{sT0}")
    e(f"s_add_u32 s{sRING2}, s{sWQ}, {R3_BASE >> 14}")
    e(f"s_cmp_ge_u32 s{sW}, 4")
    e(f"s_cselect_b32 s{sRING}, s{sRING2}, s{sRING}")
    e(f"s_lshl_b32 s{sRING}, s{sRING}, 14")
    e(f"s_lshl_b32 s{sRING2}, s{sRING2}, 14")
    e(f"s_lshl_b32 s{sT2}, s{sW}, 6")
    e(f"s_sub_u32 s{SW1+2}, 262144, s{sT2}")
    e(f"s_mov_b32 s{SW1+3}, s{SX+3}")
    if o.a0:
        e(f"s_cmp_ge_u32 s{sW}, 4")
        e("s_cbranch_scc1 L_e4")
        e(f"s_add_u32 s{SW1}, s6, s{sT2}")
        e(f"s_addc_u32 s{SW1+1}, s7, 0")
        for ks in range(o.a0):
            w_dma(s, ks, 0)
        e("L_e4:")
    addr_common(s)
    e("s_waitcnt lgkmcnt(0)")
    e(f"s_add_u32 s{SX}, s4, s{sXB}")
    e(f"s_addc_u32 s{SX+1}, s5, 0")
    e(f"s_add_u32 s{SW1}, s6, s{sT2}")
    e(f"s_addc_u32 s{SW1+1}, s7, 0")
    dw_load(s)
    s.ts(3)
    e(f"s_cmp_ge_u32 s{sW}, 4")
    e("s_cbranch_scc1 L_e3")
    for ks in range(o.a0, o.d0):
        w_dma(s, ks, 0)
        i = o.xn + ks - o.xs
        if o.xn <= i < 8: x_dma1(s, (i >> 1) & 1, i & 1, 1)
    s.ts(1)
    s.wait(vm="x0" if o.xn < 8 else "x1")
    if o.pf & 2:
        e("s_branch L_e2")
        e("L_e3:")
        prefetch_w(s)
    else:
        e("L_e3:")
    e("L_e2:")
    s.ts(3)
    s.barrier()
    s.ts(); s.ts(3)
    e(f"s_cmp_ge_u32 s{sW}, 4")
    e("s_cbranch_scc1 L_grp_b")


def stream_a(s):
    o = s.opt
    D = max(o.d0, 6)
    wq = [(k, p) for k in range(o.d0, 16) for p in range(2)]
    s.prio(3)
    for ks in range(2):
        w_tr(s, ks, 0)
        x_read(s, 0, ks)
    late = Stream(o)
    addr_a(late)
    late = late.L
    def hook0(ks, pos):
        if pos in (0, 2) and wq:
            k, p = wq.pop(0); w_dma1(s, k, 0, p)
        if pos == 3:
            i = o.xn + ks + o.d0 - o.xs
            if o.xn <= i < 8: x_dma1(s, (i >> 1) & 1, i & 1, 1)
        if pos == 3 and o.dx <= ks < o.dx + D - o.d0:
            for _ in range(2):
                k, p = wq.pop(0); w_dma1(s, k, 0, p)
        if pos == 0 and ks == 6 and o.xn < 8: s.barrier(vm="x1")
        if pos == 2 and ks == o.b0b: s.barrier()
        if pos == 0 and ks == 16 - D: dw_fix(s)
        if ks > 16 - D and pos in (0, 2):
            for _ in range(5):
                if late: s.e(late.pop(0))
        if pos == 3 and ks == 15:
            assert not late
            s.e(f"v_mov_b32 v{WDMA}, v{W2DMA0}")
            s.e(f"v_mov_b32 v{WTR}, v{W2TR0}")
    g1(s, 0, True, hook0)
    s.ts()
    def pre2():
        s.barrier()
        x_read(s, 1, 0); x_read(s, 1, 1)
    wr = act2(s, 0, {(o.b1a, 'T'): lambda: s.barrier(), (o.b2a, 'S'): pre2}, (o.pa0, o.pa1), o.tog & 1, 99, (F[0], F[2]))
    s.ts()
    s.prio(3)
    dq = [(k, p) for k in range(8) for p in range(2)]
    tq = list(dq)
    def hook1(ks, pos):
        n = 4 * ks + pos
        if n == 24: s.barrier()
        if 25 <= n <= 28: wr[n - 25]()
        if n >= 30 and pos in (0, 2) and dq:
            k, p = dq.pop(0); w_dma1(s, k, 1, p)
        if n >= 30 + 4 * o.lag and pos in (1, 3):
            k, p = tq.pop(0); w_tr1(s, k, 1, p)
    g1(s, 1, False, hook1)
    assert not dq
    s.ts()
    accs = [G, ACC[0], ACC[1], G]
    lo = lambda m, f=None: [(m, ks, accs[m], f if ks == 0 else None) for ks in range(8)]
    hi = lambda m, f=None: [(m, ks, accs[m], f if ks == 8 else None) for ks in range(8, 16)]
    st4 = lo(0) + hi(0) + lo(1) + hi(1) + lo(2) + hi(2, lambda: s.barrier(lg="sw3")) + lo(3)
    def owa():
        for i, x in ((1, 16), (2, 64), (3, 80)): s.e(f"v_xor_b32 v{OW[i]}, {x}, v{OWR}")
        for k, p in tq: w_tr1(s, k, 1, p)
    ex = {}
    gops = g2_ops(s, st4, ex)
    ni = 2 * o.ninj
    assert o.ninj == 0 or o.inj0 >= o.b4a
    wr = act2(s, 1, {(o.b3a - 1 - o.tra, 'T'): owa, (o.b3a, 'S'): lambda: s.barrier(lg="w1r7"), (o.b4a, 'S'): lambda: s.barrier(lg="sw2"),
                     ((o.inj0 - 1, 'T') if ni else (-1, 'S')): lambda: g2_prefetch(s, st4)}, (o.pa2, o.pa3), o.tog & 4, 99,
              None, gops[:ni], o.inj0, o.injc, o.b4a - o.wa)
    assert len(wr) == 2
    s.ts()
    s.prio(3)
    for i in range(2): ex[26 + 2 * i] = wr[i]
    for m in range(3):
        ops, sts = epi_ops(s, m, accs[m])
        if m < 2:
            for i, f in enumerate(ops + [None] + sts):
                n = 32 * m + 34 + 2 * i
                if i < 8 and i % 2 == 0 and o.epf:
                    ex[n - 1] = (lambda f=f: f(hi=1)); ex[n] = (lambda f=f: f(lo=1, hi=3)); ex[n + 1] = (lambda f=f: f(lo=3))
                elif f: ex[n] = f
        else:
            for i, f in enumerate(ops): ex[98 + i] = f
    FF = [ACC[0] + 4 * i for i in range(8)]
    def last(i):
        if i == 0: s.barrier()
        s_read(s, 3, 8 + 2 * i, FF[2 * i]); s_read(s, 3, 9 + 2 * i, FF[2 * i + 1])
    nb = 112 - o.b6a
    for i in range(4):
        if nb + i < 112: ex[nb + i] = (lambda i=i: last(i))
    for f in gops[ni:]: f()
    assert not ex, ex
    s.ts()
    for i in range(4):
        if nb + i >= 112: last(i)
    sts2 = sts
    ops, sts = epi_ops(s, 3, accs[3])
    for i in range(8):
        s.wait(lg=f"sr3_{8 + i}")
        s.e(mfma(accs[3], W1A + 4 * (8 + i), FF[i], False))
        if i < 4: sts2[i]()
    for i in range(8):
        s.e(mfma(accs[3] + 16, W1B + 4 * (8 + i), FF[i], False))
        if 2 <= i < 6: ops[i - 2]()
    s.ts()
    s.e("s_nop 11")
    for f in ops[4:] + sts: f()
    finish(s, 0)


def stream_b(s):
    s.isb = 1
    o = s.opt
    D = o.d1
    jt = 16 // o.n + 4
    dw_fix(s)
    addr_w2(s)
    if o.pf & 16:
        s.e(f"v_and_b32 v{ORD}, 7, v16")
        s.e(f"v_lshlrev_b32 v{ORD}, 9, v{ORD}")
        s.e(f"s_lshr_b32 s{sT1}, s2, 3\ns_lshl_b32 s{sT1}, s{sT1}, 12")
    s.prio(0)
    if o.xn < 8: s.barrier()
    s.barrier()
    for ks in range(D):
        w_dma(s, ks, 0)
    for ks in range(2):
        w_tr(s, ks, 0)
        x_read(s, 0, ks)
    if o.b1b < 0: s.barrier()
    s.ts()
    s.prio(o.pbg)
    assert o.b1b <= o.xb0
    dq = [(k, p) for k in range(D, 16) for p in range(2)]
    xq = {}
    for i in range(8):
        n = 4 * o.xb0 + 3 + o.xsp0 * i if i < 4 else 4 * o.xb1 + 3 + o.xsp1 * (i - 4)
        xq.setdefault(n, []).append(i)
    def hook0(ks, pos):
        if pos == 3 and ks == o.b1b: s.barrier()
        if pos in (0, 2) and dq:
            k, p = dq.pop(0); w_dma1(s, k, 0, p)
        for i in xq.pop(4 * ks + pos, []):
            assert len(dq) % 2 == 0
            x_dma1(s, (i >> 1) & 1, i & 1, i >> 2)
            if i == 7 and o.pf & 16:
                s.vmop(f"buffer_load_dword v{OWR}, v{ORD}, s[{SW2}:{SW2+3}], s{sT1} offen{' nt' if o.pnt else ''}", "pf")
    g1(s, 0, True, hook0)
    assert not dq and not xq
    s.ts()
    def pre():
        x_read(s, 1, 0); x_read(s, 1, 1)
        s.e(f"v_mov_b32 v{WDMA}, v{W2DMA0}")
    wr = act2(s, 0, {(o.b2b, 'S'): lambda: s.barrier(vm="x0"), (o.b2c, 'S'): lambda: s.barrier(vm="x1"), (-2, 'T'): pre},
              (o.pb0, o.pb1), o.tog & 2, 99, (F[0], F[2]))
    s.ts()
    s.prio(3)
    def hook1(ks, pos):
        if pos in (0, 2) and o.wb <= ks < o.wb + 2: wr[2 * (ks - o.wb) + (pos >> 1)]()
        if pos == 3 and ks == o.b3b: s.barrier()
        if pos in (0, 2) and o.b3b < ks <= o.b3b + 8: w_dma1(s, ks - o.b3b + 7, 1, pos >> 1)
    assert o.wb + 2 <= o.b3b + 1
    g1(s, 1, False, hook1)
    s.ts()
    act2(s, 1, {(o.b4b, 'T'): lambda: s.barrier(vm="w1b15", lg="sw1"), (jt + o.b5b, 'T'): lambda: s.barrier(lg="sw2")}, (o.pb2, o.pb3), o.tog & 8)
    s.ts()
    s.barrier(lg="sw3")
    finish(s, 1)


def prefetch_w(s):
    e = s.e
    e(f"v_lshlrev_b32 v{C0}, 7, v16")
    e(f"s_bfe_u32 s{sT0}, s2, 0x50003")
    e(f"s_lshl_b32 s{sT0}, s{sT0}, 2")
    e(f"s_add_u32 s{sT0}, s{sT0}, s{sWQ}")
    e(f"s_lshl_b32 s{sT1}, s{sT0}, 10")
    e(f"s_lshl_b32 s{sT0}, s{sT0}, 11")
    e(f"s_mov_b32 s{SC}, s6\ns_mov_b32 s{SC+1}, s7\ns_mov_b32 s{SC+2}, 262144\ns_mov_b32 s{SC+3}, 0x20000")
    e(f"s_mov_b32 s{SW2+2}, 131072\ns_mov_b32 s{SW2+3}, 0x20000")
    e("s_mov_b64 exec, 0xffff")
    e(f"buffer_load_dword v{C1}, v{C0}, s[{SC}:{SC+3}], s{sT0} offen")
    e("s_mov_b64 exec, 0xff")
    e(f"buffer_load_dword v{OWR}, v{C0}, s[{SW2}:{SW2+3}], s{sT1} offen")
    e("s_mov_b64 exec, -1")


def prefetch_code(s):
    e = s.e
    if s.opt.pbs: e("s_setprio 3")
    e(f"s_getpc_b64 s[{SC}:{SC+1}]")
    e("L_pc:")
    e(f"s_mov_b32 s{SC+2}, L_done-L_pc")
    e(f"s_mov_b32 s{SC+3}, s{SX+3}")
    e(f"s_lshl_b32 s{sT0}, s3, 2")
    e(f"s_add_u32 s{sT0}, s{sT0}, s{sWQ}")
    e(f"s_lshl_b32 s{sT0}, s{sT0}, 6")
    e("L_pfl:")
    e(f"s_buffer_load_dword s44, s[{SC}:{SC+3}], s{sT0}")
    e(f"s_buffer_load_dword s45, s[{SC}:{SC+3}], s{sT0} offset:2048")
    e(f"s_addk_i32 s{sT0}, 4096")
    e(f"s_cmp_lt_u32 s{sT0}, s{SC+2}")
    e("s_cbranch_scc1 L_pfl")


def addr_common(s):
    e = s.e
    L_, J, HH, a, b, c, d, Gq, R, CC = range(16, 26)
    e(f"v_mov_b32 v{VC}, {LIT}")
    e(f"v_bfe_u32 v{Gq}, v{L_}, 4, 1")
    e(f"v_bfe_u32 v{R}, v{L_}, 2, 2")
    e(f"v_and_b32 v{CC}, 3, v{L_}")
    e(f"v_lshrrev_b32 v{a}, 2, v{J}")
    e(f"v_xor_b32 v{b}, v{HH}, v{R}")
    e(f"v_lshlrev_b32 v{b}, 4, v{b}")
    e(f"v_lshl_add_u32 v{b}, v{CC}, 6, v{b}")
    e(f"v_add_u32 v{a}, {X_BASE >> 11}, v{a}")
    e(f"v_lshl_add_u32 v{XRE}, v{a}, 11, v{b}")
    e(f"v_xor_b32 v{XRO}, 32, v{XRE}")
    e(f"v_lshl_add_u32 v{a}, v{HH}, 3, v{R}")
    e(f"v_lshl_add_u32 v{a}, v{a}, 1, v{Gq}")
    e(f"v_lshl_add_u32 v{a}, v{a}, 2, v{CC}")
    e(f"v_lshl_add_u32 v{WTR}, v{a}, 3, s{sRING}")
    e(f"s_lshl_b32 s{sT0}, s{sW}, 1")
    e(f"s_xor_b32 s{sT0}, s{sT0}, s3")
    e(f"s_lshl_b32 s{sT0}, s{sT0}, 4")
    e(f"v_xor_b32 v{a}, s{sT0}, v{J}")
    e(f"v_bfe_u32 v{c}, v{J}, 1, 2")
    e(f"v_lshlrev_b32 v{d}, 1, v{HH}")
    e(f"v_xor_b32 v{c}, v{c}, v{d}")
    e(f"v_lshl_add_u32 v{a}, v{a}, 2, v{c}")
    e(f"v_lshlrev_b32 v{SWR}, 4, v{a}")
    e(f"v_xor_b32 v{TMP}, 16, v{SWR}")
    e("s_mov_b32 vcc_lo, 0")
    e("s_mov_b32 vcc_hi, -1")


def addr_w2(s):
    e = s.e
    L_, J, HH, a, b, c, d, Gq, R, CC, t = range(16, 27)
    e(f"s_lshl_b32 s{sROT2}, s3, 13")
    e(f"s_lshl_b32 s{sT2}, s{sWQ}, 7")
    e(f"s_add_u32 s{SW2}, s{SW2}, s{sT2}")
    e(f"s_addc_u32 s{SW2+1}, s{SW2+1}, 0")
    e(f"s_sub_u32 s{SW2+2}, 131072, s{sT2}")
    e(f"s_mov_b32 s{SW2+3}, 0x20000")
    e(f"v_lshrrev_b32 v{a}, 2, v{J}")
    e(f"v_lshl_add_u32 v{a}, v{a}, 3, v{HH}")
    e(f"v_lshl_add_u32 v{a}, v{a}, 2, v{CC}")
    e(f"v_lshlrev_b32 v{W2DMA0}, 4, v{a}")


def addr_a(s):
    e = s.e
    L_, J, HH, a, b, c, d, Gq, R, CC, t = range(16, 27)
    addr_w2(s)
    e(f"s_mul_i32 s{sT1}, s2, 64000")
    e(f"s_add_u32 s{SO}, s{SO}, s{sT1}")
    e(f"s_addc_u32 s{SO+1}, s{SO+1}, 0")
    e(f"s_mov_b32 s{SO+2}, 64000")
    e(f"s_mov_b32 s{SO+3}, 0x20000")
    e(f"v_lshl_add_u32 v{a}, v{HH}, 2, v{R}")
    e(f"v_lshrrev_b32 v{b}, 1, v{CC}")
    e(f"v_lshl_add_u32 v{b}, v{Gq}, 1, v{b}")
    e(f"v_and_b32 v{c}, 1, v{CC}")
    e(f"v_lshl_add_u32 v{t}, v{a}, 1, v{c}")
    e(f"v_lshl_add_u32 v{t}, v{t}, 2, v{b}")
    e(f"v_lshl_add_u32 v{W2TR0}, v{t}, 3, s{sRING2}")
    e(f"v_lshrrev_b32 v{t}, 1, v{a}")
    e(f"v_xor_b32 v{b}, v{b}, v{t}")
    e(f"v_lshl_add_u32 v{a}, v{a}, 2, v{b}")
    e(f"v_lshl_add_u32 v{a}, v{a}, 1, v{c}")
    e(f"v_lshlrev_b32 v{SRD_}, 3, v{a}")
    e(f"v_sub_u32 v{a}, 1, v{Gq}")
    e(f"v_mul_u32_u24 v{a}, 15, v{a}")
    e(f"v_xor_b32 v{a}, v{a}, v{J}")
    e(f"v_and_b32 v{c}, 7, v{a}")
    e(f"v_xor_b32 v{c}, v{c}, v{d}")
    e(f"v_lshl_add_u32 v{a}, v{a}, 3, v{c}")
    e(f"v_lshl_add_u32 v{OWR}, v{a}, 4, s{sRING2}")
    e(f"v_lshrrev_b32 v{a}, 3, v{L_}")
    e(f"v_xor_b32 v{b}, v{a}, v{L_}")
    e(f"v_lshl_add_u32 v{ORD}, v{b}, 4, s{sRING2}")
    e(f"v_and_b32 v{b}, 7, v{L_}")
    e(f"v_lshl_add_u32 v{b}, v{a}, 5, v{b}")
    e(f"v_lshl_add_u32 v{GST}, v{b}, 4, s{sT2}")


TRANS = ("v_exp_f32", "v_rcp_f32")


def check(lines):
    ins = [l for x in lines for l in x.split("\n") if l and not l.endswith(":") and not l.startswith(".")]
    for p, q in zip(ins, ins[1:]):
        if p.startswith(TRANS) and q.startswith("v_") and not q.startswith(TRANS):
            d = re.match(r"\S+ (v\d+)", p).group(1)
            assert not re.search(r"\b" + d + r"\b", q), (p, q)


def flat(L):
    return [l for x in L for l in x.split("\n")]


def isize(l):
    if l.endswith(":") or l.startswith("."): return 0
    op = l.split()[0]
    if op.startswith(("v_mfma", "ds_", "buffer_", "v_cvt_pk", "v_fmaak", "v_lshl_add", "v_add3", "v_bfe", "s_load", "s_buffer", "s_mem")): return 8
    lits = re.findall(r"(?<![\w\[:(])(-?(?:0x[0-9a-f]+|\d+))(?![\w\].:)])", l.split(None, 1)[1] if " " in l else "")
    if op in ("s_nop", "s_setprio", "s_waitcnt"): return 4
    for x in lits:
        v = int(x, 0)
        if v > 64 or v < -16: return 8
    return 4


def add_pads(la, lb, opt):
    pos = []
    for si, L in enumerate((la, lb)):
        acc = 0; nxt = opt.hop0
        for i, l in enumerate(L):
            acc += isize(l)
            if acc >= nxt and l.startswith("v_") and "exec" not in "".join(L[max(0, i - 4):i + 4]):
                pos.append((acc + si * opt.hopb, si, i)); nxt = acc + opt.hop
    pos.sort()
    n = len(pos); c = opt.nch
    ins = {}
    for k, (_, si, i) in enumerate(pos):
        tgt = f"L_pad{k + c}" if k + c < n else "L_padend"
        ins[(si, i)] = [f"L_pad{k}:", f"s_cbranch_execz {tgt}"]
    res = []
    for si, L in enumerate((la, lb)):
        o = []
        for i, l in enumerate(L):
            o.append(l); o += ins.get((si, i), [])
        res.append(o)
    return res[0], res[1], ["L_padend:", "s_mov_b64 exec, -1", "s_branch L_back"]


def build(opt):
    pro = Stream(opt)
    early(pro)
    sa = Stream(opt); sa.nts = pro.nts; sa.vm = list(pro.vm)
    sb = Stream(opt); sb.nts = pro.nts; sb.vm = ["dw"] * 3
    stream_a(sa)
    stream_b(sb)
    assert sa.L.count("s_barrier") == sb.L.count("s_barrier")
    check(sa.L); check(sb.L)
    ref = open(f"cdna_kernels/{NAME}.s.ref").read().split("\n")
    head = [l for l in ref if l.startswith(";") and "@launch" not in l]
    out = head + ["; @launch grid=(256,1,1) block=(512,1,1) lds=163840",
                  '.amdgcn_target "amdgcn-amd-amdhsa--gfx950"', ".text", f".globl {NAME}_kernel", ".p2align 8",
                  f".type {NAME}_kernel,@function", f"{NAME}_kernel:"]
    la, lb = flat(sa.L), flat(sb.L)
    tail = []
    if opt.hop:
        la, lb, tail = add_pads(la, lb, opt)
    out += pro.L + la + [".p2align 6", "L_grp_b:"] + lb + tail + ["L_done:", "s_endpgm"]
    out += ['.section .rodata,"a"', ".p2align 6", f".amdhsa_kernel {NAME}_kernel",
            "  .amdhsa_next_free_vgpr 256", "  .amdhsa_next_free_sgpr 102", "  .amdhsa_accum_offset 256",
            "  .amdhsa_group_segment_fixed_size 0", "  .amdhsa_kernarg_size 56", "  .amdhsa_user_sgpr_count 2",
            "  .amdhsa_user_sgpr_kernarg_segment_ptr 1", "  .amdhsa_system_sgpr_workgroup_id_x 1",
            ".end_amdhsa_kernel", ""]
    return "\n".join(out)


if __name__ == "__main__":
    ap = argparse.ArgumentParser()
    ap.add_argument("-o", default=f"cdna_kernels/{NAME}.s")
    for k, v in dict(ts=0, probe=-1, tl=0, xnt=1, ont=2, ont3=2, rot=1, pf=20, wnt=0, pnt=0, a0=0, d0=6, d1=6, b0b=9, n=2, hack=0, swp=0, w2p=1, hop=0,
                     b2a=-1, b2b=4, b2c=10, b1a=3, b1b=2, pbg=2, tra=0, wa=2, ninj=6, inj0=14, injc=36, epf=1, b3a=5, b3b=3, b4a=14, b4b=0, b5b=1, b6a=4, xb0=9, xb1=10, xsp0=1, xsp1=1, xn=8, xo=1, pbs=1, xs=0, dx=3, wb=0, lag=5,
                     tog=0, pa0=0, pa1=1, pa2=0, pa3=1, pb0=0, pb1=1, pb2=0, pb3=1).items():
        ap.add_argument("--" + k, type=int, default=v)
    opt = ap.parse_args()
    open(opt.o, "w").write(build(opt))
```

```python
import sys, argparse, re

NAME = "standalone__conformer_conv_module__speech"
LIT = "0xbfb8aa3b"

S_BASE, X_BASE, R3_BASE = 0, 32768, 98304

XRE, XRO, SWR, C0, C1, DWP, DWC, DWN, VC, WDMA, WTR, SRD_, OWR, ORD, GST, TMP = range(16)
F = [16, 20, 24, 28]
G = 32
XF = [32, 36, 40, 44, 48, 52]
XD0, XD1, W2DMA0, W2TR0, XD2, XD3 = 56, 57, 58, 59, 60, 61
ACC = [64, 96]
W1A, W1B = 128, 192

SX, SW1, SW2, SO, SD = 8, 12, 16, 20, 24
sW, sWQ, sROT1, sROT2, sXH0, sXH1, sXM0, sRING, sRING2, sT0, sT1, sT2 = range(28, 40)
SC = 40
sXB = 46
sSH = 47
sTS = 48


class Stream:
    def __init__(self, opt):
        self.L = []; self.vm = []; self.lg = []; self.opt = opt; self.nts = 0

    def e(self, s):
        self.L.append(s)

    def vmop(self, s, tag):
        self.L.append(s); self.vm.append(tag)

    def lgop(self, s, tag):
        self.L.append(s); self.lg.append(tag)

    def _cnt(self, q, tag):
        idx = [i for i, t in enumerate(q) if t == tag]
        if not idx:
            return None
        n = len(q) - 1 - idx[-1]
        del q[:idx[-1] + 1]
        return n

    def wait(self, vm=None, lg=None):
        parts = []
        if vm is not None:
            n = self._cnt(self.vm, vm)
            if n is not None:
                assert n <= 63
                parts.append(f"vmcnt({n})")
        if lg is not None:
            n = self._cnt(self.lg, lg)
            if n is not None:
                parts.append(f"lgkmcnt({min(n, 15)})")
        if parts:
            self.e("s_waitcnt " + " ".join(parts))

    def ts(self, lvl=0):
        if lvl != self.opt.tl and lvl != -1:
            return
        if self.opt.probe >= 0:
            if self.nts == self.opt.probe:
                self.e("s_memrealtime s[94:95]")
            self.nts += 1
        if self.opt.ts:
            op = "s_memtime" if self.opt.ts == 1 else "s_memrealtime"
            assert self.nts < 21
            self.e(f"{op} s[{sTS + 2 * self.nts}:{sTS + 2 * self.nts + 1}]")
            self.nts += 1

    def barrier(self, vm=None, lg=None):
        self.wait(vm=vm, lg=lg)
        self.ts(2)
        self.e("s_barrier")
        self.ts(2)

    def prio(self, p):
        self.e(f"s_setprio {p}")


def vr(a, n):
    return f"v[{a}:{a + n - 1}]"


def mfma(d, a, b, first):
    c = "0" if first else vr(d, 16)
    return f"v_mfma_f32_32x32x16_bf16 {vr(d, 16)}, {vr(a, 4)}, {vr(b, 4)}, {c}"


def x_dma1(s, mm, h, half):
    nt = "nt " if s.opt.xnt else ""
    r = (XD0, XD1, XD2, XD3)[2 * mm + h]
    s.e(f"s_add_u32 m0, s{sXM0}, {mm * 16384 + h * 2048 + half * 1024}")
    s.e("s_nop 0")
    s.vmop(f"buffer_load_dwordx4 v{r}, s[{SX}:{SX+3}], s{sXH0 + half} offen {nt}lds", f"x{half}")


def w_dma1(s, ks, which, part):
    wnt = ["", "nt ", "sc1 ", "sc0 sc1 "][s.opt.wnt]
    if which == 1 and s.opt.hack & 2: return
    slot = (ks & 7) * 2
    ring, rot, step, srd, off = ((sRING, sROT1, 16384, SW1, 512), (sRING2, sROT2, 8192, SW2, 64))[which]
    if which == 1 and s.opt.hack & 4: srd = SW1
    if which == 1 and s.opt.w2p:
        s.e(f"s_add_u32 m0, s{ring}, {(slot + part) * 1024}")
        s.e(f"s_xor_b32 s{sT0}, s{rot}, {ks * step + part * 4096}")
        s.vmop(f"buffer_load_dwordx4 v{WDMA}, s[{srd}:{srd+3}], s{sT0} offen {wnt}lds", f"w{which}{'ab'[part]}{ks}")
    elif part == 0:
        s.e(f"s_add_u32 m0, s{ring}, {slot * 1024}")
        s.e(f"s_xor_b32 s{sT0}, s{rot}, {ks * step}")
        s.vmop(f"buffer_load_dwordx4 v{WDMA}, s[{srd}:{srd+3}], s{sT0} offen {wnt}lds", f"w{which}a{ks}")
        s.e(f"s_add_u32 m0, s{ring}, {slot * 1024 + 1024 - off}")
    else:
        if s.L[-1].startswith("s_add_u32 m0"):
            s.e("s_nop 0")
        s.vmop(f"buffer_load_dwordx4 v{WDMA}, s[{srd}:{srd+3}], s{sT0} offen offset:{off} {wnt}lds", f"w{which}b{ks}")


def w_dma(s, ks, which):
    w_dma1(s, ks, which, 0)
    w_dma1(s, ks, which, 1)


def w_tr1(s, ks, which, part):
    slot = (ks & 7) * 2
    if not (which == 1 and s.opt.hack & 1): s.wait(vm=f"w{which}{'ab'[part]}{ks}")
    base = (W1A, W1B)[part]
    if which == 1 and s.opt.hack & 8: return
    if which == 1 and s.opt.w2p:
        for ct in range(2):
            s.lgop(f"ds_read_b64_tr_b16 {vr((W1A, W1B)[ct] + 4 * ks + 2 * part, 2)}, v{WTR} offset:{(slot + part) * 1024 + ct * 512}", f"w{which}r{ks}")
        return
    for rd in range(2):
        s.lgop(f"ds_read_b64_tr_b16 {vr(base + 4 * ks + 2 * rd, 2)}, v{WTR} offset:{(slot + part) * 1024 + rd * (512 if which else 256)}", f"w{which}r{ks}")


def w_tr(s, ks, which):
    w_tr1(s, ks, which, 0)
    w_tr1(s, ks, which, 1)


def x_read1(s, mp, ks, mm):
    if s.opt.hack & 32 and mp == 1: return
    a = XRO if ks & 1 else XRE
    s.lgop(f"ds_read_b128 {vr(XF[(ks % 3) * 2 + mm], 4)}, v{a} offset:{(2 * mp + mm) * 16384 + (ks >> 1) * 256}", f"xr{mp}_{ks}_{mm}")


def x_read(s, mp, ks):
    for mm in range(2):
        x_read1(s, mp, ks, mm)


def s_read(s, m, ks, f):
    for rd in range(2):
        s.lgop(f"ds_read_b64_tr_b16 {vr(f + 2 * rd, 2)}, v{SRD_} offset:{S_BASE + m * 16384 + ks * 1024 + rd * 512}", f"sr{m}_{ks}")


def g1(s, mp, stream, hook):
    for ks in range(16):
        for mm in range(2):
            f = XF[(ks % 3) * 2 + mm]
            s.wait(lg=f"xr{mp}_{ks}_{1 if stream else mm}")
            if mm == 0 and ks % 4 == 0: s.ts(1)
            s.e(mfma(ACC[mm] + 16, f, W1B + 4 * ks, ks == 0))
            hook(ks, 2 * mm)
            s.e(mfma(ACC[mm], f, W1A + 4 * ks, ks == 0))
            if ks + 2 < 16:
                if stream:
                    w_tr1(s, ks + 2, 0, mm)
                x_read1(s, mp, ks + 2, mm)
            hook(ks, 2 * mm + 1)


def act2(s, mp, hooks, base, toggle, wfrom=0, pk=None, inj=(), inj0=99, injc=0, wonce=-99):
    n = s.opt.n
    ng = 32 // n
    a_in = lambda u: ACC[u >> 4] + (u & 15)
    b = lambda u: ACC[u >> 4] + 16 + (u & 15)
    h = lambda u: C0 if u in (-2, 30) else C1 if u in (-1, 31) else a_in(u)
    hooks = dict(hooks)
    cur = [None]
    pend = []
    pk = pk or (ACC[0] + 16, ACC[1] + 16)
    inj = list(inj); cost = [0]
    def emit(t, j):
        s.e(t)
        if j >= inj0 and inj:
            cost[0] += 8 if t.startswith(TRANS) else 4
            if cost[0] >= injc:
                inj.pop(0)(); cost[0] = 0
    def setp(p):
        if cur[0] != p:
            s.prio(p); cur[0] = p
    hooks = {((k if k >= 0 else ng + 4 + k), t): f for (k, t), f in hooks.items()}
    for j in range(ng + 4):
        e = lambda k: [(j - k) * n + i for i in range(n)] if 0 <= j - k < ng else []
        S = []; T = []
        S += [f"v_mul_f32 v{b(u)}, v{VC}, v{b(u)}" for u in e(0)]
        S += [f"v_mul_f32 v{h(u)}, v{a_in(u)}, v{b(u)}" for u in e(2)]
        if mp == 0 and j == 2:
            S += [f"v_mov_b32 v{C0}, v{a_in(0)}", f"v_mov_b32 v{C1}, v{a_in(0)}"]
        S += [f"v_add_f32 v{b(u)}, 1.0, v{b(u)}" for u in e(1)]
        if mp == 0 and j == 2:
            S += [f"v_permlane32_swap_b32 v{C0}, v{C1}", f"v_cndmask_b32 v{C1}, v{C1}, v{C0}, vcc"]
        S += [f"v_mul_f32 v{b(u)}, v{DWN}, v{h(u)}" for u in e(2)]
        S += [f"v_fmac_f32 v{b(u)}, v{DWC}, v{h(u - 1)}" for u in e(2)]
        S += [f"v_fmac_f32 v{b(u)}, v{DWP}, v{h(u - 2)}" for u in e(2)]
        S += [f"v_fmaak_f32 v{h(u - 2)}, v{VC}, v{h(u - 2)}, {LIT}" for u in e(3)]
        S += [f"v_mul_f32 v{b(u)}, v{b(u)}, v{h(u - 2)}" for u in e(4)]
        T += [f"v_exp_f32 v{b(u)}, v{b(u)}" for u in e(0)]
        T += [f"v_rcp_f32 v{b(u)}, v{b(u)}" for u in e(1)]
        T += [f"v_exp_f32 v{h(u - 2)}, v{b(u)}" for u in e(2)]
        T += [f"v_rcp_f32 v{h(u - 2)}, v{h(u - 2)}" for u in e(3)]
        T += [f"v_cvt_pk_bf16_f32 v{pk[u >> 4] + ((u & 15) >> 1)}, v{b(u)}, v{b(u + 1)}" for u in e(4)[::2]]
        bp = base[0] if j < ng // 2 + 2 else base[1]
        setp(bp)
        if (j, 'S') in hooks: hooks.pop((j, 'S'))()
        if s.opt.hack & 16 and getattr(s, 'isb', 0) and mp == 1: S = []; T = []
        for t in S: emit(t, j)
        if toggle: setp(bp + 1)
        if (j, 'T') in hooks: hooks.pop((j, 'T'))()
        for t in T: emit(t, j)
        done = (j - 3) * n
        if done > 0 and done % 8 == 0:
            mm = (done - 8) >> 4; q = ((done - 8) >> 3) & 1
            pend.append((f"ds_write_b128 v{TMP if q else SWR}, {vr(pk[mm] + 4 * q, 4)} offset:{S_BASE + (2 * mp + mm) * 16384}", f"sw{2 * mp + mm}"))
        if j >= (wfrom if wfrom >= 0 else ng + 4 + wfrom) or j == wonce:
            while pend: s.lgop(*pend.pop(0))
    assert not hooks and not inj, (hooks, len(inj))
    return [(lambda w=w: s.lgop(*w)) for w in pend]


OW = [OWR, XRE, XRO, WDMA]


def epi_ops(s, m, acc):
    nt = ["", " nt", " sc1", " sc0 sc1", " sc0 sc1 nt", " sc1 nt"][s.opt.ont if m < 3 else s.opt.ont3]
    ops = []
    for ct in range(2):
        for q in range(2):
            d = acc + 16 * ct + 4 * q
            def cv(ct=ct, q=q, d=d, lo=0, hi=4):
                for i in range(lo, hi):
                    if s.opt.hack & 64 and m < 3: continue
                    s.e(f"v_cvt_pk_bf16_f32 v{d + i}, v{acc + 16 * ct + 8 * q + 2 * i}, v{acc + 16 * ct + 8 * q + 2 * i + 1}")
            def wr(ct=ct, q=q, d=d):
                if s.opt.hack & 128 and m < 3: return
                s.lgop(f"ds_write_b128 v{OW[2 * ct + q]}, {vr(d, 4)}", f"ow{m}")
            ops += [cv, wr]
    dst = [acc + 8, acc + 12, acc + 24, acc + 28]
    def rd(lo):
        if s.opt.hack & 512 and m < 3: return
        for i in range(lo, lo + 2):
            s.lgop(f"ds_read_b128 {vr(dst[i], 4)}, v{ORD} offset:{i * 1024}", f"or{m}_{i}")
    ops.append(lambda: rd(0))
    ops.append(lambda: rd(2))
    def st(i):
        if s.opt.hack & 256 and m < 3: return
        so = (48 - 16 * m + 8 * i) * 512 if i < 2 else (62 + 16 * m + 8 * (i - 2)) * 512
        s.e(f"s_movk_i32 s{sT1}, {so}" if so < 32768 else f"s_mov_b32 s{sT1}, {so}")
        if m == 0 and i == 1: s.e("s_mov_b32 exec_hi, 0x00ffffff")
        if m == 0 and i == 2: s.e("s_mov_b32 exec_lo, 0xffffff00")
        s.wait(lg=f"or{m}_{i}")
        s.vmop(f"buffer_store_dwordx4 {vr(dst[i], 4)}, v{GST}, s[{SO}:{SO+3}], s{sT1} offen{nt}", f"st{m}")
        if m == 0 and i in (1, 2): s.e("s_mov_b64 exec, -1")
    sts = [(lambda i=i: st(i)) for i in range(4)]
    return ops, sts


def s_read1(s, m, ks, f, rd):
    s.lgop(f"ds_read_b64_tr_b16 {vr(f + 2 * rd, 2)}, v{SRD_} offset:{S_BASE + m * 16384 + ks * 1024 + rd * 512}", f"sr{m}_{ks}")


def g2_ops(s, steps, extra):
    def one(i, ct):
        m, ks, acc, _ = steps[i]
        if ct == 0: s.wait(lg=f"sr{m}_{ks}")
        s.e(mfma(acc + 16 * ct, (W1A, W1B)[ct] + 4 * ks, F[i % 4], ks == 0))
        if i + 3 < len(steps):
            m2, k2, _, pre2 = steps[i + 3]
            if pre2 and ct == 0: pre2()
            if m2 == 0 and k2 >= 8: w_tr1(s, k2, 1, ct)
            s_read1(s, m2, k2, F[(i + 3) % 4], ct)
        if 2 * i + ct in extra: extra.pop(2 * i + ct)()
    return [(lambda i=i, ct=ct: one(i, ct)) for i in range(len(steps)) for ct in range(2)]


def g2_prefetch(s, steps):
    for i in range(3):
        m, ks, _, pre = steps[i]
        assert pre is None
        s_read(s, m, ks, F[i])


def finish(s, grp):
    if s.opt.probe >= 0:
        s.e("s_waitcnt vmcnt(0)")
        s.ts(-1)
        if grp == 1:
            s.e("s_endpgm")
            return
        s.e("s_memrealtime s[96:97]\ns_waitcnt lgkmcnt(0)\ns_sub_u32 s94, s94, s92\ns_lshl_b32 s94, s94, 2")
        s.e(f"L_spin{grp}:")
        s.e("s_memrealtime s[98:99]\ns_waitcnt lgkmcnt(0)\ns_sub_u32 s98, s98, s96\ns_cmp_lt_u32 s98, s94")
        s.e(f"s_cbranch_scc1 L_spin{grp}")
    if s.opt.ts:
        s.e("s_waitcnt vmcnt(0)")
        s.ts(-1)
        s.e("s_memrealtime s[94:95]")
        s.e("s_load_dwordx2 s[96:97], s[0:1], 48")
        s.e("s_waitcnt lgkmcnt(0)")
        s.e("s_mov_b32 s98, 0x100000\ns_mov_b32 s99, 0x20000")
        s.e(f"s_lshl_b32 s3, s2, 3\ns_add_u32 s3, s3, s{sW}\ns_lshl_b32 s3, s3, 7\nv_mov_b32 v1, s3")
        s.e("v_mov_b32 v3, s92\nbuffer_store_dword v3, v1, s[96:99], 0 offen")
        s.e("v_mov_b32 v3, s94\nbuffer_store_dword v3, v1, s[96:99], 0 offen offset:4")
        for m in range(s.nts):
            s.e(f"s_sub_u32 s4, s{sTS + 2 * m}, s{90 if s.opt.ts == 1 else 92}\nv_mov_b32 v3, s4\nbuffer_store_dword v3, v1, s[96:99], 0 offen offset:{8 + 4 * m}")
    s.e("s_endpgm")


def dw_load(s):
    J, HH = 17, 18
    e = s.e
    e(f"s_lshl_b32 s{sT2}, s{sW}, 6")
    e(f"v_lshl_add_u32 v{DWC}, v{J}, 1, s{sT2}")
    e(f"v_lshl_add_u32 v{DWN}, v{HH}, 10, v{DWC}")
    e(f"v_xor_b32 v{DWP}, 1024, v{DWN}")
    e(f"s_mov_b32 s{SD+2}, 1536")
    e(f"s_mov_b32 s{SD+3}, 0x20000")
    s.vmop(f"buffer_load_ushort v{DWC}, v{DWC}, s[{SD}:{SD+3}], 0 offen offset:512", "dw")
    s.vmop(f"buffer_load_ushort v{DWN}, v{DWN}, s[{SD}:{SD+3}], 0 offen", "dw")
    s.vmop(f"buffer_load_ushort v{DWP}, v{DWP}, s[{SD}:{SD+3}], 0 offen", "dw")


def dw_fix(s):
    s.wait(vm="dw")
    for r in (DWP, DWC, DWN):
        s.e(f"v_lshlrev_b32 v{r}, 16, v{r}")
    for r in (DWP, DWC, DWN):
        s.e(f"v_mul_f32 v{r}, v{VC}, v{r}")


def early(s):
    o = s.opt
    e = s.e
    L_, J, HH, a, b, c, d = range(16, 23)
    e("s_cmp_ge_u32 s2, 256")
    e("s_cbranch_scc1 L_done")
    if o.ts or o.probe >= 0:
        e("s_memrealtime s[92:93]")
        e("s_memtime s[90:91]")
    e("s_load_dwordx4 s[4:7], s[0:1], 0")
    e(f"v_readfirstlane_b32 s{sW}, v0")
    e(f"v_and_b32 v{a}, 3, v0")
    e(f"v_bfe_u32 v{c}, v0, 4, 2")
    e(f"v_bfe_u32 v{b}, v0, 2, 2")
    e(f"s_lshr_b32 s3, s2, 3")
    if o.rot == 2:
        e(f"s_xor_b32 s3, s3, s2")
        e(f"s_lshr_b32 s{sT0}, s2, 6")
        e(f"s_xor_b32 s3, s3, s{sT0}")
    e(f"s_and_b32 s3, s3, {7 if o.rot else 0}")
    e(f"s_lshr_b32 s{sW}, s{sW}, 6")
    e(f"s_and_b32 s{sWQ}, s{sW}, 3")
    e(f"s_mov_b32 s{SX+3}, 0x20000")
    if o.pf & 4:
        e(f"s_cmp_lt_u32 s{sW}, 4")
        e("s_cbranch_scc1 L_e0")
        prefetch_code(s)
        e("L_e0:")
    e(f"s_and_b32 s{sT1}, s{sW}, 4")
    e(f"s_add_u32 s{sT1}, s{sT1}, s{sW}")
    e(f"s_add_u32 s{sXM0}, s{sT1}, {X_BASE >> 12}")
    e(f"s_lshl_b32 s{sXM0}, s{sXM0}, 12")
    e(f"v_lshl_add_u32 v{b}, s{sT1}, 2, v{b}")
    e(f"v_lshl_add_u32 v{d}, v{c}, 2, v{a}")
    e(f"s_lshl_b32 s{sT0}, s3, 1")
    e(f"s_and_b32 s{sXH0}, s{sT0}, 8")
    e(f"s_and_b32 s{sT0}, s{sT0}, 6")
    e(f"s_and_b32 s{sRING}, s{sW}, 1")
    e(f"s_add_u32 s{sT0}, s{sT0}, s{sRING}")
    e(f"s_lshl_b32 s{sT0}, s{sT0}, 1")
    e(f"v_xor_b32 v{d}, s{sT0}, v{d}")
    e(f"s_xor_b32 s{sXH1}, s{sXH0}, 8")
    e(f"s_lshl_b32 s{sXH0}, s{sXH0}, 5")
    e(f"s_lshl_b32 s{sXH1}, s{sXH1}, 5")
    e(f"s_lshr_b32 s{sT1}, s2, 7")
    e(f"s_lshl_b32 s{sT0}, s{sT1}, 7")
    e(f"s_sub_u32 s{sT0}, s2, s{sT0}")
    e(f"s_mulk_i32 s{sT0}, 125")
    e(f"s_add_u32 s{sT0}, s{sT0}, 62")
    e(f"v_sub_u32 v{c}, s{sT0}, v{b}")
    e(f"v_add3_u32 v{b}, v{b}, s{sT0}, 1")
    e(f"v_lshl_add_u32 v{XD0}, v{c}, 5, v{d}")
    e(f"v_xor_b32 v{d}, 1, v{d}")
    e(f"v_lshl_add_u32 v{XD1}, v{b}, 5, v{d}")
    e(f"v_lshlrev_b32 v{XD0}, 4, v{XD0}")
    e(f"v_lshlrev_b32 v{XD1}, 4, v{XD1}")
    e(f"s_mov_b32 s{SX+2}, 8192000")
    e(f"s_mul_i32 s{sXB}, s{sT1}, s{SX+2}")
    e(f"v_add_u32 v{XD2}, -8192, v{XD0}")
    e(f"v_add_u32 v{XD3}, 8192, v{XD1}")
    e(f"s_cmp_ge_u32 s{sW}, 4")
    e("s_cbranch_scc1 L_e1")
    e(f"s_mov_b32 m0, s{sXM0}")
    e("s_waitcnt lgkmcnt(0)")
    s.ts(1); s.ts(3)
    e(f"s_add_u32 s{SX}, s4, s{sXB}")
    e(f"s_addc_u32 s{SX+1}, s5, 0")
    nt = "nt " if o.xnt else ""
    cur = 0
    for i in range(o.xn):
        mm, h, half = (i >> 1) & 1, i & 1, i >> 2
        if o.xn == 8 and o.xo: mm, h, half = i >> 2, (i >> 1) & 1, i & 1
        pos = mm * 16384 + h * 2048 + half * 1024
        if i:
            e(f"s_addk_i32 m0, {pos - cur}")
            e("s_nop 0")
        cur = pos
        s.vmop(f"buffer_load_dwordx4 v{(XD0, XD1, XD2, XD3)[2 * mm + h]}, s[{SX}:{SX+3}], s{sXH0 + half} offen {nt}lds", f"x{half}")
    if o.pf & 8:
        e(f"v_and_b32 v{c}, 15, v0")
        e(f"s_mov_b32 s{SC}, s6\ns_mov_b32 s{SC+1}, s7\ns_mov_b32 s{SC+2}, 262144\ns_mov_b32 s{SC+3}, s{SX+3}")
        e(f"v_lshlrev_b32 v{c}, 7, v{c}")
        e(f"s_lshr_b32 s{sT0}, s2, 3\ns_lshl_b32 s{sT0}, s{sT0}, 2\ns_add_u32 s{sT0}, s{sT0}, s{sWQ}\ns_lshl_b32 s{sT0}, s{sT0}, 11")
        s.vmop(f"buffer_load_dword v{C1}, v{c}, s[{SC}:{SC+3}], s{sT0} offen{' nt' if o.pnt else ''}", "pf")
    s.ts(3)
    e("L_e1:")
    e(f"s_load_dwordx2 s[{SD}:{SD+1}], s[0:1], 16")
    e(f"s_load_dwordx2 s[{SW2}:{SW2+1}], s[0:1], 24")
    e(f"s_load_dwordx2 s[{SO}:{SO+1}], s[0:1], 32")
    e(f"v_and_b32 v{L_}, 63, v0")
    e(f"v_and_b32 v{J}, 31, v0")
    e(f"v_bfe_u32 v{HH}, v0, 5, 1")
    e(f"v_lshrrev_b32 v{b}, 2, v{L_}")
    e(f"v_lshl_add_u32 v{b}, v{b}, 6, v{a}")
    e(f"v_lshlrev_b32 v{WDMA}, 4, v{b}")
    e(f"s_lshl_b32 s{sROT1}, s3, 15")
    e(f"s_and_b32 s{sT0}, s{sW}, 2")
    e(f"s_lshl_b32 s{sT0}, s{sT0}, 1")
    e(f"s_add_u32 s{sRING}, s{sRING}, s{sT0}")
    e(f"s_add_u32 s{sRING2}, s{sWQ}, {R3_BASE >> 14}")
    e(f"s_cmp_ge_u32 s{sW}, 4")
    e(f"s_cselect_b32 s{sRING}, s{sRING2}, s{sRING}")
    e(f"s_lshl_b32 s{sRING}, s{sRING}, 14")
    e(f"s_lshl_b32 s{sRING2}, s{sRING2}, 14")
    e(f"s_lshl_b32 s{sT2}, s{sW}, 6")
    e(f"s_sub_u32 s{SW1+2}, 262144, s{sT2}")
    e(f"s_mov_b32 s{SW1+3}, s{SX+3}")
    if o.a0:
        e(f"s_cmp_ge_u32 s{sW}, 4")
        e("s_cbranch_scc1 L_e4")
        e(f"s_add_u32 s{SW1}, s6, s{sT2}")
        e(f"s_addc_u32 s{SW1+1}, s7, 0")
        for ks in range(o.a0):
            w_dma(s, ks, 0)
        e("L_e4:")
    addr_common(s)
    e("s_waitcnt lgkmcnt(0)")
    e(f"s_add_u32 s{SX}, s4, s{sXB}")
    e(f"s_addc_u32 s{SX+1}, s5, 0")
    e(f"s_add_u32 s{SW1}, s6, s{sT2}")
    e(f"s_addc_u32 s{SW1+1}, s7, 0")
    dw_load(s)
    s.ts(3)
    e(f"s_cmp_ge_u32 s{sW}, 4")
    e("s_cbranch_scc1 L_e3")
    for ks in range(o.a0, o.d0):
        w_dma(s, ks, 0)
        i = o.xn + ks - o.xs
        if o.xn <= i < 8: x_dma1(s, (i >> 1) & 1, i & 1, 1)
    s.ts(1)
    s.wait(vm="x0" if o.xn < 8 else "x1")
    if o.pf & 2:
        e("s_branch L_e2")
        e("L_e3:")
        prefetch_w(s)
    else:
        e("L_e3:")
    e("L_e2:")
    s.ts(3)
    s.barrier()
    s.ts(); s.ts(3)
    e(f"s_cmp_ge_u32 s{sW}, 4")
    e("s_cbranch_scc1 L_grp_b")


def stream_a(s):
    o = s.opt
    D = max(o.d0, 6)
    wq = [(k, p) for k in range(o.d0, 16) for p in range(2)]
    s.prio(3)
    for ks in range(2):
        w_tr(s, ks, 0)
        x_read(s, 0, ks)
    late = Stream(o)
    addr_a(late)
    late = late.L
    def hook0(ks, pos):
        if pos in (0, 2) and wq:
            k, p = wq.pop(0); w_dma1(s, k, 0, p)
        if pos == 3:
            i = o.xn + ks + o.d0 - o.xs
            if o.xn <= i < 8: x_dma1(s, (i >> 1) & 1, i & 1, 1)
        if pos == 3 and o.dx <= ks < o.dx + D - o.d0:
            for _ in range(2):
                k, p = wq.pop(0); w_dma1(s, k, 0, p)
        if pos == 0 and ks == 6 and o.xn < 8: s.barrier(vm="x1")
        if pos == 2 and ks == o.b0b: s.barrier()
        if pos == 0 and ks == 16 - D: dw_fix(s)
        if ks > 16 - D and pos in (0, 2):
            for _ in range(5):
                if late: s.e(late.pop(0))
        if pos == 3 and ks == 15:
            assert not late
            s.e(f"v_mov_b32 v{WDMA}, v{W2DMA0}")
            s.e(f"v_mov_b32 v{WTR}, v{W2TR0}")
    g1(s, 0, True, hook0)
    s.ts()
    def pre2():
        s.barrier()
        x_read(s, 1, 0); x_read(s, 1, 1)
    wr = act2(s, 0, {(o.b1a, 'T'): lambda: s.barrier(), (o.b2a, 'S'): pre2}, (o.pa0, o.pa1), o.tog & 1, 99, (F[0], F[2]))
    s.ts()
    s.prio(3)
    dq = [(k, p) for k in range(8) for p in range(2)]
    tq = list(dq)
    def hook1(ks, pos):
        n = 4 * ks + pos
        if n == 24: s.barrier()
        if 25 <= n <= 28: wr[n - 25]()
        if n >= 30 and pos in (0, 2) and dq:
            k, p = dq.pop(0); w_dma1(s, k, 1, p)
        if n >= 30 + 4 * o.lag and pos in (1, 3):
            k, p = tq.pop(0); w_tr1(s, k, 1, p)
    g1(s, 1, False, hook1)
    assert not dq
    s.ts()
    accs = [G, ACC[0], ACC[1], G]
    lo = lambda m, f=None: [(m, ks, accs[m], f if ks == 0 else None) for ks in range(8)]
    hi = lambda m, f=None: [(m, ks, accs[m], f if ks == 8 else None) for ks in range(8, 16)]
    st4 = lo(0) + hi(0) + lo(1) + hi(1) + lo(2) + hi(2, lambda: s.barrier(lg="sw3")) + lo(3)
    def owa():
        for i, x in ((1, 16), (2, 64), (3, 80)): s.e(f"v_xor_b32 v{OW[i]}, {x}, v{OWR}")
        for k, p in tq: w_tr1(s, k, 1, p)
    ex = {}
    gops = g2_ops(s, st4, ex)
    ni = 2 * o.ninj
    assert o.ninj == 0 or o.inj0 >= o.b4a
    wr = act2(s, 1, {(o.b3a - 1 - o.tra, 'T'): owa, (o.b3a, 'S'): lambda: s.barrier(lg="w1r7"), (o.b4a, 'S'): lambda: s.barrier(lg="sw2"),
                     ((o.inj0 - 1, 'T') if ni else (-1, 'S')): lambda: g2_prefetch(s, st4)}, (o.pa2, o.pa3), o.tog & 4, 99,
              None, gops[:ni], o.inj0, o.injc, o.b4a - o.wa)
    assert len(wr) == 2
    s.ts()
    s.prio(3)
    for i in range(2): ex[26 + 2 * i] = wr[i]
    for m in range(3):
        ops, sts = epi_ops(s, m, accs[m])
        if m < 2:
            for i, f in enumerate(ops + [None] + sts):
                n = 32 * m + 34 + 2 * i
                if i < 8 and i % 2 == 0 and o.epf:
                    ex[n - 1] = (lambda f=f: f(hi=1)); ex[n] = (lambda f=f: f(lo=1, hi=3)); ex[n + 1] = (lambda f=f: f(lo=3))
                elif f: ex[n] = f
        else:
            for i, f in enumerate(ops): ex[98 + i] = f
    FF = [ACC[0] + 4 * i for i in range(8)]
    def last(i):
        if i == 0: s.barrier()
        s_read(s, 3, 8 + 2 * i, FF[2 * i]); s_read(s, 3, 9 + 2 * i, FF[2 * i + 1])
    nb = 112 - o.b6a
    for i in range(4):
        if nb + i < 112: ex[nb + i] = (lambda i=i: last(i))
    for f in gops[ni:]: f()
    assert not ex, ex
    s.ts()
    for i in range(4):
        if nb + i >= 112: last(i)
    sts2 = sts
    ops, sts = epi_ops(s, 3, accs[3])
    for i in range(8):
        s.wait(lg=f"sr3_{8 + i}")
        s.e(mfma(accs[3], W1A + 4 * (8 + i), FF[i], False))
        if i < 4: sts2[i]()
    for i in range(8):
        s.e(mfma(accs[3] + 16, W1B + 4 * (8 + i), FF[i], False))
        if 2 <= i < 6: ops[i - 2]()
    s.ts()
    s.e("s_nop 11")
    for f in ops[4:] + sts: f()
    finish(s, 0)


def stream_b(s):
    s.isb = 1
    o = s.opt
    D = o.d1
    jt = 16 // o.n + 4
    dw_fix(s)
    addr_w2(s)
    if o.pf & 16:
        if o.s8:
            s.e(f"v_lshlrev_b32 v{ORD}, 9, v17")
            s.e(f"s_lshl_b32 s{sT1}, s{sSH}, 14")
        else:
            s.e(f"v_and_b32 v{ORD}, 7, v16")
            s.e(f"v_lshlrev_b32 v{ORD}, 9, v{ORD}")
            s.e(f"s_lshr_b32 s{sT1}, s2, 3\ns_lshl_b32 s{sT1}, s{sT1}, 12")
    s.prio(0)
    if o.xn < 8: s.barrier()
    s.barrier()
    for ks in range(D):
        w_dma(s, ks, 0)
    for ks in range(2):
        w_tr(s, ks, 0)
        x_read(s, 0, ks)
    if o.b1b < 0: s.barrier()
    s.ts()
    s.prio(o.pbg)
    assert o.b1b <= o.xb0
    dq = [(k, p) for k in range(D, 16) for p in range(2)]
    xq = {}
    for i in range(8):
        n = 4 * o.xb0 + 3 + o.xsp0 * i if i < 4 else 4 * o.xb1 + 3 + o.xsp1 * (i - 4)
        xq.setdefault(n, []).append(i)
    def hook0(ks, pos):
        if pos == 3 and ks == o.b1b: s.barrier()
        if pos in (0, 2) and dq:
            k, p = dq.pop(0); w_dma1(s, k, 0, p)
        for i in xq.pop(4 * ks + pos, []):
            assert len(dq) % 2 == 0
            x_dma1(s, (i >> 1) & 1, i & 1, i >> 2)
            if i == 7 and o.pf & 16:
                s.vmop(f"buffer_load_dword v{OWR}, v{ORD}, s[{SW2}:{SW2+3}], s{sT1} offen{' nt' if o.pnt else ''}", "pf")
    g1(s, 0, True, hook0)
    assert not dq and not xq
    s.ts()
    def pre():
        x_read(s, 1, 0); x_read(s, 1, 1)
        s.e(f"v_mov_b32 v{WDMA}, v{W2DMA0}")
    wr = act2(s, 0, {(o.b2b, 'S'): lambda: s.barrier(vm="x0"), (o.b2c, 'S'): lambda: s.barrier(vm="x1"), (-2, 'T'): pre},
              (o.pb0, o.pb1), o.tog & 2, 99, (F[0], F[2]))
    s.ts()
    s.prio(3)
    def hook1(ks, pos):
        if pos in (0, 2) and o.wb <= ks < o.wb + 2: wr[2 * (ks - o.wb) + (pos >> 1)]()
        if pos == 3 and ks == o.b3b: s.barrier()
        if pos in (0, 2) and o.b3b < ks <= o.b3b + 8: w_dma1(s, ks - o.b3b + 7, 1, pos >> 1)
    assert o.wb + 2 <= o.b3b + 1
    g1(s, 1, False, hook1)
    s.ts()
    act2(s, 1, {(o.b4b, 'T'): lambda: s.barrier(vm="w1b15", lg="sw1"), (jt + o.b5b, 'T'): lambda: s.barrier(lg="sw2")}, (o.pb2, o.pb3), o.tog & 8)
    s.ts()
    s.barrier(lg="sw3")
    finish(s, 1)


def prefetch_w(s):
    e = s.e
    e(f"v_lshlrev_b32 v{C0}, 7, v16")
    e(f"s_bfe_u32 s{sT0}, s2, 0x50003")
    e(f"s_lshl_b32 s{sT0}, s{sT0}, 2")
    e(f"s_add_u32 s{sT0}, s{sT0}, s{sWQ}")
    e(f"s_lshl_b32 s{sT1}, s{sT0}, 10")
    e(f"s_lshl_b32 s{sT0}, s{sT0}, 11")
    e(f"s_mov_b32 s{SC}, s6\ns_mov_b32 s{SC+1}, s7\ns_mov_b32 s{SC+2}, 262144\ns_mov_b32 s{SC+3}, 0x20000")
    e(f"s_mov_b32 s{SW2+2}, 131072\ns_mov_b32 s{SW2+3}, 0x20000")
    e("s_mov_b64 exec, 0xffff")
    e(f"buffer_load_dword v{C1}, v{C0}, s[{SC}:{SC+3}], s{sT0} offen")
    e("s_mov_b64 exec, 0xff")
    e(f"buffer_load_dword v{OWR}, v{C0}, s[{SW2}:{SW2+3}], s{sT1} offen")
    e("s_mov_b64 exec, -1")


def prefetch_code(s):
    e = s.e
    if s.opt.pbs: e("s_setprio 3")
    e(f"s_getpc_b64 s[{SC}:{SC+1}]")
    e("L_pc:")
    e(f"s_mov_b32 s{SC+2}, L_done-L_pc")
    e(f"s_mov_b32 s{SC+3}, s{SX+3}")
    if s.opt.hw:
        e(f"s_getreg_b32 s{sSH}, hwreg(HW_REG_HW_ID, 8, 3)")
    else:
        e(f"s_mov_b32 s{sSH}, s3")
    e(f"s_lshl_b32 s{sT0}, s{sSH}, 2")
    e(f"s_add_u32 s{sT0}, s{sT0}, s{sWQ}")
    e(f"s_lshl_b32 s{sT0}, s{sT0}, 6")
    e("L_pfl:")
    e(f"s_buffer_load_dword s44, s[{SC}:{SC+3}], s{sT0}")
    e(f"s_buffer_load_dword s45, s[{SC}:{SC+3}], s{sT0} offset:2048")
    e(f"s_addk_i32 s{sT0}, 4096")
    e(f"s_cmp_lt_u32 s{sT0}, s{SC+2}")
    e("s_cbranch_scc1 L_pfl")


def addr_common(s):
    e = s.e
    L_, J, HH, a, b, c, d, Gq, R, CC = range(16, 26)
    e(f"v_mov_b32 v{VC}, {LIT}")
    e(f"v_bfe_u32 v{Gq}, v{L_}, 4, 1")
    e(f"v_bfe_u32 v{R}, v{L_}, 2, 2")
    e(f"v_and_b32 v{CC}, 3, v{L_}")
    e(f"v_lshrrev_b32 v{a}, 2, v{J}")
    e(f"v_xor_b32 v{b}, v{HH}, v{R}")
    e(f"v_lshlrev_b32 v{b}, 4, v{b}")
    e(f"v_lshl_add_u32 v{b}, v{CC}, 6, v{b}")
    e(f"v_add_u32 v{a}, {X_BASE >> 11}, v{a}")
    e(f"v_lshl_add_u32 v{XRE}, v{a}, 11, v{b}")
    e(f"v_xor_b32 v{XRO}, 32, v{XRE}")
    e(f"v_lshl_add_u32 v{a}, v{HH}, 3, v{R}")
    e(f"v_lshl_add_u32 v{a}, v{a}, 1, v{Gq}")
    e(f"v_lshl_add_u32 v{a}, v{a}, 2, v{CC}")
    e(f"v_lshl_add_u32 v{WTR}, v{a}, 3, s{sRING}")
    e(f"s_lshl_b32 s{sT0}, s{sW}, 1")
    e(f"s_xor_b32 s{sT0}, s{sT0}, s3")
    e(f"s_lshl_b32 s{sT0}, s{sT0}, 4")
    e(f"v_xor_b32 v{a}, s{sT0}, v{J}")
    e(f"v_bfe_u32 v{c}, v{J}, 1, 2")
    e(f"v_lshlrev_b32 v{d}, 1, v{HH}")
    e(f"v_xor_b32 v{c}, v{c}, v{d}")
    e(f"v_lshl_add_u32 v{a}, v{a}, 2, v{c}")
    e(f"v_lshlrev_b32 v{SWR}, 4, v{a}")
    e(f"v_xor_b32 v{TMP}, 16, v{SWR}")
    e("s_mov_b32 vcc_lo, 0")
    e("s_mov_b32 vcc_hi, -1")


def addr_w2(s):
    e = s.e
    L_, J, HH, a, b, c, d, Gq, R, CC, t = range(16, 27)
    e(f"s_lshl_b32 s{sROT2}, s3, 13")
    e(f"s_lshl_b32 s{sT2}, s{sWQ}, 7")
    e(f"s_add_u32 s{SW2}, s{SW2}, s{sT2}")
    e(f"s_addc_u32 s{SW2+1}, s{SW2+1}, 0")
    e(f"s_sub_u32 s{SW2+2}, 131072, s{sT2}")
    e(f"s_mov_b32 s{SW2+3}, 0x20000")
    e(f"v_lshrrev_b32 v{a}, 2, v{J}")
    e(f"v_lshl_add_u32 v{a}, v{a}, 3, v{HH}")
    e(f"v_lshl_add_u32 v{a}, v{a}, 2, v{CC}")
    e(f"v_lshlrev_b32 v{W2DMA0}, 4, v{a}")


def addr_a(s):
    e = s.e
    L_, J, HH, a, b, c, d, Gq, R, CC, t = range(16, 27)
    addr_w2(s)
    e(f"s_mul_i32 s{sT1}, s2, 64000")
    e(f"s_add_u32 s{SO}, s{SO}, s{sT1}")
    e(f"s_addc_u32 s{SO+1}, s{SO+1}, 0")
    e(f"s_mov_b32 s{SO+2}, 64000")
    e(f"s_mov_b32 s{SO+3}, 0x20000")
    e(f"v_lshl_add_u32 v{a}, v{HH}, 2, v{R}")
    e(f"v_lshrrev_b32 v{b}, 1, v{CC}")
    e(f"v_lshl_add_u32 v{b}, v{Gq}, 1, v{b}")
    e(f"v_and_b32 v{c}, 1, v{CC}")
    e(f"v_lshl_add_u32 v{t}, v{a}, 1, v{c}")
    e(f"v_lshl_add_u32 v{t}, v{t}, 2, v{b}")
    e(f"v_lshl_add_u32 v{W2TR0}, v{t}, 3, s{sRING2}")
    e(f"v_lshrrev_b32 v{t}, 1, v{a}")
    e(f"v_xor_b32 v{b}, v{b}, v{t}")
    e(f"v_lshl_add_u32 v{a}, v{a}, 2, v{b}")
    e(f"v_lshl_add_u32 v{a}, v{a}, 1, v{c}")
    e(f"v_lshlrev_b32 v{SRD_}, 3, v{a}")
    e(f"v_sub_u32 v{a}, 1, v{Gq}")
    e(f"v_mul_u32_u24 v{a}, 15, v{a}")
    e(f"v_xor_b32 v{a}, v{a}, v{J}")
    e(f"v_and_b32 v{c}, 7, v{a}")
    e(f"v_xor_b32 v{c}, v{c}, v{d}")
    e(f"v_lshl_add_u32 v{a}, v{a}, 3, v{c}")
    e(f"v_lshl_add_u32 v{OWR}, v{a}, 4, s{sRING2}")
    e(f"v_lshrrev_b32 v{a}, 3, v{L_}")
    e(f"v_xor_b32 v{b}, v{a}, v{L_}")
    e(f"v_lshl_add_u32 v{ORD}, v{b}, 4, s{sRING2}")
    e(f"v_and_b32 v{b}, 7, v{L_}")
    e(f"v_lshl_add_u32 v{b}, v{a}, 5, v{b}")
    e(f"v_lshl_add_u32 v{GST}, v{b}, 4, s{sT2}")


TRANS = ("v_exp_f32", "v_rcp_f32")


def check(lines):
    ins = [l for x in lines for l in x.split("\n") if l and not l.endswith(":") and not l.startswith(".")]
    for p, q in zip(ins, ins[1:]):
        if p.startswith(TRANS) and q.startswith("v_") and not q.startswith(TRANS):
            d = re.match(r"\S+ (v\d+)", p).group(1)
            assert not re.search(r"\b" + d + r"\b", q), (p, q)


def flat(L):
    return [l for x in L for l in x.split("\n")]


def isize(l):
    if l.endswith(":") or l.startswith("."): return 0
    op = l.split()[0]
    if op.startswith(("v_mfma", "ds_", "buffer_", "v_cvt_pk", "v_fmaak", "v_lshl_add", "v_add3", "v_bfe", "s_load", "s_buffer", "s_mem")): return 8
    lits = re.findall(r"(?<![\w\[:(])(-?(?:0x[0-9a-f]+|\d+))(?![\w\].:)])", l.split(None, 1)[1] if " " in l else "")
    if op in ("s_nop", "s_setprio", "s_waitcnt"): return 4
    for x in lits:
        v = int(x, 0)
        if v > 64 or v < -16: return 8
    return 4


def add_pads(la, lb, opt):
    pos = []
    for si, L in enumerate((la, lb)):
        acc = 0; nxt = opt.hop0
        for i, l in enumerate(L):
            acc += isize(l)
            if acc >= nxt and l.startswith("v_") and "exec" not in "".join(L[max(0, i - 4):i + 4]):
                pos.append((acc + si * opt.hopb, si, i)); nxt = acc + opt.hop
    pos.sort()
    n = len(pos); c = opt.nch
    ins = {}
    for k, (_, si, i) in enumerate(pos):
        tgt = f"L_pad{k + c}" if k + c < n else "L_padend"
        ins[(si, i)] = [f"L_pad{k}:", f"s_cbranch_execz {tgt}"]
    res = []
    for si, L in enumerate((la, lb)):
        o = []
        for i, l in enumerate(L):
            o.append(l); o += ins.get((si, i), [])
        res.append(o)
    return res[0], res[1], ["L_padend:", "s_mov_b64 exec, -1", "s_branch L_back"]


def build(opt):
    pro = Stream(opt)
    early(pro)
    sa = Stream(opt); sa.nts = pro.nts; sa.vm = list(pro.vm)
    sb = Stream(opt); sb.nts = pro.nts; sb.vm = ["dw"] * 3
    stream_a(sa)
    stream_b(sb)
    assert sa.L.count("s_barrier") == sb.L.count("s_barrier")
    check(sa.L); check(sb.L)
    ref = open(f"cdna_kernels/{NAME}.s.ref").read().split("\n")
    head = [l for l in ref if l.startswith(";") and "@launch" not in l]
    out = head + ["; @launch grid=(256,1,1) block=(512,1,1) lds=163840",
                  '.amdgcn_target "amdgcn-amd-amdhsa--gfx950"', ".text", f".globl {NAME}_kernel", ".p2align 8",
                  f".type {NAME}_kernel,@function", f"{NAME}_kernel:"]
    la, lb = flat(sa.L), flat(sb.L)
    tail = []
    if opt.hop:
        la, lb, tail = add_pads(la, lb, opt)
    out += pro.L + la + [".p2align 6", "L_grp_b:"] + lb + tail + ["L_done:", "s_endpgm"]
    out += ['.section .rodata,"a"', ".p2align 6", f".amdhsa_kernel {NAME}_kernel",
            "  .amdhsa_next_free_vgpr 256", "  .amdhsa_next_free_sgpr 102", "  .amdhsa_accum_offset 256",
            "  .amdhsa_group_segment_fixed_size 0", "  .amdhsa_kernarg_size 56", "  .amdhsa_user_sgpr_count 2",
            "  .amdhsa_user_sgpr_kernarg_segment_ptr 1", "  .amdhsa_system_sgpr_workgroup_id_x 1",
            ".end_amdhsa_kernel", ""]
    return "\n".join(out)


if __name__ == "__main__":
    ap = argparse.ArgumentParser()
    ap.add_argument("-o", default=f"cdna_kernels/{NAME}.s")
    for k, v in dict(ts=0, probe=-1, tl=0, xnt=1, ont=2, ont3=2, rot=1, pf=20, wnt=0, hw=0, s8=0, pnt=0, a0=0, d0=6, d1=6, b0b=9, n=2, hack=0, swp=0, w2p=1, hop=0,
                     b2a=-1, b2b=4, b2c=10, b1a=3, b1b=2, pbg=2, tra=0, wa=2, ninj=6, inj0=14, injc=36, epf=1, b3a=5, b3b=3, b4a=14, b4b=0, b5b=1, b6a=4, xb0=9, xb1=10, xsp0=1, xsp1=1, xn=8, xo=1, pbs=1, xs=0, dx=3, wb=0, lag=5,
                     tog=0, pa0=0, pa1=1, pa2=0, pa3=1, pb0=0, pb1=1, pb2=0, pb3=1).items():
        ap.add_argument("--" + k, type=int, default=v)
    opt = ap.parse_args()
    open(opt.o, "w").write(build(opt))
```

```python
import sys, argparse, re

NAME = "standalone__conformer_conv_module__speech"
LIT = "0xbfb8aa3b"

S_BASE, X_BASE, R3_BASE = 0, 32768, 98304

XRE, XRO, SWR, C0, C1, DWP, DWC, DWN, VC, WDMA, WTR, SRD_, OWR, ORD, GST, TMP = range(16)
F = [16, 20, 24, 28]
G = 32
XF = [32, 36, 40, 44, 48, 52]
XD0, XD1, W2DMA0, W2TR0, XD2, XD3 = 56, 57, 58, 59, 60, 61
ACC = [64, 96]
W1A, W1B = 128, 192

SX, SW1, SW2, SO, SD = 8, 12, 16, 20, 24
sW, sWQ, sROT1, sROT2, sXH0, sXH1, sXM0, sRING, sRING2, sT0, sT1, sT2 = range(28, 40)
SC = 40
sXB = 46
sSH = 47
sTS = 48


class Stream:
    def __init__(self, opt):
        self.L = []; self.vm = []; self.lg = []; self.opt = opt; self.nts = 0

    def e(self, s):
        self.L.append(s)

    def vmop(self, s, tag):
        self.L.append(s); self.vm.append(tag)

    def lgop(self, s, tag):
        self.L.append(s); self.lg.append(tag)

    def _cnt(self, q, tag):
        idx = [i for i, t in enumerate(q) if t == tag]
        if not idx:
            return None
        n = len(q) - 1 - idx[-1]
        del q[:idx[-1] + 1]
        return n

    def wait(self, vm=None, lg=None):
        parts = []
        if vm is not None:
            n = self._cnt(self.vm, vm)
            if n is not None:
                assert n <= 63
                parts.append(f"vmcnt({n})")
        if lg is not None:
            n = self._cnt(self.lg, lg)
            if n is not None:
                parts.append(f"lgkmcnt({min(n, 15)})")
        if parts:
            self.e("s_waitcnt " + " ".join(parts))

    def ts(self, lvl=0):
        if lvl != self.opt.tl and lvl != -1:
            return
        if self.opt.probe >= 0:
            if self.nts == self.opt.probe:
                self.e("s_memrealtime s[94:95]")
            self.nts += 1
        if self.opt.ts:
            op = "s_memtime" if self.opt.ts == 1 else "s_memrealtime"
            assert self.nts < 21
            self.e(f"{op} s[{sTS + 2 * self.nts}:{sTS + 2 * self.nts + 1}]")
            self.nts += 1

    def barrier(self, vm=None, lg=None):
        self.wait(vm=vm, lg=lg)
        self.ts(2)
        self.e("s_barrier")
        self.ts(2)

    def prio(self, p):
        self.e(f"s_setprio {p}")


def vr(a, n):
    return f"v[{a}:{a + n - 1}]"


def mfma(d, a, b, first):
    c = "0" if first else vr(d, 16)
    return f"v_mfma_f32_32x32x16_bf16 {vr(d, 16)}, {vr(a, 4)}, {vr(b, 4)}, {c}"


def x_dma1(s, mm, h, half):
    nt = "nt " if s.opt.xnt else ""
    r = (XD0, XD1, XD2, XD3)[2 * mm + h]
    s.e(f"s_add_u32 m0, s{sXM0}, {mm * 16384 + h * 2048 + half * 1024}")
    s.e("s_nop 0")
    s.vmop(f"buffer_load_dwordx4 v{r}, s[{SX}:{SX+3}], s{sXH0 + half} offen {nt}lds", f"x{half}")


def w_dma1(s, ks, which, part):
    wnt = ["", "nt ", "sc1 ", "sc0 sc1 "][s.opt.wnt]
    if which == 1 and s.opt.hack & 2: return
    slot = (ks & 7) * 2
    ring, rot, step, srd, off = ((sRING, sROT1, 16384, SW1, 512), (sRING2, sROT2, 8192, SW2, 64))[which]
    if which == 1 and s.opt.hack & 4: srd = SW1
    if which == 1 and s.opt.w2p:
        s.e(f"s_add_u32 m0, s{ring}, {(slot + part) * 1024}")
        s.e(f"s_xor_b32 s{sT0}, s{rot}, {ks * step + part * 4096}")
        s.vmop(f"buffer_load_dwordx4 v{WDMA}, s[{srd}:{srd+3}], s{sT0} offen {wnt}lds", f"w{which}{'ab'[part]}{ks}")
    elif part == 0:
        s.e(f"s_add_u32 m0, s{ring}, {slot * 1024}")
        s.e(f"s_xor_b32 s{sT0}, s{rot}, {ks * step}")
        s.vmop(f"buffer_load_dwordx4 v{WDMA}, s[{srd}:{srd+3}], s{sT0} offen {wnt}lds", f"w{which}a{ks}")
        s.e(f"s_add_u32 m0, s{ring}, {slot * 1024 + 1024 - off}")
    else:
        if s.L[-1].startswith("s_add_u32 m0"):
            s.e("s_nop 0")
        s.vmop(f"buffer_load_dwordx4 v{WDMA}, s[{srd}:{srd+3}], s{sT0} offen offset:{off} {wnt}lds", f"w{which}b{ks}")


def w_dma(s, ks, which):
    w_dma1(s, ks, which, 0)
    w_dma1(s, ks, which, 1)


def w_tr1(s, ks, which, part):
    slot = (ks & 7) * 2
    if not (which == 1 and s.opt.hack & 1): s.wait(vm=f"w{which}{'ab'[part]}{ks}")
    base = (W1A, W1B)[part]
    if which == 1 and s.opt.hack & 8: return
    if which == 1 and s.opt.w2p:
        for ct in range(2):
            s.lgop(f"ds_read_b64_tr_b16 {vr((W1A, W1B)[ct] + 4 * ks + 2 * part, 2)}, v{WTR} offset:{(slot + part) * 1024 + ct * 512}", f"w{which}r{ks}")
        return
    for rd in range(2):
        s.lgop(f"ds_read_b64_tr_b16 {vr(base + 4 * ks + 2 * rd, 2)}, v{WTR} offset:{(slot + part) * 1024 + rd * (512 if which else 256)}", f"w{which}r{ks}")


def w_tr(s, ks, which):
    w_tr1(s, ks, which, 0)
    w_tr1(s, ks, which, 1)


def x_read1(s, mp, ks, mm):
    if s.opt.hack & 32 and mp == 1: return
    a = XRO if ks & 1 else XRE
    s.lgop(f"ds_read_b128 {vr(XF[(ks % 3) * 2 + mm], 4)}, v{a} offset:{(2 * mp + mm) * 16384 + (ks >> 1) * 256}", f"xr{mp}_{ks}_{mm}")


def x_read(s, mp, ks):
    for mm in range(2):
        x_read1(s, mp, ks, mm)


def s_read(s, m, ks, f):
    for rd in range(2):
        s.lgop(f"ds_read_b64_tr_b16 {vr(f + 2 * rd, 2)}, v{SRD_} offset:{S_BASE + m * 16384 + ks * 1024 + rd * 512}", f"sr{m}_{ks}")


def g1(s, mp, stream, hook):
    for ks in range(16):
        for mm in range(2):
            f = XF[(ks % 3) * 2 + mm]
            s.wait(lg=f"xr{mp}_{ks}_{1 if stream else mm}")
            if mm == 0 and ks % 4 == 0: s.ts(1)
            s.e(mfma(ACC[mm] + 16, f, W1B + 4 * ks, ks == 0))
            hook(ks, 2 * mm)
            s.e(mfma(ACC[mm], f, W1A + 4 * ks, ks == 0))
            if ks + 2 < 16:
                if stream:
                    w_tr1(s, ks + 2, 0, mm)
                x_read1(s, mp, ks + 2, mm)
            hook(ks, 2 * mm + 1)


def act2(s, mp, hooks, base, toggle, wfrom=0, pk=None, inj=(), inj0=99, injc=0, wonce=-99):
    n = s.opt.n
    ng = 32 // n
    a_in = lambda u: ACC[u >> 4] + (u & 15)
    b = lambda u: ACC[u >> 4] + 16 + (u & 15)
    h = lambda u: C0 if u in (-2, 30) else C1 if u in (-1, 31) else a_in(u)
    hooks = dict(hooks)
    cur = [None]
    pend = []
    pk = pk or (ACC[0] + 16, ACC[1] + 16)
    inj = list(inj); cost = [0]
    def emit(t, j):
        s.e(t)
        if j >= inj0 and inj:
            cost[0] += 8 if t.startswith(TRANS) else 4
            if cost[0] >= injc:
                inj.pop(0)(); cost[0] = 0
    def setp(p):
        if cur[0] != p:
            s.prio(p); cur[0] = p
    hooks = {((k if k >= 0 else ng + 4 + k), t): f for (k, t), f in hooks.items()}
    for j in range(ng + 4):
        e = lambda k: [(j - k) * n + i for i in range(n)] if 0 <= j - k < ng else []
        S = []; T = []
        S += [f"v_mul_f32 v{b(u)}, v{VC}, v{b(u)}" for u in e(0)]
        S += [f"v_mul_f32 v{h(u)}, v{a_in(u)}, v{b(u)}" for u in e(2)]
        if mp == 0 and j == 2:
            S += [f"v_mov_b32 v{C0}, v{a_in(0)}", f"v_mov_b32 v{C1}, v{a_in(0)}"]
        S += [f"v_add_f32 v{b(u)}, 1.0, v{b(u)}" for u in e(1)]
        if mp == 0 and j == 2:
            S += [f"v_permlane32_swap_b32 v{C0}, v{C1}", f"v_cndmask_b32 v{C1}, v{C1}, v{C0}, vcc"]
        S += [f"v_mul_f32 v{b(u)}, v{DWN}, v{h(u)}" for u in e(2)]
        S += [f"v_fmac_f32 v{b(u)}, v{DWC}, v{h(u - 1)}" for u in e(2)]
        S += [f"v_fmac_f32 v{b(u)}, v{DWP}, v{h(u - 2)}" for u in e(2)]
        S += [f"v_fmaak_f32 v{h(u - 2)}, v{VC}, v{h(u - 2)}, {LIT}" for u in e(3)]
        S += [f"v_mul_f32 v{b(u)}, v{b(u)}, v{h(u - 2)}" for u in e(4)]
        T += [f"v_exp_f32 v{b(u)}, v{b(u)}" for u in e(0)]
        T += [f"v_rcp_f32 v{b(u)}, v{b(u)}" for u in e(1)]
        T += [f"v_exp_f32 v{h(u - 2)}, v{b(u)}" for u in e(2)]
        T += [f"v_rcp_f32 v{h(u - 2)}, v{h(u - 2)}" for u in e(3)]
        T += [f"v_cvt_pk_bf16_f32 v{pk[u >> 4] + ((u & 15) >> 1)}, v{b(u)}, v{b(u + 1)}" for u in e(4)[::2]]
        bp = base[0] if j < ng // 2 + 2 else base[1]
        setp(bp)
        if (j, 'S') in hooks: hooks.pop((j, 'S'))()
        if s.opt.hack & 16 and getattr(s, 'isb', 0) and mp == 1: S = []; T = []
        for t in S: emit(t, j)
        if toggle: setp(bp + 1)
        if (j, 'T') in hooks: hooks.pop((j, 'T'))()
        for t in T: emit(t, j)
        done = (j - 3) * n
        if done > 0 and done % 8 == 0:
            mm = (done - 8) >> 4; q = ((done - 8) >> 3) & 1
            pend.append((f"ds_write_b128 v{TMP if q else SWR}, {vr(pk[mm] + 4 * q, 4)} offset:{S_BASE + (2 * mp + mm) * 16384}", f"sw{2 * mp + mm}"))
        if j >= (wfrom if wfrom >= 0 else ng + 4 + wfrom) or j == wonce:
            while pend: s.lgop(*pend.pop(0))
    assert not hooks and not inj, (hooks, len(inj))
    return [(lambda w=w: s.lgop(*w)) for w in pend]


OW = [OWR, XRE, XRO, WDMA]


def epi_ops(s, m, acc):
    nt = ["", " nt", " sc1", " sc0 sc1", " sc0 sc1 nt", " sc1 nt"][s.opt.ont if m < 3 else s.opt.ont3]
    ops = []
    for ct in range(2):
        for q in range(2):
            d = acc + 16 * ct + 4 * q
            def cv(ct=ct, q=q, d=d, lo=0, hi=4):
                for i in range(lo, hi):
                    if s.opt.hack & 64 and m < 3: continue
                    s.e(f"v_cvt_pk_bf16_f32 v{d + i}, v{acc + 16 * ct + 8 * q + 2 * i}, v{acc + 16 * ct + 8 * q + 2 * i + 1}")
            def wr(ct=ct, q=q, d=d):
                if s.opt.hack & 128 and m < 3: return
                s.lgop(f"ds_write_b128 v{OW[2 * ct + q]}, {vr(d, 4)}", f"ow{m}")
            ops += [cv, wr]
    dst = [acc + 8, acc + 12, acc + 24, acc + 28]
    def rd(lo):
        if s.opt.hack & 512 and m < 3: return
        for i in range(lo, lo + 2):
            s.lgop(f"ds_read_b128 {vr(dst[i], 4)}, v{ORD} offset:{i * 1024}", f"or{m}_{i}")
    ops.append(lambda: rd(0))
    ops.append(lambda: rd(2))
    def st(i):
        if s.opt.hack & 256 and m < 3: return
        so = (48 - 16 * m + 8 * i) * 512 if i < 2 else (62 + 16 * m + 8 * (i - 2)) * 512
        s.e(f"s_movk_i32 s{sT1}, {so}" if so < 32768 else f"s_mov_b32 s{sT1}, {so}")
        if m == 0 and i == 1: s.e("s_mov_b32 exec_hi, 0x00ffffff")
        if m == 0 and i == 2: s.e("s_mov_b32 exec_lo, 0xffffff00")
        s.wait(lg=f"or{m}_{i}")
        s.vmop(f"buffer_store_dwordx4 {vr(dst[i], 4)}, v{GST}, s[{SO}:{SO+3}], s{sT1} offen{nt}", f"st{m}")
        if m == 0 and i in (1, 2): s.e("s_mov_b64 exec, -1")
    sts = [(lambda i=i: st(i)) for i in range(4)]
    return ops, sts


def s_read1(s, m, ks, f, rd):
    s.lgop(f"ds_read_b64_tr_b16 {vr(f + 2 * rd, 2)}, v{SRD_} offset:{S_BASE + m * 16384 + ks * 1024 + rd * 512}", f"sr{m}_{ks}")


def g2_ops(s, steps, extra):
    def one(i, ct):
        m, ks, acc, _ = steps[i]
        if ct == 0: s.wait(lg=f"sr{m}_{ks}")
        s.e(mfma(acc + 16 * ct, (W1A, W1B)[ct] + 4 * ks, F[i % 4], ks == 0))
        if i + 3 < len(steps):
            m2, k2, _, pre2 = steps[i + 3]
            if pre2 and ct == 0: pre2()
            if m2 == 0 and k2 >= 8: w_tr1(s, k2, 1, ct)
            s_read1(s, m2, k2, F[(i + 3) % 4], ct)
        if 2 * i + ct in extra: extra.pop(2 * i + ct)()
    return [(lambda i=i, ct=ct: one(i, ct)) for i in range(len(steps)) for ct in range(2)]


def g2_prefetch(s, steps):
    for i in range(3):
        m, ks, _, pre = steps[i]
        assert pre is None
        s_read(s, m, ks, F[i])


def finish(s, grp):
    if s.opt.probe >= 0:
        s.e("s_waitcnt vmcnt(0)")
        s.ts(-1)
        if grp == 1:
            s.e("s_endpgm")
            return
        s.e("s_memrealtime s[96:97]\ns_waitcnt lgkmcnt(0)\ns_sub_u32 s94, s94, s92\ns_lshl_b32 s94, s94, 2")
        s.e(f"L_spin{grp}:")
        s.e("s_memrealtime s[98:99]\ns_waitcnt lgkmcnt(0)\ns_sub_u32 s98, s98, s96\ns_cmp_lt_u32 s98, s94")
        s.e(f"s_cbranch_scc1 L_spin{grp}")
    if s.opt.ts:
        s.e("s_waitcnt vmcnt(0)")
        s.ts(-1)
        s.e("s_memrealtime s[94:95]")
        s.e("s_load_dwordx2 s[96:97], s[0:1], 48")
        s.e("s_waitcnt lgkmcnt(0)")
        s.e("s_mov_b32 s98, 0x100000\ns_mov_b32 s99, 0x20000")
        s.e(f"s_lshl_b32 s3, s2, 3\ns_add_u32 s3, s3, s{sW}\ns_lshl_b32 s3, s3, 7\nv_mov_b32 v1, s3")
        s.e("v_mov_b32 v3, s92\nbuffer_store_dword v3, v1, s[96:99], 0 offen")
        s.e("v_mov_b32 v3, s94\nbuffer_store_dword v3, v1, s[96:99], 0 offen offset:4")
        for m in range(s.nts):
            s.e(f"s_sub_u32 s4, s{sTS + 2 * m}, s{90 if s.opt.ts == 1 else 92}\nv_mov_b32 v3, s4\nbuffer_store_dword v3, v1, s[96:99], 0 offen offset:{8 + 4 * m}")
    s.e("s_endpgm")


def dw_load(s):
    J, HH = 17, 18
    e = s.e
    e(f"s_lshl_b32 s{sT2}, s{sW}, 6")
    e(f"v_lshl_add_u32 v{DWC}, v{J}, 1, s{sT2}")
    e(f"v_lshl_add_u32 v{DWN}, v{HH}, 10, v{DWC}")
    e(f"v_xor_b32 v{DWP}, 1024, v{DWN}")
    e(f"s_mov_b32 s{SD+2}, 1536")
    e(f"s_mov_b32 s{SD+3}, 0x20000")
    s.vmop(f"buffer_load_ushort v{DWC}, v{DWC}, s[{SD}:{SD+3}], 0 offen offset:512", "dw")
    s.vmop(f"buffer_load_ushort v{DWN}, v{DWN}, s[{SD}:{SD+3}], 0 offen", "dw")
    s.vmop(f"buffer_load_ushort v{DWP}, v{DWP}, s[{SD}:{SD+3}], 0 offen", "dw")


def dw_fix(s):
    s.wait(vm="dw")
    for r in (DWP, DWC, DWN):
        s.e(f"v_lshlrev_b32 v{r}, 16, v{r}")
    for r in (DWP, DWC, DWN):
        s.e(f"v_mul_f32 v{r}, v{VC}, v{r}")


def early(s):
    o = s.opt
    e = s.e
    L_, J, HH, a, b, c, d = range(16, 23)
    e("s_cmp_ge_u32 s2, 256")
    e("s_cbranch_scc1 L_done")
    if o.ts or o.probe >= 0:
        e("s_memrealtime s[92:93]")
        e("s_memtime s[90:91]")
    e("s_load_dwordx4 s[4:7], s[0:1], 0")
    e(f"v_readfirstlane_b32 s{sW}, v0")
    e(f"v_and_b32 v{a}, 3, v0")
    e(f"v_bfe_u32 v{c}, v0, 4, 2")
    e(f"v_bfe_u32 v{b}, v0, 2, 2")
    if o.rot == 3:
        e(f"s_mul_i32 s3, s2, 45")
        e(f"s_lshr_b32 s3, s3, 3")
    else:
        e(f"s_lshr_b32 s3, s2, 3")
    if o.rot == 2:
        e(f"s_xor_b32 s3, s3, s2")
        e(f"s_lshr_b32 s{sT0}, s2, 6")
        e(f"s_xor_b32 s3, s3, s{sT0}")
    e(f"s_and_b32 s3, s3, {7 if o.rot else 0}")
    e(f"s_lshr_b32 s{sW}, s{sW}, 6")
    e(f"s_and_b32 s{sWQ}, s{sW}, 3")
    e(f"s_mov_b32 s{SX+3}, 0x20000")
    if o.pf & 4:
        e(f"s_cmp_lt_u32 s{sW}, 4")
        e("s_cbranch_scc1 L_e0")
        prefetch_code(s)
        e("L_e0:")
    e(f"s_and_b32 s{sT1}, s{sW}, 4")
    e(f"s_add_u32 s{sT1}, s{sT1}, s{sW}")
    e(f"s_add_u32 s{sXM0}, s{sT1}, {X_BASE >> 12}")
    e(f"s_lshl_b32 s{sXM0}, s{sXM0}, 12")
    e(f"v_lshl_add_u32 v{b}, s{sT1}, 2, v{b}")
    e(f"v_lshl_add_u32 v{d}, v{c}, 2, v{a}")
    e(f"s_lshl_b32 s{sT0}, s3, 1")
    e(f"s_and_b32 s{sXH0}, s{sT0}, 8")
    e(f"s_and_b32 s{sT0}, s{sT0}, 6")
    e(f"s_and_b32 s{sRING}, s{sW}, 1")
    e(f"s_add_u32 s{sT0}, s{sT0}, s{sRING}")
    e(f"s_lshl_b32 s{sT0}, s{sT0}, 1")
    e(f"v_xor_b32 v{d}, s{sT0}, v{d}")
    e(f"s_xor_b32 s{sXH1}, s{sXH0}, 8")
    e(f"s_lshl_b32 s{sXH0}, s{sXH0}, 5")
    e(f"s_lshl_b32 s{sXH1}, s{sXH1}, 5")
    e(f"s_lshr_b32 s{sT1}, s2, 7")
    e(f"s_lshl_b32 s{sT0}, s{sT1}, 7")
    e(f"s_sub_u32 s{sT0}, s2, s{sT0}")
    e(f"s_mulk_i32 s{sT0}, 125")
    e(f"s_add_u32 s{sT0}, s{sT0}, 62")
    e(f"v_sub_u32 v{c}, s{sT0}, v{b}")
    e(f"v_add3_u32 v{b}, v{b}, s{sT0}, 1")
    e(f"v_lshl_add_u32 v{XD0}, v{c}, 5, v{d}")
    e(f"v_xor_b32 v{d}, 1, v{d}")
    e(f"v_lshl_add_u32 v{XD1}, v{b}, 5, v{d}")
    e(f"v_lshlrev_b32 v{XD0}, 4, v{XD0}")
    e(f"v_lshlrev_b32 v{XD1}, 4, v{XD1}")
    e(f"s_mov_b32 s{SX+2}, 8192000")
    e(f"s_mul_i32 s{sXB}, s{sT1}, s{SX+2}")
    e(f"v_add_u32 v{XD2}, -8192, v{XD0}")
    e(f"v_add_u32 v{XD3}, 8192, v{XD1}")
    e(f"s_cmp_ge_u32 s{sW}, 4")
    e("s_cbranch_scc1 L_e1")
    e(f"s_mov_b32 m0, s{sXM0}")
    e("s_waitcnt lgkmcnt(0)")
    s.ts(1); s.ts(3)
    e(f"s_add_u32 s{SX}, s4, s{sXB}")
    e(f"s_addc_u32 s{SX+1}, s5, 0")
    nt = "nt " if o.xnt else ""
    cur = 0
    for i in range(o.xn):
        mm, h, half = (i >> 1) & 1, i & 1, i >> 2
        if o.xn == 8 and o.xo: mm, h, half = i >> 2, (i >> 1) & 1, i & 1
        pos = mm * 16384 + h * 2048 + half * 1024
        if i:
            e(f"s_addk_i32 m0, {pos - cur}")
            e("s_nop 0")
        cur = pos
        s.vmop(f"buffer_load_dwordx4 v{(XD0, XD1, XD2, XD3)[2 * mm + h]}, s[{SX}:{SX+3}], s{sXH0 + half} offen {nt}lds", f"x{half}")
    if o.pf & 8:
        e(f"v_and_b32 v{c}, 15, v0")
        e(f"s_mov_b32 s{SC}, s6\ns_mov_b32 s{SC+1}, s7\ns_mov_b32 s{SC+2}, 262144\ns_mov_b32 s{SC+3}, s{SX+3}")
        e(f"v_lshlrev_b32 v{c}, 7, v{c}")
        e(f"s_lshr_b32 s{sT0}, s2, 3\ns_lshl_b32 s{sT0}, s{sT0}, 2\ns_add_u32 s{sT0}, s{sT0}, s{sWQ}\ns_lshl_b32 s{sT0}, s{sT0}, 11")
        s.vmop(f"buffer_load_dword v{C1}, v{c}, s[{SC}:{SC+3}], s{sT0} offen{' nt' if o.pnt else ''}", "pf")
    s.ts(3)
    e("L_e1:")
    e(f"s_load_dwordx2 s[{SD}:{SD+1}], s[0:1], 16")
    e(f"s_load_dwordx2 s[{SW2}:{SW2+1}], s[0:1], 24")
    e(f"s_load_dwordx2 s[{SO}:{SO+1}], s[0:1], 32")
    e(f"v_and_b32 v{L_}, 63, v0")
    e(f"v_and_b32 v{J}, 31, v0")
    e(f"v_bfe_u32 v{HH}, v0, 5, 1")
    e(f"v_lshrrev_b32 v{b}, 2, v{L_}")
    e(f"v_lshl_add_u32 v{b}, v{b}, 6, v{a}")
    e(f"v_lshlrev_b32 v{WDMA}, 4, v{b}")
    e(f"s_lshl_b32 s{sROT1}, s3, 15")
    e(f"s_and_b32 s{sT0}, s{sW}, 2")
    e(f"s_lshl_b32 s{sT0}, s{sT0}, 1")
    e(f"s_add_u32 s{sRING}, s{sRING}, s{sT0}")
    e(f"s_add_u32 s{sRING2}, s{sWQ}, {R3_BASE >> 14}")
    e(f"s_cmp_ge_u32 s{sW}, 4")
    e(f"s_cselect_b32 s{sRING}, s{sRING2}, s{sRING}")
    e(f"s_lshl_b32 s{sRING}, s{sRING}, 14")
    e(f"s_lshl_b32 s{sRING2}, s{sRING2}, 14")
    e(f"s_lshl_b32 s{sT2}, s{sW}, 6")
    e(f"s_sub_u32 s{SW1+2}, 262144, s{sT2}")
    e(f"s_mov_b32 s{SW1+3}, s{SX+3}")
    if o.a0:
        e(f"s_cmp_ge_u32 s{sW}, 4")
        e("s_cbranch_scc1 L_e4")
        e(f"s_add_u32 s{SW1}, s6, s{sT2}")
        e(f"s_addc_u32 s{SW1+1}, s7, 0")
        for ks in range(o.a0):
            w_dma(s, ks, 0)
        e("L_e4:")
    addr_common(s)
    e("s_waitcnt lgkmcnt(0)")
    e(f"s_add_u32 s{SX}, s4, s{sXB}")
    e(f"s_addc_u32 s{SX+1}, s5, 0")
    e(f"s_add_u32 s{SW1}, s6, s{sT2}")
    e(f"s_addc_u32 s{SW1+1}, s7, 0")
    dw_load(s)
    s.ts(3)
    e(f"s_cmp_ge_u32 s{sW}, 4")
    e("s_cbranch_scc1 L_e3")
    for ks in range(o.a0, o.d0):
        w_dma(s, ks, 0)
        i = o.xn + ks - o.xs
        if o.xn <= i < 8: x_dma1(s, (i >> 1) & 1, i & 1, 1)
    s.ts(1)
    s.wait(vm="x0" if o.xn < 8 else "x1")
    if o.pf & 2:
        e("s_branch L_e2")
        e("L_e3:")
        prefetch_w(s)
    else:
        e("L_e3:")
    e("L_e2:")
    s.ts(3)
    s.barrier()
    s.ts(); s.ts(3)
    e(f"s_cmp_ge_u32 s{sW}, 4")
    e("s_cbranch_scc1 L_grp_b")


def stream_a(s):
    o = s.opt
    D = max(o.d0, 6)
    wq = [(k, p) for k in range(o.d0, 16) for p in range(2)]
    s.prio(3)
    for ks in range(2):
        w_tr(s, ks, 0)
        x_read(s, 0, ks)
    late = Stream(o)
    addr_a(late)
    late = late.L
    def hook0(ks, pos):
        if pos in (0, 2) and wq:
            k, p = wq.pop(0); w_dma1(s, k, 0, p)
        if pos == 3:
            i = o.xn + ks + o.d0 - o.xs
            if o.xn <= i < 8: x_dma1(s, (i >> 1) & 1, i & 1, 1)
        if pos == 3 and o.dx <= ks < o.dx + D - o.d0:
            for _ in range(2):
                k, p = wq.pop(0); w_dma1(s, k, 0, p)
        if pos == 0 and ks == 6 and o.xn < 8: s.barrier(vm="x1")
        if pos == 2 and ks == o.b0b: s.barrier()
        if pos == 0 and ks == 16 - D: dw_fix(s)
        if ks > 16 - D and pos in (0, 2):
            for _ in range(5):
                if late: s.e(late.pop(0))
        if pos == 3 and ks == 15:
            assert not late
            s.e(f"v_mov_b32 v{WDMA}, v{W2DMA0}")
            s.e(f"v_mov_b32 v{WTR}, v{W2TR0}")
    g1(s, 0, True, hook0)
    s.ts()
    def pre2():
        s.barrier()
        x_read(s, 1, 0); x_read(s, 1, 1)
    wr = act2(s, 0, {(o.b1a, 'T'): lambda: s.barrier(), (o.b2a, 'S'): pre2}, (o.pa0, o.pa1), o.tog & 1, 99, (F[0], F[2]))
    s.ts()
    s.prio(3)
    dq = [(k, p) for k in range(8) for p in range(2)]
    tq = list(dq)
    def hook1(ks, pos):
        n = 4 * ks + pos
        if n == 24: s.barrier()
        if 25 <= n <= 28: wr[n - 25]()
        if n >= 30 and pos in (0, 2) and dq:
            k, p = dq.pop(0); w_dma1(s, k, 1, p)
        if n >= 30 + 4 * o.lag and pos in (1, 3):
            k, p = tq.pop(0); w_tr1(s, k, 1, p)
    g1(s, 1, False, hook1)
    assert not dq
    s.ts()
    accs = [G, ACC[0], ACC[1], G]
    lo = lambda m, f=None: [(m, ks, accs[m], f if ks == 0 else None) for ks in range(8)]
    hi = lambda m, f=None: [(m, ks, accs[m], f if ks == 8 else None) for ks in range(8, 16)]
    st4 = lo(0) + hi(0) + lo(1) + hi(1) + lo(2) + hi(2, lambda: s.barrier(lg="sw3")) + lo(3)
    def owa():
        for i, x in ((1, 16), (2, 64), (3, 80)): s.e(f"v_xor_b32 v{OW[i]}, {x}, v{OWR}")
        for k, p in tq: w_tr1(s, k, 1, p)
    ex = {}
    gops = g2_ops(s, st4, ex)
    ni = 2 * o.ninj
    assert o.ninj == 0 or o.inj0 >= o.b4a
    wr = act2(s, 1, {(o.b3a - 1 - o.tra, 'T'): owa, (o.b3a, 'S'): lambda: s.barrier(lg="w1r7"), (o.b4a, 'S'): lambda: s.barrier(lg="sw2"),
                     ((o.inj0 - 1, 'T') if ni else (-1, 'S')): lambda: g2_prefetch(s, st4)}, (o.pa2, o.pa3), o.tog & 4, 99,
              None, gops[:ni], o.inj0, o.injc, o.b4a - o.wa)
    assert len(wr) == 2
    s.ts()
    s.prio(3)
    for i in range(2): ex[26 + 2 * i] = wr[i]
    for m in range(3):
        ops, sts = epi_ops(s, m, accs[m])
        if m < 2:
            for i, f in enumerate(ops + [None] + sts):
                n = 32 * m + 34 + 2 * i
                if i < 8 and i % 2 == 0 and o.epf:
                    ex[n - 1] = (lambda f=f: f(hi=1)); ex[n] = (lambda f=f: f(lo=1, hi=3)); ex[n + 1] = (lambda f=f: f(lo=3))
                elif f: ex[n] = f
        else:
            for i, f in enumerate(ops): ex[98 + i] = f
    FF = [ACC[0] + 4 * i for i in range(8)]
    def last(i):
        if i == 0: s.barrier()
        s_read(s, 3, 8 + 2 * i, FF[2 * i]); s_read(s, 3, 9 + 2 * i, FF[2 * i + 1])
    nb = 112 - o.b6a
    for i in range(4):
        if nb + i < 112: ex[nb + i] = (lambda i=i: last(i))
    for f in gops[ni:]: f()
    assert not ex, ex
    s.ts()
    for i in range(4):
        if nb + i >= 112: last(i)
    sts2 = sts
    ops, sts = epi_ops(s, 3, accs[3])
    for i in range(8):
        s.wait(lg=f"sr3_{8 + i}")
        s.e(mfma(accs[3], W1A + 4 * (8 + i), FF[i], False))
        if i < 4: sts2[i]()
    for i in range(8):
        s.e(mfma(accs[3] + 16, W1B + 4 * (8 + i), FF[i], False))
        if 2 <= i < 6: ops[i - 2]()
    s.ts()
    s.e("s_nop 11")
    for f in ops[4:] + sts: f()
    finish(s, 0)


def stream_b(s):
    s.isb = 1
    o = s.opt
    D = o.d1
    jt = 16 // o.n + 4
    dw_fix(s)
    addr_w2(s)
    if o.pf & 16:
        if o.s8:
            s.e(f"v_lshlrev_b32 v{ORD}, 9, v17")
            s.e(f"s_lshl_b32 s{sT1}, s{sSH}, 14")
        else:
            s.e(f"v_and_b32 v{ORD}, 7, v16")
            s.e(f"v_lshlrev_b32 v{ORD}, 9, v{ORD}")
            s.e(f"s_lshr_b32 s{sT1}, s2, 3\ns_lshl_b32 s{sT1}, s{sT1}, 12")
    s.prio(0)
    if o.xn < 8: s.barrier()
    s.barrier()
    for ks in range(D):
        w_dma(s, ks, 0)
    for ks in range(2):
        w_tr(s, ks, 0)
        x_read(s, 0, ks)
    if o.b1b < 0: s.barrier()
    s.ts()
    s.prio(o.pbg)
    assert o.b1b <= o.xb0
    def first_pass(xb0, xsp0, xb1, xsp1):
        dq = [(k, p) for k in range(D, 16) for p in range(2)]
        xq = {}
        for i in range(8):
            n = 4 * xb0 + 3 + xsp0 * i if i < 4 else 4 * xb1 + 3 + xsp1 * (i - 4)
            xq.setdefault(n, []).append(i)
        def hook0(ks, pos):
            if pos == 3 and ks == o.b1b: s.barrier()
            if pos in (0, 2) and dq:
                k, p = dq.pop(0); w_dma1(s, k, 0, p)
            for i in xq.pop(4 * ks + pos, []):
                assert len(dq) % 2 == 0
                x_dma1(s, (i >> 1) & 1, i & 1, i >> 2)
            if 4 * ks + pos == 47 and o.pf & 16:
                assert not dq and not xq
                s.vmop(f"buffer_load_dword v{OWR}, v{ORD}, s[{SW2}:{SW2+3}], s{sT1} offen{' nt' if o.pnt else ''}", "pf")
        g1(s, 0, True, hook0)
        assert not dq and not xq
    if o.cls:
        vm, lg, nts = list(s.vm), list(s.lg), s.nts
        s.e(f"s_bitcmp1_b32 s{sSH}, {o.cls - 1}")
        s.e("s_cbranch_scc1 L_cls1")
        assert o.b1b <= o.xe0
        first_pass(o.xe0, 0, o.xe1, 1 if o.xe1 >= 15 - D else 0)
        s.e("s_branch L_cls2")
        s.e("L_cls1:")
        s.vm, s.lg, s.nts = vm, lg, nts
        s.dup = 1
    first_pass(o.xb0, o.xsp0, o.xb1, o.xsp1)
    if o.cls: s.e("L_cls2:")
    s.ts()
    def pre():
        x_read(s, 1, 0); x_read(s, 1, 1)
        s.e(f"v_mov_b32 v{WDMA}, v{W2DMA0}")
    wr = act2(s, 0, {(o.b2b, 'S'): lambda: s.barrier(vm="x0"), (o.b2c, 'S'): lambda: s.barrier(vm="x1"), (-2, 'T'): pre},
              (o.pb0, o.pb1), o.tog & 2, 99, (F[0], F[2]))
    s.ts()
    s.prio(3)
    def hook1(ks, pos):
        if pos in (0, 2) and o.wb <= ks < o.wb + 2: wr[2 * (ks - o.wb) + (pos >> 1)]()
        if pos == 3 and ks == o.b3b: s.barrier()
        if pos in (0, 2) and o.b3b < ks <= o.b3b + 8: w_dma1(s, ks - o.b3b + 7, 1, pos >> 1)
    assert o.wb + 2 <= o.b3b + 1
    g1(s, 1, False, hook1)
    s.ts()
    act2(s, 1, {(o.b4b, 'T'): lambda: s.barrier(vm="w1b15", lg="sw1"), (jt + o.b5b, 'T'): lambda: s.barrier(lg="sw2")}, (o.pb2, o.pb3), o.tog & 8)
    s.ts()
    s.barrier(lg="sw3")
    finish(s, 1)


def prefetch_w(s):
    e = s.e
    e(f"v_lshlrev_b32 v{C0}, 7, v16")
    e(f"s_bfe_u32 s{sT0}, s2, 0x50003")
    e(f"s_lshl_b32 s{sT0}, s{sT0}, 2")
    e(f"s_add_u32 s{sT0}, s{sT0}, s{sWQ}")
    e(f"s_lshl_b32 s{sT1}, s{sT0}, 10")
    e(f"s_lshl_b32 s{sT0}, s{sT0}, 11")
    e(f"s_mov_b32 s{SC}, s6\ns_mov_b32 s{SC+1}, s7\ns_mov_b32 s{SC+2}, 262144\ns_mov_b32 s{SC+3}, 0x20000")
    e(f"s_mov_b32 s{SW2+2}, 131072\ns_mov_b32 s{SW2+3}, 0x20000")
    e("s_mov_b64 exec, 0xffff")
    e(f"buffer_load_dword v{C1}, v{C0}, s[{SC}:{SC+3}], s{sT0} offen")
    e("s_mov_b64 exec, 0xff")
    e(f"buffer_load_dword v{OWR}, v{C0}, s[{SW2}:{SW2+3}], s{sT1} offen")
    e("s_mov_b64 exec, -1")


def prefetch_code(s):
    e = s.e
    if s.opt.pbs: e("s_setprio 3")
    e(f"s_getpc_b64 s[{SC}:{SC+1}]")
    e("L_pc:")
    e(f"s_mov_b32 s{SC+2}, L_done-L_pc")
    e(f"s_mov_b32 s{SC+3}, s{SX+3}")
    if s.opt.hw:
        e(f"s_getreg_b32 s{sSH}, hwreg(HW_REG_HW_ID, 8, 3)")
    else:
        e(f"s_mov_b32 s{sSH}, s3")
    e(f"s_lshl_b32 s{sT0}, s{sSH}, 2")
    e(f"s_add_u32 s{sT0}, s{sT0}, s{sWQ}")
    e(f"s_lshl_b32 s{sT0}, s{sT0}, 6")
    e("L_pfl:")
    e(f"s_buffer_load_dword s44, s[{SC}:{SC+3}], s{sT0}")
    e(f"s_buffer_load_dword s45, s[{SC}:{SC+3}], s{sT0} offset:2048")
    e(f"s_addk_i32 s{sT0}, 4096")
    e(f"s_cmp_lt_u32 s{sT0}, s{SC+2}")
    e("s_cbranch_scc1 L_pfl")


def addr_common(s):
    e = s.e
    L_, J, HH, a, b, c, d, Gq, R, CC = range(16, 26)
    e(f"v_mov_b32 v{VC}, {LIT}")
    e(f"v_bfe_u32 v{Gq}, v{L_}, 4, 1")
    e(f"v_bfe_u32 v{R}, v{L_}, 2, 2")
    e(f"v_and_b32 v{CC}, 3, v{L_}")
    e(f"v_lshrrev_b32 v{a}, 2, v{J}")
    e(f"v_xor_b32 v{b}, v{HH}, v{R}")
    e(f"v_lshlrev_b32 v{b}, 4, v{b}")
    e(f"v_lshl_add_u32 v{b}, v{CC}, 6, v{b}")
    e(f"v_add_u32 v{a}, {X_BASE >> 11}, v{a}")
    e(f"v_lshl_add_u32 v{XRE}, v{a}, 11, v{b}")
    e(f"v_xor_b32 v{XRO}, 32, v{XRE}")
    e(f"v_lshl_add_u32 v{a}, v{HH}, 3, v{R}")
    e(f"v_lshl_add_u32 v{a}, v{a}, 1, v{Gq}")
    e(f"v_lshl_add_u32 v{a}, v{a}, 2, v{CC}")
    e(f"v_lshl_add_u32 v{WTR}, v{a}, 3, s{sRING}")
    e(f"s_lshl_b32 s{sT0}, s{sW}, 1")
    e(f"s_xor_b32 s{sT0}, s{sT0}, s3")
    e(f"s_lshl_b32 s{sT0}, s{sT0}, 4")
    e(f"v_xor_b32 v{a}, s{sT0}, v{J}")
    e(f"v_bfe_u32 v{c}, v{J}, 1, 2")
    e(f"v_lshlrev_b32 v{d}, 1, v{HH}")
    e(f"v_xor_b32 v{c}, v{c}, v{d}")
    e(f"v_lshl_add_u32 v{a}, v{a}, 2, v{c}")
    e(f"v_lshlrev_b32 v{SWR}, 4, v{a}")
    e(f"v_xor_b32 v{TMP}, 16, v{SWR}")
    e("s_mov_b32 vcc_lo, 0")
    e("s_mov_b32 vcc_hi, -1")


def addr_w2(s):
    e = s.e
    L_, J, HH, a, b, c, d, Gq, R, CC, t = range(16, 27)
    e(f"s_lshl_b32 s{sROT2}, s3, 13")
    e(f"s_lshl_b32 s{sT2}, s{sWQ}, 7")
    e(f"s_add_u32 s{SW2}, s{SW2}, s{sT2}")
    e(f"s_addc_u32 s{SW2+1}, s{SW2+1}, 0")
    e(f"s_sub_u32 s{SW2+2}, 131072, s{sT2}")
    e(f"s_mov_b32 s{SW2+3}, 0x20000")
    e(f"v_lshrrev_b32 v{a}, 2, v{J}")
    e(f"v_lshl_add_u32 v{a}, v{a}, 3, v{HH}")
    e(f"v_lshl_add_u32 v{a}, v{a}, 2, v{CC}")
    e(f"v_lshlrev_b32 v{W2DMA0}, 4, v{a}")


def addr_a(s):
    e = s.e
    L_, J, HH, a, b, c, d, Gq, R, CC, t = range(16, 27)
    addr_w2(s)
    e(f"s_mul_i32 s{sT1}, s2, 64000")
    e(f"s_add_u32 s{SO}, s{SO}, s{sT1}")
    e(f"s_addc_u32 s{SO+1}, s{SO+1}, 0")
    e(f"s_mov_b32 s{SO+2}, 64000")
    e(f"s_mov_b32 s{SO+3}, 0x20000")
    e(f"v_lshl_add_u32 v{a}, v{HH}, 2, v{R}")
    e(f"v_lshrrev_b32 v{b}, 1, v{CC}")
    e(f"v_lshl_add_u32 v{b}, v{Gq}, 1, v{b}")
    e(f"v_and_b32 v{c}, 1, v{CC}")
    e(f"v_lshl_add_u32 v{t}, v{a}, 1, v{c}")
    e(f"v_lshl_add_u32 v{t}, v{t}, 2, v{b}")
    e(f"v_lshl_add_u32 v{W2TR0}, v{t}, 3, s{sRING2}")
    e(f"v_lshrrev_b32 v{t}, 1, v{a}")
    e(f"v_xor_b32 v{b}, v{b}, v{t}")
    e(f"v_lshl_add_u32 v{a}, v{a}, 2, v{b}")
    e(f"v_lshl_add_u32 v{a}, v{a}, 1, v{c}")
    e(f"v_lshlrev_b32 v{SRD_}, 3, v{a}")
    e(f"v_sub_u32 v{a}, 1, v{Gq}")
    e(f"v_mul_u32_u24 v{a}, 15, v{a}")
    e(f"v_xor_b32 v{a}, v{a}, v{J}")
    e(f"v_and_b32 v{c}, 7, v{a}")
    e(f"v_xor_b32 v{c}, v{c}, v{d}")
    e(f"v_lshl_add_u32 v{a}, v{a}, 3, v{c}")
    e(f"v_lshl_add_u32 v{OWR}, v{a}, 4, s{sRING2}")
    e(f"v_lshrrev_b32 v{a}, 3, v{L_}")
    e(f"v_xor_b32 v{b}, v{a}, v{L_}")
    e(f"v_lshl_add_u32 v{ORD}, v{b}, 4, s{sRING2}")
    e(f"v_and_b32 v{b}, 7, v{L_}")
    e(f"v_lshl_add_u32 v{b}, v{a}, 5, v{b}")
    e(f"v_lshl_add_u32 v{GST}, v{b}, 4, s{sT2}")


TRANS = ("v_exp_f32", "v_rcp_f32")


def check(lines):
    ins = [l for x in lines for l in x.split("\n") if l and not l.endswith(":") and not l.startswith(".")]
    for p, q in zip(ins, ins[1:]):
        if p.startswith(TRANS) and q.startswith("v_") and not q.startswith(TRANS):
            d = re.match(r"\S+ (v\d+)", p).group(1)
            assert not re.search(r"\b" + d + r"\b", q), (p, q)


def flat(L):
    return [l for x in L for l in x.split("\n")]


def isize(l):
    if l.endswith(":") or l.startswith("."): return 0
    op = l.split()[0]
    if op.startswith(("v_mfma", "ds_", "buffer_", "v_cvt_pk", "v_fmaak", "v_lshl_add", "v_add3", "v_bfe", "s_load", "s_buffer", "s_mem")): return 8
    lits = re.findall(r"(?<![\w\[:(])(-?(?:0x[0-9a-f]+|\d+))(?![\w\].:)])", l.split(None, 1)[1] if " " in l else "")
    if op in ("s_nop", "s_setprio", "s_waitcnt"): return 4
    for x in lits:
        v = int(x, 0)
        if v > 64 or v < -16: return 8
    return 4


def add_pads(la, lb, opt):
    pos = []
    for si, L in enumerate((la, lb)):
        acc = 0; nxt = opt.hop0
        for i, l in enumerate(L):
            acc += isize(l)
            if acc >= nxt and l.startswith("v_") and "exec" not in "".join(L[max(0, i - 4):i + 4]):
                pos.append((acc + si * opt.hopb, si, i)); nxt = acc + opt.hop
    pos.sort()
    n = len(pos); c = opt.nch
    ins = {}
    for k, (_, si, i) in enumerate(pos):
        tgt = f"L_pad{k + c}" if k + c < n else "L_padend"
        ins[(si, i)] = [f"L_pad{k}:", f"s_cbranch_execz {tgt}"]
    res = []
    for si, L in enumerate((la, lb)):
        o = []
        for i, l in enumerate(L):
            o.append(l); o += ins.get((si, i), [])
        res.append(o)
    return res[0], res[1], ["L_padend:", "s_mov_b64 exec, -1", "s_branch L_back"]


def build(opt):
    pro = Stream(opt)
    early(pro)
    sa = Stream(opt); sa.nts = pro.nts; sa.vm = list(pro.vm)
    sb = Stream(opt); sb.nts = pro.nts; sb.vm = ["dw"] * 3
    stream_a(sa)
    stream_b(sb)
    assert sa.L.count("s_barrier") == sb.L.count("s_barrier") - (getattr(sb, "dup", 0) if opt.b1b >= 0 else 0)
    check(sa.L); check(sb.L)
    ref = open(f"cdna_kernels/{NAME}.s.ref").read().split("\n")
    head = [l for l in ref if l.startswith(";") and "@launch" not in l]
    out = head + ["; @launch grid=(256,1,1) block=(512,1,1) lds=163840",
                  '.amdgcn_target "amdgcn-amd-amdhsa--gfx950"', ".text", f".globl {NAME}_kernel", ".p2align 8",
                  f".type {NAME}_kernel,@function", f"{NAME}_kernel:"]
    la, lb = flat(sa.L), flat(sb.L)
    tail = []
    if opt.hop:
        la, lb, tail = add_pads(la, lb, opt)
    out += pro.L + la + [".p2align 6", "L_grp_b:"] + lb + tail + ["L_done:", "s_endpgm"]
    out += ['.section .rodata,"a"', ".p2align 6", f".amdhsa_kernel {NAME}_kernel",
            "  .amdhsa_next_free_vgpr 256", "  .amdhsa_next_free_sgpr 102", "  .amdhsa_accum_offset 256",
            "  .amdhsa_group_segment_fixed_size 0", "  .amdhsa_kernarg_size 56", "  .amdhsa_user_sgpr_count 2",
            "  .amdhsa_user_sgpr_kernarg_segment_ptr 1", "  .amdhsa_system_sgpr_workgroup_id_x 1",
            ".end_amdhsa_kernel", ""]
    return "\n".join(out)


if __name__ == "__main__":
    ap = argparse.ArgumentParser()
    ap.add_argument("-o", default=f"cdna_kernels/{NAME}.s")
    for k, v in dict(ts=0, probe=-1, tl=0, xnt=1, ont=2, ont3=2, rot=3, pf=20, wnt=0, hw=1, cls=2, xe0=2, xe1=10, s8=1, pnt=0, a0=0, d0=6, d1=6, b0b=9, n=2, hack=0, swp=0, w2p=1, hop=0,
                     b2a=-1, b2b=2, b2c=8, b1a=3, b1b=2, pbg=2, tra=0, wa=2, ninj=6, inj0=14, injc=36, epf=1, b3a=5, b3b=3, b4a=14, b4b=0, b5b=1, b6a=4, xb0=9, xb1=10, xsp0=1, xsp1=1, xn=8, xo=1, pbs=1, xs=0, dx=3, wb=0, lag=5,
                     tog=0, pa0=0, pa1=1, pa2=0, pa3=1, pb0=0, pb1=1, pb2=0, pb3=1).items():
        ap.add_argument("--" + k, type=int, default=v)
    opt = ap.parse_args()
    open(opt.o, "w").write(build(opt))
```

```python
import sys, argparse, re

NAME = "standalone__conformer_conv_module__speech"
LIT = "0xbfb8aa3b"

S_BASE, X_BASE, R3_BASE = 0, 32768, 98304

XRE, XRO, SWR, C0, C1, DWP, DWC, DWN, VC, WDMA, WTR, SRD_, OWR, ORD, GST, TMP = range(16)
F = [16, 20, 24, 28]
G = 32
XF = [32, 36, 40, 44, 48, 52]
XD0, XD1, W2DMA0, W2TR0, XD2, XD3 = 56, 57, 58, 59, 60, 61
ACC = [64, 96]
W1A, W1B = 128, 192

SX, SW1, SW2, SO, SD = 8, 12, 16, 20, 24
sW, sWQ, sROT1, sROT2, sXH0, sXH1, sXM0, sRING, sRING2, sT0, sT1, sT2 = range(28, 40)
SC = 40
sXB = 46
sSH = 47
sTS = 48


class Stream:
    def __init__(self, opt):
        self.L = []; self.vm = []; self.lg = []; self.opt = opt; self.nts = 0

    def e(self, s):
        self.L.append(s)

    def vmop(self, s, tag):
        self.L.append(s); self.vm.append(tag)

    def lgop(self, s, tag):
        self.L.append(s); self.lg.append(tag)

    def _cnt(self, q, tag):
        idx = [i for i, t in enumerate(q) if t == tag]
        if not idx:
            return None
        n = len(q) - 1 - idx[-1]
        del q[:idx[-1] + 1]
        return n

    def wait(self, vm=None, lg=None):
        parts = []
        if vm is not None:
            n = self._cnt(self.vm, vm)
            if n is not None:
                assert n <= 63
                parts.append(f"vmcnt({n})")
        if lg is not None:
            n = self._cnt(self.lg, lg)
            if n is not None:
                parts.append(f"lgkmcnt({min(n, 15)})")
        if parts:
            self.e("s_waitcnt " + " ".join(parts))

    def ts(self, lvl=0):
        if lvl != self.opt.tl and lvl != -1:
            return
        if self.opt.probe >= 0:
            if self.nts == self.opt.probe:
                self.e("s_memrealtime s[94:95]")
            self.nts += 1
        if self.opt.ts:
            op = "s_memtime" if self.opt.ts == 1 else "s_memrealtime"
            assert self.nts < 21
            self.e(f"{op} s[{sTS + 2 * self.nts}:{sTS + 2 * self.nts + 1}]")
            self.nts += 1

    def barrier(self, vm=None, lg=None):
        self.wait(vm=vm, lg=lg)
        self.ts(2)
        self.e("s_barrier")
        self.ts(2)

    def prio(self, p):
        self.e(f"s_setprio {p}")


def vr(a, n):
    return f"v[{a}:{a + n - 1}]"


def mfma(d, a, b, first):
    c = "0" if first else vr(d, 16)
    return f"v_mfma_f32_32x32x16_bf16 {vr(d, 16)}, {vr(a, 4)}, {vr(b, 4)}, {c}"


def x_dma1(s, mm, h, half):
    nt = "nt " if s.opt.xnt else ""
    r = (XD0, XD1, XD2, XD3)[2 * mm + h]
    s.e(f"s_add_u32 m0, s{sXM0}, {mm * 16384 + h * 2048 + half * 1024}")
    s.e("s_nop 0")
    s.vmop(f"buffer_load_dwordx4 v{r}, s[{SX}:{SX+3}], s{sXH0 + half} offen {nt}lds", f"x{half}")


def w_dma1(s, ks, which, part):
    wnt = ["", "nt ", "sc1 ", "sc0 sc1 "][s.opt.wnt]
    if which == 1 and s.opt.hack & 2: return
    slot = (ks & 7) * 2
    ring, rot, step, srd, off = ((sRING, sROT1, 16384, SW1, 512), (sRING2, sROT2, 8192, SW2, 64))[which]
    if which == 1 and s.opt.hack & 4: srd = SW1
    if which == 1 and s.opt.w2p:
        s.e(f"s_add_u32 m0, s{ring}, {(slot + part) * 1024}")
        s.e(f"s_xor_b32 s{sT0}, s{rot}, {ks * step + part * 4096}")
        s.vmop(f"buffer_load_dwordx4 v{WDMA}, s[{srd}:{srd+3}], s{sT0} offen {wnt}lds", f"w{which}{'ab'[part]}{ks}")
    elif part == 0:
        s.e(f"s_add_u32 m0, s{ring}, {slot * 1024}")
        s.e(f"s_xor_b32 s{sT0}, s{rot}, {ks * step}")
        s.vmop(f"buffer_load_dwordx4 v{WDMA}, s[{srd}:{srd+3}], s{sT0} offen {wnt}lds", f"w{which}a{ks}")
        s.e(f"s_add_u32 m0, s{ring}, {slot * 1024 + 1024 - off}")
    else:
        if s.L[-1].startswith("s_add_u32 m0"):
            s.e("s_nop 0")
        s.vmop(f"buffer_load_dwordx4 v{WDMA}, s[{srd}:{srd+3}], s{sT0} offen offset:{off} {wnt}lds", f"w{which}b{ks}")


def w_dma(s, ks, which):
    w_dma1(s, ks, which, 0)
    w_dma1(s, ks, which, 1)


def w_tr1(s, ks, which, part):
    slot = (ks & 7) * 2
    if not (which == 1 and s.opt.hack & 1): s.wait(vm=f"w{which}{'ab'[part]}{ks}")
    base = (W1A, W1B)[part]
    if which == 1 and s.opt.hack & 8: return
    if which == 1 and s.opt.w2p:
        for ct in range(2):
            s.lgop(f"ds_read_b64_tr_b16 {vr((W1A, W1B)[ct] + 4 * ks + 2 * part, 2)}, v{WTR} offset:{(slot + part) * 1024 + ct * 512}", f"w{which}r{ks}")
        return
    for rd in range(2):
        s.lgop(f"ds_read_b64_tr_b16 {vr(base + 4 * ks + 2 * rd, 2)}, v{WTR} offset:{(slot + part) * 1024 + rd * (512 if which else 256)}", f"w{which}r{ks}")


def w_tr(s, ks, which):
    w_tr1(s, ks, which, 0)
    w_tr1(s, ks, which, 1)


def x_read1(s, mp, ks, mm):
    if s.opt.hack & 32 and mp == 1: return
    a = XRO if ks & 1 else XRE
    s.lgop(f"ds_read_b128 {vr(XF[(ks % 3) * 2 + mm], 4)}, v{a} offset:{(2 * mp + mm) * 16384 + (ks >> 1) * 256}", f"xr{mp}_{ks}_{mm}")


def x_read(s, mp, ks):
    for mm in range(2):
        x_read1(s, mp, ks, mm)


def s_read(s, m, ks, f):
    for rd in range(2):
        s.lgop(f"ds_read_b64_tr_b16 {vr(f + 2 * rd, 2)}, v{SRD_} offset:{S_BASE + m * 16384 + ks * 1024 + rd * 512}", f"sr{m}_{ks}")


def g1(s, mp, stream, hook):
    for ks in range(16):
        for mm in range(2):
            f = XF[(ks % 3) * 2 + mm]
            s.wait(lg=f"xr{mp}_{ks}_{1 if stream else mm}")
            if mm == 0 and ks % 4 == 0: s.ts(1)
            s.e(mfma(ACC[mm] + 16, f, W1B + 4 * ks, ks == 0))
            hook(ks, 2 * mm)
            s.e(mfma(ACC[mm], f, W1A + 4 * ks, ks == 0))
            if ks + 2 < 16:
                if stream:
                    w_tr1(s, ks + 2, 0, mm)
                x_read1(s, mp, ks + 2, mm)
            hook(ks, 2 * mm + 1)


def act2(s, mp, hooks, base, toggle, wfrom=0, pk=None, inj=(), inj0=99, injc=0, wonce=-99):
    n = s.opt.n
    ng = 32 // n
    a_in = lambda u: ACC[u >> 4] + (u & 15)
    b = lambda u: ACC[u >> 4] + 16 + (u & 15)
    h = lambda u: C0 if u in (-2, 30) else C1 if u in (-1, 31) else a_in(u)
    hooks = dict(hooks)
    cur = [None]
    pend = []
    pk = pk or (ACC[0] + 16, ACC[1] + 16)
    inj = list(inj); cost = [0]
    def emit(t, j):
        s.e(t)
        if j >= inj0 and inj:
            cost[0] += 8 if t.startswith(TRANS) else 4
            if cost[0] >= injc:
                inj.pop(0)(); cost[0] = 0
    def setp(p):
        if cur[0] != p:
            s.prio(p); cur[0] = p
    hooks = {((k if k >= 0 else ng + 4 + k), t): f for (k, t), f in hooks.items()}
    for j in range(ng + 4):
        e = lambda k: [(j - k) * n + i for i in range(n)] if 0 <= j - k < ng else []
        S = []; T = []
        S += [f"v_mul_f32 v{b(u)}, v{VC}, v{b(u)}" for u in e(0)]
        S += [f"v_mul_f32 v{h(u)}, v{a_in(u)}, v{b(u)}" for u in e(2)]
        if mp == 0 and j == 2:
            S += [f"v_mov_b32 v{C0}, v{a_in(0)}", f"v_mov_b32 v{C1}, v{a_in(0)}"]
        S += [f"v_add_f32 v{b(u)}, 1.0, v{b(u)}" for u in e(1)]
        if mp == 0 and j == 2:
            S += [f"v_permlane32_swap_b32 v{C0}, v{C1}", f"v_cndmask_b32 v{C1}, v{C1}, v{C0}, vcc"]
        S += [f"v_mul_f32 v{b(u)}, v{DWN}, v{h(u)}" for u in e(2)]
        S += [f"v_fmac_f32 v{b(u)}, v{DWC}, v{h(u - 1)}" for u in e(2)]
        S += [f"v_fmac_f32 v{b(u)}, v{DWP}, v{h(u - 2)}" for u in e(2)]
        S += [f"v_fmaak_f32 v{h(u - 2)}, v{VC}, v{h(u - 2)}, {LIT}" for u in e(3)]
        S += [f"v_mul_f32 v{b(u)}, v{b(u)}, v{h(u - 2)}" for u in e(4)]
        T += [f"v_exp_f32 v{b(u)}, v{b(u)}" for u in e(0)]
        T += [f"v_rcp_f32 v{b(u)}, v{b(u)}" for u in e(1)]
        T += [f"v_exp_f32 v{h(u - 2)}, v{b(u)}" for u in e(2)]
        T += [f"v_rcp_f32 v{h(u - 2)}, v{h(u - 2)}" for u in e(3)]
        T += [f"v_cvt_pk_bf16_f32 v{pk[u >> 4] + ((u & 15) >> 1)}, v{b(u)}, v{b(u + 1)}" for u in e(4)[::2]]
        bp = base[0] if j < ng // 2 + 2 else base[1]
        setp(bp)
        if (j, 'S') in hooks: hooks.pop((j, 'S'))()
        if s.opt.hack & 16 and getattr(s, 'isb', 0) and mp == 1: S = []; T = []
        for t in S: emit(t, j)
        if toggle: setp(bp + 1)
        if (j, 'T') in hooks: hooks.pop((j, 'T'))()
        for t in T: emit(t, j)
        done = (j - 3) * n
        if done > 0 and done % 8 == 0:
            mm = (done - 8) >> 4; q = ((done - 8) >> 3) & 1
            pend.append((f"ds_write_b128 v{TMP if q else SWR}, {vr(pk[mm] + 4 * q, 4)} offset:{S_BASE + (2 * mp + mm) * 16384}", f"sw{2 * mp + mm}"))
        if j >= (wfrom if wfrom >= 0 else ng + 4 + wfrom) or j == wonce:
            while pend: s.lgop(*pend.pop(0))
    assert not hooks and not inj, (hooks, len(inj))
    return [(lambda w=w: s.lgop(*w)) for w in pend]


OW = [OWR, XRE, XRO, WDMA]


def epi_ops(s, m, acc):
    nt = ["", " nt", " sc1", " sc0 sc1", " sc0 sc1 nt", " sc1 nt"][s.opt.ont if m < 3 else s.opt.ont3]
    ops = []
    for ct in range(2):
        for q in range(2):
            d = acc + 16 * ct + 4 * q
            def cv(ct=ct, q=q, d=d, lo=0, hi=4):
                for i in range(lo, hi):
                    if s.opt.hack & 64 and m < 3: continue
                    s.e(f"v_cvt_pk_bf16_f32 v{d + i}, v{acc + 16 * ct + 8 * q + 2 * i}, v{acc + 16 * ct + 8 * q + 2 * i + 1}")
            def wr(ct=ct, q=q, d=d):
                if s.opt.hack & 128 and m < 3: return
                s.lgop(f"ds_write_b128 v{OW[2 * ct + q]}, {vr(d, 4)}", f"ow{m}")
            ops += [cv, wr]
    dst = [acc + 8, acc + 12, acc + 24, acc + 28]
    def rd(lo):
        if s.opt.hack & 512 and m < 3: return
        for i in range(lo, lo + 2):
            s.lgop(f"ds_read_b128 {vr(dst[i], 4)}, v{ORD} offset:{i * 1024}", f"or{m}_{i}")
    ops.append(lambda: rd(0))
    ops.append(lambda: rd(2))
    def st(i):
        if s.opt.hack & 256 and m < 3: return
        so = (48 - 16 * m + 8 * i) * 512 if i < 2 else (62 + 16 * m + 8 * (i - 2)) * 512
        s.e(f"s_movk_i32 s{sT1}, {so}" if so < 32768 else f"s_mov_b32 s{sT1}, {so}")
        if m == 0 and i == 1: s.e("s_mov_b32 exec_hi, 0x00ffffff")
        if m == 0 and i == 2: s.e("s_mov_b32 exec_lo, 0xffffff00")
        s.wait(lg=f"or{m}_{i}")
        s.vmop(f"buffer_store_dwordx4 {vr(dst[i], 4)}, v{GST}, s[{SO}:{SO+3}], s{sT1} offen{nt}", f"st{m}")
        if m == 0 and i in (1, 2): s.e("s_mov_b64 exec, -1")
    sts = [(lambda i=i: st(i)) for i in range(4)]
    return ops, sts


def s_read1(s, m, ks, f, rd):
    s.lgop(f"ds_read_b64_tr_b16 {vr(f + 2 * rd, 2)}, v{SRD_} offset:{S_BASE + m * 16384 + ks * 1024 + rd * 512}", f"sr{m}_{ks}")


def g2_ops(s, steps, extra):
    def one(i, ct):
        m, ks, acc, _ = steps[i]
        if ct == 0: s.wait(lg=f"sr{m}_{ks}")
        s.e(mfma(acc + 16 * ct, (W1A, W1B)[ct] + 4 * ks, F[i % 4], ks == 0))
        if i + 3 < len(steps):
            m2, k2, _, pre2 = steps[i + 3]
            if pre2 and ct == 0: pre2()
            if m2 == 0 and k2 >= 8: w_tr1(s, k2, 1, ct)
            s_read1(s, m2, k2, F[(i + 3) % 4], ct)
        if 2 * i + ct in extra: extra.pop(2 * i + ct)()
    return [(lambda i=i, ct=ct: one(i, ct)) for i in range(len(steps)) for ct in range(2)]


def g2_prefetch(s, steps):
    for i in range(3):
        m, ks, _, pre = steps[i]
        assert pre is None
        s_read(s, m, ks, F[i])


def finish(s, grp):
    if s.opt.probe >= 0:
        s.e("s_waitcnt vmcnt(0)")
        s.ts(-1)
        if grp == 1:
            s.e("s_endpgm")
            return
        s.e("s_memrealtime s[96:97]\ns_waitcnt lgkmcnt(0)\ns_sub_u32 s94, s94, s92\ns_lshl_b32 s94, s94, 2")
        s.e(f"L_spin{grp}:")
        s.e("s_memrealtime s[98:99]\ns_waitcnt lgkmcnt(0)\ns_sub_u32 s98, s98, s96\ns_cmp_lt_u32 s98, s94")
        s.e(f"s_cbranch_scc1 L_spin{grp}")
    if s.opt.ts:
        s.e("s_waitcnt vmcnt(0)")
        s.ts(-1)
        s.e("s_memrealtime s[94:95]")
        s.e("s_load_dwordx2 s[96:97], s[0:1], 48")
        s.e("s_waitcnt lgkmcnt(0)")
        s.e("s_mov_b32 s98, 0x100000\ns_mov_b32 s99, 0x20000")
        s.e(f"s_lshl_b32 s3, s2, 3\ns_add_u32 s3, s3, s{sW}\ns_lshl_b32 s3, s3, 7\nv_mov_b32 v1, s3")
        s.e("v_mov_b32 v3, s92\nbuffer_store_dword v3, v1, s[96:99], 0 offen")
        s.e("v_mov_b32 v3, s94\nbuffer_store_dword v3, v1, s[96:99], 0 offen offset:4")
        for m in range(s.nts):
            s.e(f"s_sub_u32 s4, s{sTS + 2 * m}, s{90 if s.opt.ts == 1 else 92}\nv_mov_b32 v3, s4\nbuffer_store_dword v3, v1, s[96:99], 0 offen offset:{8 + 4 * m}")
    s.e("s_endpgm")


def dw_load(s):
    J, HH = 17, 18
    e = s.e
    e(f"s_lshl_b32 s{sT2}, s{sW}, 6")
    e(f"v_lshl_add_u32 v{DWC}, v{J}, 1, s{sT2}")
    e(f"v_lshl_add_u32 v{DWN}, v{HH}, 10, v{DWC}")
    e(f"v_xor_b32 v{DWP}, 1024, v{DWN}")
    e(f"s_mov_b32 s{SD+2}, 1536")
    e(f"s_mov_b32 s{SD+3}, 0x20000")
    s.vmop(f"buffer_load_ushort v{DWC}, v{DWC}, s[{SD}:{SD+3}], 0 offen offset:512", "dw")
    s.vmop(f"buffer_load_ushort v{DWN}, v{DWN}, s[{SD}:{SD+3}], 0 offen", "dw")
    s.vmop(f"buffer_load_ushort v{DWP}, v{DWP}, s[{SD}:{SD+3}], 0 offen", "dw")


def dw_fix(s):
    s.wait(vm="dw")
    for r in (DWP, DWC, DWN):
        s.e(f"v_lshlrev_b32 v{r}, 16, v{r}")
    for r in (DWP, DWC, DWN):
        s.e(f"v_mul_f32 v{r}, v{VC}, v{r}")


def early(s):
    o = s.opt
    e = s.e
    L_, J, HH, a, b, c, d = range(16, 23)
    e("s_cmp_ge_u32 s2, 256")
    e("s_cbranch_scc1 L_done")
    if o.ts or o.probe >= 0:
        e("s_memrealtime s[92:93]")
        e("s_memtime s[90:91]")
    e("s_load_dwordx4 s[4:7], s[0:1], 0")
    e(f"v_readfirstlane_b32 s{sW}, v0")
    e(f"v_and_b32 v{a}, 3, v0")
    e(f"v_bfe_u32 v{c}, v0, 4, 2")
    e(f"v_bfe_u32 v{b}, v0, 2, 2")
    if o.rot == 3:
        e(f"s_mul_i32 s3, s2, 45")
        e(f"s_lshr_b32 s3, s3, 3")
    else:
        e(f"s_lshr_b32 s3, s2, 3")
    if o.rot == 2:
        e(f"s_xor_b32 s3, s3, s2")
        e(f"s_lshr_b32 s{sT0}, s2, 6")
        e(f"s_xor_b32 s3, s3, s{sT0}")
    e(f"s_and_b32 s3, s3, {7 if o.rot else 0}")
    e(f"s_lshr_b32 s{sW}, s{sW}, 6")
    e(f"s_and_b32 s{sWQ}, s{sW}, 3")
    e(f"s_mov_b32 s{SX+3}, 0x20000")
    if o.pf & 4:
        e(f"s_cmp_lt_u32 s{sW}, 4")
        e("s_cbranch_scc1 L_e0")
        prefetch_code(s)
        e("L_e0:")
    e(f"s_and_b32 s{sT1}, s{sW}, 4")
    e(f"s_add_u32 s{sT1}, s{sT1}, s{sW}")
    e(f"s_add_u32 s{sXM0}, s{sT1}, {X_BASE >> 12}")
    e(f"s_lshl_b32 s{sXM0}, s{sXM0}, 12")
    e(f"v_lshl_add_u32 v{b}, s{sT1}, 2, v{b}")
    e(f"v_lshl_add_u32 v{d}, v{c}, 2, v{a}")
    e(f"s_lshl_b32 s{sT0}, s3, 1")
    e(f"s_and_b32 s{sXH0}, s{sT0}, 8")
    e(f"s_and_b32 s{sT0}, s{sT0}, 6")
    e(f"s_and_b32 s{sRING}, s{sW}, 1")
    e(f"s_add_u32 s{sT0}, s{sT0}, s{sRING}")
    e(f"s_lshl_b32 s{sT0}, s{sT0}, 1")
    e(f"v_xor_b32 v{d}, s{sT0}, v{d}")
    e(f"s_xor_b32 s{sXH1}, s{sXH0}, 8")
    e(f"s_lshl_b32 s{sXH0}, s{sXH0}, 5")
    e(f"s_lshl_b32 s{sXH1}, s{sXH1}, 5")
    e(f"s_lshr_b32 s{sT1}, s2, 7")
    e(f"s_lshl_b32 s{sT0}, s{sT1}, 7")
    e(f"s_sub_u32 s{sT0}, s2, s{sT0}")
    e(f"s_mulk_i32 s{sT0}, 125")
    e(f"s_add_u32 s{sT0}, s{sT0}, 62")
    e(f"v_sub_u32 v{c}, s{sT0}, v{b}")
    e(f"v_add3_u32 v{b}, v{b}, s{sT0}, 1")
    e(f"v_lshl_add_u32 v{XD0}, v{c}, 5, v{d}")
    e(f"v_xor_b32 v{d}, 1, v{d}")
    e(f"v_lshl_add_u32 v{XD1}, v{b}, 5, v{d}")
    e(f"v_lshlrev_b32 v{XD0}, 4, v{XD0}")
    e(f"v_lshlrev_b32 v{XD1}, 4, v{XD1}")
    e(f"s_mov_b32 s{SX+2}, 8192000")
    e(f"s_mul_i32 s{sXB}, s{sT1}, s{SX+2}")
    e(f"v_add_u32 v{XD2}, -8192, v{XD0}")
    e(f"v_add_u32 v{XD3}, 8192, v{XD1}")
    e(f"s_cmp_ge_u32 s{sW}, 4")
    e("s_cbranch_scc1 L_e1")
    if o.wf:
        e(f"v_bfe_u32 v{b}, v0, 2, 4")
        e(f"v_lshl_add_u32 v{b}, v{b}, 6, v{a}")
        e(f"v_lshlrev_b32 v{WDMA}, 4, v{b}")
        e(f"s_and_b32 s{sT0}, s{sW}, 2")
        e(f"s_lshl_b32 s{sT0}, s{sT0}, 1")
        e(f"s_add_u32 s{sT0}, s{sRING}, s{sT0}")
        e(f"s_lshl_b32 m0, s{sT0}, 14")
        e(f"s_lshl_b32 s{sT0}, s3, 15")
        e(f"s_lshl_b32 s{sT2}, s{sW}, 6")
        e(f"s_sub_u32 s{SW1+2}, 262144, s{sT2}")
        e(f"s_mov_b32 s{SW1+3}, s{SX+3}")
    else:
        e(f"s_mov_b32 m0, s{sXM0}")
    e("s_waitcnt lgkmcnt(0)")
    s.ts(1); s.ts(3)
    if o.wf:
        e(f"s_add_u32 s{SW1}, s6, s{sT2}")
        e(f"s_addc_u32 s{SW1+1}, s7, 0")
        for ks in range(o.wf):
            if ks:
                e("s_addk_i32 m0, 1536")
                e(f"s_addk_i32 s{sT0}, 16384")
            s.vmop(f"buffer_load_dwordx4 v{WDMA}, s[{SW1}:{SW1+3}], s{sT0} offen lds", f"w0a{ks}")
            e("s_addk_i32 m0, 512")
            e("s_nop 0")
            s.vmop(f"buffer_load_dwordx4 v{WDMA}, s[{SW1}:{SW1+3}], s{sT0} offen offset:512 lds", f"w0b{ks}")
        e(f"s_mov_b32 m0, s{sXM0}")
    e(f"s_add_u32 s{SX}, s4, s{sXB}")
    e(f"s_addc_u32 s{SX+1}, s5, 0")
    nt = "nt " if o.xnt else ""
    cur = 0
    for i in range(o.xn):
        mm, h, half = (i >> 1) & 1, i & 1, i >> 2
        if o.xn == 8 and o.xo: mm, h, half = i >> 2, (i >> 1) & 1, i & 1
        pos = mm * 16384 + h * 2048 + half * 1024
        if i:
            e(f"s_addk_i32 m0, {pos - cur}")
            e("s_nop 0")
        cur = pos
        s.vmop(f"buffer_load_dwordx4 v{(XD0, XD1, XD2, XD3)[2 * mm + h]}, s[{SX}:{SX+3}], s{sXH0 + half} offen {nt}lds", f"x{half}")
    if o.pf & 8:
        e(f"v_and_b32 v{c}, 15, v0")
        e(f"s_mov_b32 s{SC}, s6\ns_mov_b32 s{SC+1}, s7\ns_mov_b32 s{SC+2}, 262144\ns_mov_b32 s{SC+3}, s{SX+3}")
        e(f"v_lshlrev_b32 v{c}, 7, v{c}")
        e(f"s_lshr_b32 s{sT0}, s2, 3\ns_lshl_b32 s{sT0}, s{sT0}, 2\ns_add_u32 s{sT0}, s{sT0}, s{sWQ}\ns_lshl_b32 s{sT0}, s{sT0}, 11")
        s.vmop(f"buffer_load_dword v{C1}, v{c}, s[{SC}:{SC+3}], s{sT0} offen{' nt' if o.pnt else ''}", "pf")
    s.ts(3)
    e("L_e1:")
    e(f"s_load_dwordx2 s[{SD}:{SD+1}], s[0:1], 16")
    e(f"s_load_dwordx2 s[{SW2}:{SW2+1}], s[0:1], 24")
    e(f"s_load_dwordx2 s[{SO}:{SO+1}], s[0:1], 32")
    e(f"v_and_b32 v{L_}, 63, v0")
    e(f"v_and_b32 v{J}, 31, v0")
    e(f"v_bfe_u32 v{HH}, v0, 5, 1")
    e(f"v_lshrrev_b32 v{b}, 2, v{L_}")
    e(f"v_lshl_add_u32 v{b}, v{b}, 6, v{a}")
    e(f"v_lshlrev_b32 v{WDMA}, 4, v{b}")
    e(f"s_lshl_b32 s{sROT1}, s3, 15")
    e(f"s_and_b32 s{sT0}, s{sW}, 2")
    e(f"s_lshl_b32 s{sT0}, s{sT0}, 1")
    e(f"s_add_u32 s{sRING}, s{sRING}, s{sT0}")
    e(f"s_add_u32 s{sRING2}, s{sWQ}, {R3_BASE >> 14}")
    e(f"s_cmp_ge_u32 s{sW}, 4")
    e(f"s_cselect_b32 s{sRING}, s{sRING2}, s{sRING}")
    e(f"s_lshl_b32 s{sRING}, s{sRING}, 14")
    e(f"s_lshl_b32 s{sRING2}, s{sRING2}, 14")
    e(f"s_lshl_b32 s{sT2}, s{sW}, 6")
    e(f"s_sub_u32 s{SW1+2}, 262144, s{sT2}")
    e(f"s_mov_b32 s{SW1+3}, s{SX+3}")
    if o.a0:
        e(f"s_cmp_ge_u32 s{sW}, 4")
        e("s_cbranch_scc1 L_e4")
        e(f"s_add_u32 s{SW1}, s6, s{sT2}")
        e(f"s_addc_u32 s{SW1+1}, s7, 0")
        for ks in range(o.a0):
            w_dma(s, ks, 0)
        e("L_e4:")
    addr_common(s)
    e("s_waitcnt lgkmcnt(0)")
    e(f"s_add_u32 s{SX}, s4, s{sXB}")
    e(f"s_addc_u32 s{SX+1}, s5, 0")
    e(f"s_add_u32 s{SW1}, s6, s{sT2}")
    e(f"s_addc_u32 s{SW1+1}, s7, 0")
    dw_load(s)
    s.ts(3)
    e(f"s_cmp_ge_u32 s{sW}, 4")
    e("s_cbranch_scc1 L_e3")
    assert o.wf <= 2 and not (o.wf and o.a0)
    for ks in range(o.a0 + o.wf, o.d0):
        w_dma(s, ks, 0)
        i = o.xn + ks - o.xs
        if o.xn <= i < 8: x_dma1(s, (i >> 1) & 1, i & 1, 1)
    s.ts(1)
    s.wait(vm="x0" if o.xn < 8 else "x1")
    if o.pf & 2:
        e("s_branch L_e2")
        e("L_e3:")
        prefetch_w(s)
    else:
        e("L_e3:")
    e("L_e2:")
    s.ts(3)
    s.barrier()
    s.ts(); s.ts(3)
    e(f"s_cmp_ge_u32 s{sW}, 4")
    e("s_cbranch_scc1 L_grp_b")


def stream_a(s):
    o = s.opt
    D = max(o.d0, 6)
    wq = [(k, p) for k in range(o.d0, 16) for p in range(2)]
    s.prio(3)
    for ks in range(2):
        w_tr(s, ks, 0)
        x_read(s, 0, ks)
    late = Stream(o)
    addr_a(late)
    late = late.L
    def hook0(ks, pos):
        if pos in (0, 2) and wq:
            k, p = wq.pop(0); w_dma1(s, k, 0, p)
        if pos == 3:
            i = o.xn + ks + o.d0 - o.xs
            if o.xn <= i < 8: x_dma1(s, (i >> 1) & 1, i & 1, 1)
        if pos == 3 and o.dx <= ks < o.dx + D - o.d0:
            for _ in range(2):
                k, p = wq.pop(0); w_dma1(s, k, 0, p)
        if pos == 0 and ks == 6 and o.xn < 8: s.barrier(vm="x1")
        if pos == 2 and ks == o.b0b: s.barrier()
        if pos == 0 and ks == 16 - D: dw_fix(s)
        if ks > 16 - D and pos in (0, 2):
            for _ in range(5):
                if late: s.e(late.pop(0))
        if pos == 3 and ks == 15:
            assert not late
            s.e(f"v_mov_b32 v{WDMA}, v{W2DMA0}")
            s.e(f"v_mov_b32 v{WTR}, v{W2TR0}")
    g1(s, 0, True, hook0)
    s.ts()
    def pre2():
        s.barrier()
        x_read(s, 1, 0); x_read(s, 1, 1)
    wr = act2(s, 0, {(o.b1a, 'T'): lambda: s.barrier(), (o.b2a, 'S'): pre2}, (o.pa0, o.pa1), o.tog & 1, 99, (F[0], F[2]))
    s.ts()
    s.prio(3)
    dq = [(k, p) for k in range(8) for p in range(2)]
    tq = list(dq)
    def hook1(ks, pos):
        n = 4 * ks + pos
        if n == 24: s.barrier()
        if 25 <= n <= 28: wr[n - 25]()
        if n >= 30 and pos in (0, 2) and dq:
            k, p = dq.pop(0); w_dma1(s, k, 1, p)
        if n >= 30 + 4 * o.lag and pos in (1, 3):
            k, p = tq.pop(0); w_tr1(s, k, 1, p)
    g1(s, 1, False, hook1)
    assert not dq
    s.ts()
    accs = [G, ACC[0], ACC[1], G]
    lo = lambda m, f=None: [(m, ks, accs[m], f if ks == 0 else None) for ks in range(8)]
    hi = lambda m, f=None: [(m, ks, accs[m], f if ks == 8 else None) for ks in range(8, 16)]
    st4 = lo(0) + hi(0) + lo(1) + hi(1) + lo(2) + hi(2, lambda: s.barrier(lg="sw3")) + lo(3)
    def owa():
        for i, x in ((1, 16), (2, 64), (3, 80)): s.e(f"v_xor_b32 v{OW[i]}, {x}, v{OWR}")
        for k, p in tq: w_tr1(s, k, 1, p)
    ex = {}
    gops = g2_ops(s, st4, ex)
    ni = 2 * o.ninj
    assert o.ninj == 0 or o.inj0 >= o.b4a
    wr = act2(s, 1, {(o.b3a - 1 - o.tra, 'T'): owa, (o.b3a, 'S'): lambda: s.barrier(lg="w1r7"), (o.b4a, 'S'): lambda: s.barrier(lg="sw2"),
                     ((o.inj0 - 1, 'T') if ni else (-1, 'S')): lambda: g2_prefetch(s, st4)}, (o.pa2, o.pa3), o.tog & 4, 99,
              None, gops[:ni], o.inj0, o.injc, o.b4a - o.wa)
    assert len(wr) == 2
    s.ts()
    s.prio(3)
    for i in range(2): ex[26 + 2 * i] = wr[i]
    for m in range(3):
        ops, sts = epi_ops(s, m, accs[m])
        if m < 2:
            for i, f in enumerate(ops + [None] + sts):
                n = 32 * m + 34 + 2 * i
                if i < 8 and i % 2 == 0 and o.epf:
                    ex[n - 1] = (lambda f=f: f(hi=1)); ex[n] = (lambda f=f: f(lo=1, hi=3)); ex[n + 1] = (lambda f=f: f(lo=3))
                elif f: ex[n] = f
        else:
            for i, f in enumerate(ops): ex[98 + i] = f
    FF = [ACC[0] + 4 * i for i in range(8)]
    def last(i):
        if i == 0: s.barrier()
        s_read(s, 3, 8 + 2 * i, FF[2 * i]); s_read(s, 3, 9 + 2 * i, FF[2 * i + 1])
    nb = 112 - o.b6a
    for i in range(4):
        if nb + i < 112: ex[nb + i] = (lambda i=i: last(i))
    for f in gops[ni:]: f()
    assert not ex, ex
    s.ts()
    for i in range(4):
        if nb + i >= 112: last(i)
    sts2 = sts
    ops, sts = epi_ops(s, 3, accs[3])
    for i in range(8):
        s.wait(lg=f"sr3_{8 + i}")
        s.e(mfma(accs[3], W1A + 4 * (8 + i), FF[i], False))
        if i < 4: sts2[i]()
    for i in range(8):
        s.e(mfma(accs[3] + 16, W1B + 4 * (8 + i), FF[i], False))
        if 2 <= i < 6: ops[i - 2]()
    s.ts()
    s.e("s_nop 11")
    for f in ops[4:] + sts: f()
    finish(s, 0)


def stream_b(s):
    s.isb = 1
    o = s.opt
    D = o.d1
    jt = 16 // o.n + 4
    dw_fix(s)
    addr_w2(s)
    if o.pf & 16:
        if o.s8:
            s.e(f"v_lshlrev_b32 v{ORD}, 9, v17")
            s.e(f"s_lshl_b32 s{sT1}, s{sSH}, 14")
        else:
            s.e(f"v_and_b32 v{ORD}, 7, v16")
            s.e(f"v_lshlrev_b32 v{ORD}, 9, v{ORD}")
            s.e(f"s_lshr_b32 s{sT1}, s2, 3\ns_lshl_b32 s{sT1}, s{sT1}, 12")
    s.prio(0)
    if o.xn < 8: s.barrier()
    s.barrier()
    for ks in range(D):
        w_dma(s, ks, 0)
    for ks in range(2):
        w_tr(s, ks, 0)
        x_read(s, 0, ks)
    if o.b1b < 0: s.barrier()
    s.ts()
    s.prio(o.pbg)
    assert o.b1b <= o.xb0
    def first_pass(xb0, xsp0, xb1, xsp1):
        dq = [(k, p) for k in range(D, 16) for p in range(2)]
        xq = {}
        for i in range(8):
            n = 4 * xb0 + 3 + xsp0 * i if i < 4 else 4 * xb1 + 3 + xsp1 * (i - 4)
            xq.setdefault(n, []).append(i)
        def hook0(ks, pos):
            if pos == 3 and ks == o.b1b: s.barrier()
            if pos in (0, 2) and dq:
                k, p = dq.pop(0); w_dma1(s, k, 0, p)
            for i in xq.pop(4 * ks + pos, []):
                assert len(dq) % 2 == 0
                x_dma1(s, (i >> 1) & 1, i & 1, i >> 2)
            if 4 * ks + pos == 47 and o.pf & 16:
                assert not dq and not xq
                s.vmop(f"buffer_load_dword v{OWR}, v{ORD}, s[{SW2}:{SW2+3}], s{sT1} offen{' nt' if o.pnt else ''}", "pf")
        g1(s, 0, True, hook0)
        assert not dq and not xq
    if o.cls:
        vm, lg, nts = list(s.vm), list(s.lg), s.nts
        s.e(f"s_bitcmp1_b32 s{sSH}, {o.cls - 1}")
        s.e("s_cbranch_scc1 L_cls1")
        assert o.b1b <= o.xe0
        first_pass(o.xe0, 0, o.xe1, 1 if o.xe1 >= 15 - D else 0)
        s.e("s_branch L_cls2")
        s.e("L_cls1:")
        s.vm, s.lg, s.nts = vm, lg, nts
        s.dup = 1
    first_pass(o.xb0, o.xsp0, o.xb1, o.xsp1)
    if o.cls: s.e("L_cls2:")
    s.ts()
    def pre():
        x_read(s, 1, 0); x_read(s, 1, 1)
        s.e(f"v_mov_b32 v{WDMA}, v{W2DMA0}")
    wr = act2(s, 0, {(o.b2b, 'S'): lambda: s.barrier(vm="x0"), (o.b2c, 'S'): lambda: s.barrier(vm="x1"), (-2, 'T'): pre},
              (o.pb0, o.pb1), o.tog & 2, 99, (F[0], F[2]))
    s.ts()
    s.prio(3)
    def hook1(ks, pos):
        if pos in (0, 2) and o.wb <= ks < o.wb + 2: wr[2 * (ks - o.wb) + (pos >> 1)]()
        if pos == 3 and ks == o.b3b: s.barrier()
        if pos in (0, 2) and o.b3b < ks <= o.b3b + 8: w_dma1(s, ks - o.b3b + 7, 1, pos >> 1)
    assert o.wb + 2 <= o.b3b + 1
    g1(s, 1, False, hook1)
    s.ts()
    act2(s, 1, {(o.b4b, 'T'): lambda: s.barrier(vm="w1b15", lg="sw1"), (jt + o.b5b, 'T'): lambda: s.barrier(lg="sw2")}, (o.pb2, o.pb3), o.tog & 8)
    s.ts()
    s.barrier(lg="sw3")
    finish(s, 1)


def prefetch_w(s):
    e = s.e
    e(f"v_lshlrev_b32 v{C0}, 7, v16")
    e(f"s_bfe_u32 s{sT0}, s2, 0x50003")
    e(f"s_lshl_b32 s{sT0}, s{sT0}, 2")
    e(f"s_add_u32 s{sT0}, s{sT0}, s{sWQ}")
    e(f"s_lshl_b32 s{sT1}, s{sT0}, 10")
    e(f"s_lshl_b32 s{sT0}, s{sT0}, 11")
    e(f"s_mov_b32 s{SC}, s6\ns_mov_b32 s{SC+1}, s7\ns_mov_b32 s{SC+2}, 262144\ns_mov_b32 s{SC+3}, 0x20000")
    e(f"s_mov_b32 s{SW2+2}, 131072\ns_mov_b32 s{SW2+3}, 0x20000")
    e("s_mov_b64 exec, 0xffff")
    e(f"buffer_load_dword v{C1}, v{C0}, s[{SC}:{SC+3}], s{sT0} offen")
    e("s_mov_b64 exec, 0xff")
    e(f"buffer_load_dword v{OWR}, v{C0}, s[{SW2}:{SW2+3}], s{sT1} offen")
    e("s_mov_b64 exec, -1")


def prefetch_code(s):
    e = s.e
    if s.opt.pbs: e("s_setprio 3")
    e(f"s_getpc_b64 s[{SC}:{SC+1}]")
    e("L_pc:")
    e(f"s_mov_b32 s{SC+2}, L_done-L_pc")
    e(f"s_mov_b32 s{SC+3}, s{SX+3}")
    if s.opt.hw:
        e(f"s_getreg_b32 s{sSH}, hwreg(HW_REG_HW_ID, 8, 3)")
    else:
        e(f"s_mov_b32 s{sSH}, s3")
    e(f"s_lshl_b32 s{sT0}, s{sSH}, 2")
    e(f"s_add_u32 s{sT0}, s{sT0}, s{sWQ}")
    e(f"s_lshl_b32 s{sT0}, s{sT0}, 6")
    e("L_pfl:")
    e(f"s_buffer_load_dword s44, s[{SC}:{SC+3}], s{sT0}")
    e(f"s_buffer_load_dword s45, s[{SC}:{SC+3}], s{sT0} offset:2048")
    e(f"s_addk_i32 s{sT0}, 4096")
    e(f"s_cmp_lt_u32 s{sT0}, s{SC+2}")
    e("s_cbranch_scc1 L_pfl")


def addr_common(s):
    e = s.e
    L_, J, HH, a, b, c, d, Gq, R, CC = range(16, 26)
    e(f"v_mov_b32 v{VC}, {LIT}")
    e(f"v_bfe_u32 v{Gq}, v{L_}, 4, 1")
    e(f"v_bfe_u32 v{R}, v{L_}, 2, 2")
    e(f"v_and_b32 v{CC}, 3, v{L_}")
    e(f"v_lshrrev_b32 v{a}, 2, v{J}")
    e(f"v_xor_b32 v{b}, v{HH}, v{R}")
    e(f"v_lshlrev_b32 v{b}, 4, v{b}")
    e(f"v_lshl_add_u32 v{b}, v{CC}, 6, v{b}")
    e(f"v_add_u32 v{a}, {X_BASE >> 11}, v{a}")
    e(f"v_lshl_add_u32 v{XRE}, v{a}, 11, v{b}")
    e(f"v_xor_b32 v{XRO}, 32, v{XRE}")
    e(f"v_lshl_add_u32 v{a}, v{HH}, 3, v{R}")
    e(f"v_lshl_add_u32 v{a}, v{a}, 1, v{Gq}")
    e(f"v_lshl_add_u32 v{a}, v{a}, 2, v{CC}")
    e(f"v_lshl_add_u32 v{WTR}, v{a}, 3, s{sRING}")
    e(f"s_lshl_b32 s{sT0}, s{sW}, 1")
    e(f"s_xor_b32 s{sT0}, s{sT0}, s3")
    e(f"s_lshl_b32 s{sT0}, s{sT0}, 4")
    e(f"v_xor_b32 v{a}, s{sT0}, v{J}")
    e(f"v_bfe_u32 v{c}, v{J}, 1, 2")
    e(f"v_lshlrev_b32 v{d}, 1, v{HH}")
    e(f"v_xor_b32 v{c}, v{c}, v{d}")
    e(f"v_lshl_add_u32 v{a}, v{a}, 2, v{c}")
    e(f"v_lshlrev_b32 v{SWR}, 4, v{a}")
    e(f"v_xor_b32 v{TMP}, 16, v{SWR}")
    e("s_mov_b32 vcc_lo, 0")
    e("s_mov_b32 vcc_hi, -1")


def addr_w2(s):
    e = s.e
    L_, J, HH, a, b, c, d, Gq, R, CC, t = range(16, 27)
    e(f"s_lshl_b32 s{sROT2}, s3, 13")
    e(f"s_lshl_b32 s{sT2}, s{sWQ}, 7")
    e(f"s_add_u32 s{SW2}, s{SW2}, s{sT2}")
    e(f"s_addc_u32 s{SW2+1}, s{SW2+1}, 0")
    e(f"s_sub_u32 s{SW2+2}, 131072, s{sT2}")
    e(f"s_mov_b32 s{SW2+3}, 0x20000")
    e(f"v_lshrrev_b32 v{a}, 2, v{J}")
    e(f"v_lshl_add_u32 v{a}, v{a}, 3, v{HH}")
    e(f"v_lshl_add_u32 v{a}, v{a}, 2, v{CC}")
    e(f"v_lshlrev_b32 v{W2DMA0}, 4, v{a}")


def addr_a(s):
    e = s.e
    L_, J, HH, a, b, c, d, Gq, R, CC, t = range(16, 27)
    addr_w2(s)
    e(f"s_mul_i32 s{sT1}, s2, 64000")
    e(f"s_add_u32 s{SO}, s{SO}, s{sT1}")
    e(f"s_addc_u32 s{SO+1}, s{SO+1}, 0")
    e(f"s_mov_b32 s{SO+2}, 64000")
    e(f"s_mov_b32 s{SO+3}, 0x20000")
    e(f"v_lshl_add_u32 v{a}, v{HH}, 2, v{R}")
    e(f"v_lshrrev_b32 v{b}, 1, v{CC}")
    e(f"v_lshl_add_u32 v{b}, v{Gq}, 1, v{b}")
    e(f"v_and_b32 v{c}, 1, v{CC}")
    e(f"v_lshl_add_u32 v{t}, v{a}, 1, v{c}")
    e(f"v_lshl_add_u32 v{t}, v{t}, 2, v{b}")
    e(f"v_lshl_add_u32 v{W2TR0}, v{t}, 3, s{sRING2}")
    e(f"v_lshrrev_b32 v{t}, 1, v{a}")
    e(f"v_xor_b32 v{b}, v{b}, v{t}")
    e(f"v_lshl_add_u32 v{a}, v{a}, 2, v{b}")
    e(f"v_lshl_add_u32 v{a}, v{a}, 1, v{c}")
    e(f"v_lshlrev_b32 v{SRD_}, 3, v{a}")
    e(f"v_sub_u32 v{a}, 1, v{Gq}")
    e(f"v_mul_u32_u24 v{a}, 15, v{a}")
    e(f"v_xor_b32 v{a}, v{a}, v{J}")
    e(f"v_and_b32 v{c}, 7, v{a}")
    e(f"v_xor_b32 v{c}, v{c}, v{d}")
    e(f"v_lshl_add_u32 v{a}, v{a}, 3, v{c}")
    e(f"v_lshl_add_u32 v{OWR}, v{a}, 4, s{sRING2}")
    e(f"v_lshrrev_b32 v{a}, 3, v{L_}")
    e(f"v_xor_b32 v{b}, v{a}, v{L_}")
    e(f"v_lshl_add_u32 v{ORD}, v{b}, 4, s{sRING2}")
    e(f"v_and_b32 v{b}, 7, v{L_}")
    e(f"v_lshl_add_u32 v{b}, v{a}, 5, v{b}")
    e(f"v_lshl_add_u32 v{GST}, v{b}, 4, s{sT2}")


TRANS = ("v_exp_f32", "v_rcp_f32")


def check(lines):
    ins = [l for x in lines for l in x.split("\n") if l and not l.endswith(":") and not l.startswith(".")]
    for p, q in zip(ins, ins[1:]):
        if p.startswith(TRANS) and q.startswith("v_") and not q.startswith(TRANS):
            d = re.match(r"\S+ (v\d+)", p).group(1)
            assert not re.search(r"\b" + d + r"\b", q), (p, q)


def flat(L):
    return [l for x in L for l in x.split("\n")]


def isize(l):
    if l.endswith(":") or l.startswith("."): return 0
    op = l.split()[0]
    if op.startswith(("v_mfma", "ds_", "buffer_", "v_cvt_pk", "v_fmaak", "v_lshl_add", "v_add3", "v_bfe", "s_load", "s_buffer", "s_mem")): return 8
    lits = re.findall(r"(?<![\w\[:(])(-?(?:0x[0-9a-f]+|\d+))(?![\w\].:)])", l.split(None, 1)[1] if " " in l else "")
    if op in ("s_nop", "s_setprio", "s_waitcnt"): return 4
    for x in lits:
        v = int(x, 0)
        if v > 64 or v < -16: return 8
    return 4


def add_pads(la, lb, opt):
    pos = []
    for si, L in enumerate((la, lb)):
        acc = 0; nxt = opt.hop0
        for i, l in enumerate(L):
            acc += isize(l)
            if acc >= nxt and l.startswith("v_") and "exec" not in "".join(L[max(0, i - 4):i + 4]):
                pos.append((acc + si * opt.hopb, si, i)); nxt = acc + opt.hop
    pos.sort()
    n = len(pos); c = opt.nch
    ins = {}
    for k, (_, si, i) in enumerate(pos):
        tgt = f"L_pad{k + c}" if k + c < n else "L_padend"
        ins[(si, i)] = [f"L_pad{k}:", f"s_cbranch_execz {tgt}"]
    res = []
    for si, L in enumerate((la, lb)):
        o = []
        for i, l in enumerate(L):
            o.append(l); o += ins.get((si, i), [])
        res.append(o)
    return res[0], res[1], ["L_padend:", "s_mov_b64 exec, -1", "s_branch L_back"]


def build(opt):
    pro = Stream(opt)
    early(pro)
    sa = Stream(opt); sa.nts = pro.nts; sa.vm = list(pro.vm)
    sb = Stream(opt); sb.nts = pro.nts; sb.vm = ["dw"] * 3
    stream_a(sa)
    stream_b(sb)
    assert sa.L.count("s_barrier") == sb.L.count("s_barrier") - (getattr(sb, "dup", 0) if opt.b1b >= 0 else 0)
    check(sa.L); check(sb.L)
    ref = open(f"cdna_kernels/{NAME}.s.ref").read().split("\n")
    head = [l for l in ref if l.startswith(";") and "@launch" not in l]
    out = head + ["; @launch grid=(256,1,1) block=(512,1,1) lds=163840",
                  '.amdgcn_target "amdgcn-amd-amdhsa--gfx950"', ".text", f".globl {NAME}_kernel", ".p2align 8",
                  f".type {NAME}_kernel,@function", f"{NAME}_kernel:"]
    la, lb = flat(sa.L), flat(sb.L)
    tail = []
    if opt.hop:
        la, lb, tail = add_pads(la, lb, opt)
    out += pro.L + la + [".p2align 6", "L_grp_b:"] + lb + tail + ["L_done:", "s_endpgm"]
    out += ['.section .rodata,"a"', ".p2align 6", f".amdhsa_kernel {NAME}_kernel",
            "  .amdhsa_next_free_vgpr 256", "  .amdhsa_next_free_sgpr 102", "  .amdhsa_accum_offset 256",
            "  .amdhsa_group_segment_fixed_size 0", "  .amdhsa_kernarg_size 56", "  .amdhsa_user_sgpr_count 2",
            "  .amdhsa_user_sgpr_kernarg_segment_ptr 1", "  .amdhsa_system_sgpr_workgroup_id_x 1",
            ".end_amdhsa_kernel", ""]
    return "\n".join(out)


if __name__ == "__main__":
    ap = argparse.ArgumentParser()
    ap.add_argument("-o", default=f"cdna_kernels/{NAME}.s")
    for k, v in dict(ts=0, probe=-1, tl=0, xnt=1, ont=2, ont3=2, rot=3, pf=20, wnt=0, hw=1, wf=2, cls=0, xe0=2, xe1=10, s8=1, pnt=0, a0=0, d0=8, d1=6, b0b=7, n=2, hack=0, swp=0, w2p=1, hop=0,
                     b2a=-1, b2b=4, b2c=10, b1a=3, b1b=2, pbg=2, tra=0, wa=2, ninj=6, inj0=14, injc=36, epf=1, b3a=5, b3b=3, b4a=14, b4b=0, b5b=1, b6a=4, xb0=9, xb1=10, xsp0=1, xsp1=1, xn=8, xo=1, pbs=1, xs=0, dx=3, wb=0, lag=5,
                     tog=0, pa0=0, pa1=1, pa2=0, pa3=1, pb0=0, pb1=1, pb2=0, pb3=1).items():
        ap.add_argument("--" + k, type=int, default=v)
    opt = ap.parse_args()
    open(opt.o, "w").write(build(opt))
```

```python
import sys, argparse, re

NAME = "standalone__conformer_conv_module__speech"
LIT = "0xbfb8aa3b"

S_BASE, X_BASE, R3_BASE = 0, 32768, 98304

XRE, XRO, SWR, C0, C1, DWP, DWC, DWN, VC, WDMA, WTR, SRD_, OWR, ORD, GST, TMP = range(16)
F = [16, 20, 24, 28]
G = 32
XF = [32, 36, 40, 44, 48, 52]
XD0, XD1, W2DMA0, W2TR0, XD2, XD3 = 56, 57, 58, 59, 60, 61
ACC = [64, 96]
W1A, W1B = 128, 192

SX, SW1, SW2, SO, SD = 8, 12, 16, 20, 24
sW, sWQ, sROT1, sROT2, sXH0, sXH1, sXM0, sRING, sRING2, sT0, sT1, sT2 = range(28, 40)
SC = 40
sXB = 46
sSH = 47
sTS = 48


class Stream:
    def __init__(self, opt):
        self.L = []; self.vm = []; self.lg = []; self.opt = opt; self.nts = 0

    def e(self, s):
        self.L.append(s)

    def vmop(self, s, tag):
        self.L.append(s); self.vm.append(tag)

    def lgop(self, s, tag):
        self.L.append(s); self.lg.append(tag)

    def _cnt(self, q, tag):
        idx = [i for i, t in enumerate(q) if t == tag]
        if not idx:
            return None
        n = len(q) - 1 - idx[-1]
        del q[:idx[-1] + 1]
        return n

    def wait(self, vm=None, lg=None):
        parts = []
        if vm is not None:
            n = self._cnt(self.vm, vm)
            if n is not None:
                assert n <= 63
                parts.append(f"vmcnt({n})")
        if lg is not None:
            n = self._cnt(self.lg, lg)
            if n is not None:
                parts.append(f"lgkmcnt({min(n, 15)})")
        if parts:
            self.e("s_waitcnt " + " ".join(parts))

    def ts(self, lvl=0):
        if lvl != self.opt.tl and lvl != -1:
            return
        if self.opt.probe >= 0:
            if self.nts == self.opt.probe:
                self.e("s_memrealtime s[94:95]")
            self.nts += 1
        if self.opt.ts:
            op = "s_memtime" if self.opt.ts == 1 else "s_memrealtime"
            assert self.nts < 21
            self.e(f"{op} s[{sTS + 2 * self.nts}:{sTS + 2 * self.nts + 1}]")
            self.nts += 1

    def barrier(self, vm=None, lg=None):
        self.wait(vm=vm, lg=lg)
        self.ts(2)
        self.e("s_barrier")
        self.ts(2)

    def prio(self, p):
        self.e(f"s_setprio {p}")


def vr(a, n):
    return f"v[{a}:{a + n - 1}]"


def mfma(d, a, b, first):
    c = "0" if first else vr(d, 16)
    return f"v_mfma_f32_32x32x16_bf16 {vr(d, 16)}, {vr(a, 4)}, {vr(b, 4)}, {c}"


def x_dma1(s, mm, h, half):
    nt = "nt " if s.opt.xnt else ""
    r = (XD0, XD1, XD2, XD3)[2 * mm + h]
    s.e(f"s_add_u32 m0, s{sXM0}, {mm * 16384 + h * 2048 + half * 1024}")
    s.e("s_nop 0")
    s.vmop(f"buffer_load_dwordx4 v{r}, s[{SX}:{SX+3}], s{sXH0 + half} offen {nt}lds", f"x{half}")


def w_dma1(s, ks, which, part):
    wnt = ["", "nt ", "sc1 ", "sc0 sc1 "][s.opt.wnt]
    if which == 1 and s.opt.hack & 2: return
    slot = (ks & 7) * 2
    ring, rot, step, srd, off = ((sRING, sROT1, 16384, SW1, 512), (sRING2, sROT2, 8192, SW2, 64))[which]
    if which == 1 and s.opt.hack & 4: srd = SW1
    if which == 1 and s.opt.w2p:
        s.e(f"s_add_u32 m0, s{ring}, {(slot + part) * 1024}")
        s.e(f"s_xor_b32 s{sT0}, s{rot}, {ks * step + part * 4096}")
        s.vmop(f"buffer_load_dwordx4 v{WDMA}, s[{srd}:{srd+3}], s{sT0} offen {wnt}lds", f"w{which}{'ab'[part]}{ks}")
    elif part == 0:
        s.e(f"s_add_u32 m0, s{ring}, {slot * 1024}")
        s.e(f"s_xor_b32 s{sT0}, s{rot}, {ks * step}")
        s.vmop(f"buffer_load_dwordx4 v{WDMA}, s[{srd}:{srd+3}], s{sT0} offen {wnt}lds", f"w{which}a{ks}")
        s.e(f"s_add_u32 m0, s{ring}, {slot * 1024 + 1024 - off}")
    else:
        if s.L[-1].startswith("s_add_u32 m0"):
            s.e("s_nop 0")
        s.vmop(f"buffer_load_dwordx4 v{WDMA}, s[{srd}:{srd+3}], s{sT0} offen offset:{off} {wnt}lds", f"w{which}b{ks}")


def w_dma(s, ks, which):
    w_dma1(s, ks, which, 0)
    w_dma1(s, ks, which, 1)


def w_tr1(s, ks, which, part):
    slot = (ks & 7) * 2
    if not (which == 1 and s.opt.hack & 1): s.wait(vm=f"w{which}{'ab'[part]}{ks}")
    base = (W1A, W1B)[part]
    if which == 1 and s.opt.hack & 8: return
    if which == 1 and s.opt.w2p:
        for ct in range(2):
            s.lgop(f"ds_read_b64_tr_b16 {vr((W1A, W1B)[ct] + 4 * ks + 2 * part, 2)}, v{WTR} offset:{(slot + part) * 1024 + ct * 512}", f"w{which}r{ks}")
        return
    for rd in range(2):
        s.lgop(f"ds_read_b64_tr_b16 {vr(base + 4 * ks + 2 * rd, 2)}, v{WTR} offset:{(slot + part) * 1024 + rd * (512 if which else 256)}", f"w{which}r{ks}")


def w_tr(s, ks, which):
    w_tr1(s, ks, which, 0)
    w_tr1(s, ks, which, 1)


def x_read1(s, mp, ks, mm):
    if s.opt.hack & 32 and mp == 1: return
    a = XRO if ks & 1 else XRE
    s.lgop(f"ds_read_b128 {vr(XF[(ks % 3) * 2 + mm], 4)}, v{a} offset:{(2 * mp + mm) * 16384 + (ks >> 1) * 256}", f"xr{mp}_{ks}_{mm}")


def x_read(s, mp, ks):
    for mm in range(2):
        x_read1(s, mp, ks, mm)


def s_read(s, m, ks, f):
    for rd in range(2):
        s.lgop(f"ds_read_b64_tr_b16 {vr(f + 2 * rd, 2)}, v{SRD_} offset:{S_BASE + m * 16384 + ks * 1024 + rd * 512}", f"sr{m}_{ks}")


def g1(s, mp, stream, hook):
    for ks in range(16):
        for mm in range(2):
            f = XF[(ks % 3) * 2 + mm]
            s.wait(lg=f"xr{mp}_{ks}_{1 if stream else mm}")
            if mm == 0 and ks % 4 == 0: s.ts(1)
            s.e(mfma(ACC[mm] + 16, f, W1B + 4 * ks, ks == 0))
            hook(ks, 2 * mm)
            s.e(mfma(ACC[mm], f, W1A + 4 * ks, ks == 0))
            if ks + 2 < 16:
                if stream:
                    w_tr1(s, ks + 2, 0, mm)
                x_read1(s, mp, ks + 2, mm)
            hook(ks, 2 * mm + 1)


def act2(s, mp, hooks, base, toggle, wfrom=0, pk=None, inj=(), inj0=99, injc=0, wonce=-99):
    n = s.opt.n
    ng = 32 // n
    a_in = lambda u: ACC[u >> 4] + (u & 15)
    b = lambda u: ACC[u >> 4] + 16 + (u & 15)
    h = lambda u: C0 if u in (-2, 30) else C1 if u in (-1, 31) else a_in(u)
    hooks = dict(hooks)
    cur = [None]
    pend = []
    pk = pk or (ACC[0] + 16, ACC[1] + 16)
    inj = list(inj); cost = [0]
    def emit(t, j):
        s.e(t)
        if j >= inj0 and inj:
            cost[0] += 8 if t.startswith(TRANS) else 4
            if cost[0] >= injc:
                inj.pop(0)(); cost[0] = 0
    def setp(p):
        if cur[0] != p:
            s.prio(p); cur[0] = p
    hooks = {((k if k >= 0 else ng + 4 + k), t): f for (k, t), f in hooks.items()}
    for j in range(ng + 4):
        e = lambda k: [(j - k) * n + i for i in range(n)] if 0 <= j - k < ng else []
        S = []; T = []
        S += [f"v_mul_f32 v{b(u)}, v{VC}, v{b(u)}" for u in e(0)]
        S += [f"v_mul_f32 v{h(u)}, v{a_in(u)}, v{b(u)}" for u in e(2)]
        if mp == 0 and j == 2:
            S += [f"v_mov_b32 v{C0}, v{a_in(0)}", f"v_mov_b32 v{C1}, v{a_in(0)}"]
        S += [f"v_add_f32 v{b(u)}, 1.0, v{b(u)}" for u in e(1)]
        if mp == 0 and j == 2:
            S += [f"v_permlane32_swap_b32 v{C0}, v{C1}", f"v_cndmask_b32 v{C1}, v{C1}, v{C0}, vcc"]
        S += [f"v_mul_f32 v{b(u)}, v{DWN}, v{h(u)}" for u in e(2)]
        S += [f"v_fmac_f32 v{b(u)}, v{DWC}, v{h(u - 1)}" for u in e(2)]
        S += [f"v_fmac_f32 v{b(u)}, v{DWP}, v{h(u - 2)}" for u in e(2)]
        S += [f"v_fmaak_f32 v{h(u - 2)}, v{VC}, v{h(u - 2)}, {LIT}" for u in e(3)]
        S += [f"v_mul_f32 v{b(u)}, v{b(u)}, v{h(u - 2)}" for u in e(4)]
        T += [f"v_exp_f32 v{b(u)}, v{b(u)}" for u in e(0)]
        T += [f"v_rcp_f32 v{b(u)}, v{b(u)}" for u in e(1)]
        T += [f"v_exp_f32 v{h(u - 2)}, v{b(u)}" for u in e(2)]
        T += [f"v_rcp_f32 v{h(u - 2)}, v{h(u - 2)}" for u in e(3)]
        T += [f"v_cvt_pk_bf16_f32 v{pk[u >> 4] + ((u & 15) >> 1)}, v{b(u)}, v{b(u + 1)}" for u in e(4)[::2]]
        bp = base[0] if j < ng // 2 + 2 else base[1]
        setp(bp)
        if (j, 'S') in hooks: hooks.pop((j, 'S'))()
        if s.opt.hack & 16 and getattr(s, 'isb', 0) and mp == 1: S = []; T = []
        for t in S: emit(t, j)
        if toggle: setp(bp + 1)
        if (j, 'T') in hooks: hooks.pop((j, 'T'))()
        for t in T: emit(t, j)
        done = (j - 3) * n
        if done > 0 and done % 8 == 0:
            mm = (done - 8) >> 4; q = ((done - 8) >> 3) & 1
            pend.append((f"ds_write_b128 v{TMP if q else SWR}, {vr(pk[mm] + 4 * q, 4)} offset:{S_BASE + (2 * mp + mm) * 16384}", f"sw{2 * mp + mm}"))
        if j >= (wfrom if wfrom >= 0 else ng + 4 + wfrom) or j == wonce:
            while pend: s.lgop(*pend.pop(0))
    assert not hooks and not inj, (hooks, len(inj))
    return [(lambda w=w: s.lgop(*w)) for w in pend]


OW = [OWR, XRE, XRO, WDMA]


def epi_ops(s, m, acc):
    pol = int(f"{s.opt.ont:04d}"[m])
    ntf = lambda i: ["", " nt", " sc1", " sc0 sc1", " sc0 sc1 nt", " sc1 nt"][pol if pol < 6 else (2, 5)[i & 1]]
    ops = []
    for ct in range(2):
        for q in range(2):
            d = acc + 16 * ct + 4 * q
            def cv(ct=ct, q=q, d=d, lo=0, hi=4):
                for i in range(lo, hi):
                    if s.opt.hack & 64 and m < 3: continue
                    s.e(f"v_cvt_pk_bf16_f32 v{d + i}, v{acc + 16 * ct + 8 * q + 2 * i}, v{acc + 16 * ct + 8 * q + 2 * i + 1}")
            def wr(ct=ct, q=q, d=d):
                if s.opt.hack & 128 and m < 3: return
                s.lgop(f"ds_write_b128 v{OW[2 * ct + q]}, {vr(d, 4)}", f"ow{m}")
            ops += [cv, wr]
    dst = [acc + 8, acc + 12, acc + 24, acc + 28]
    def rd(lo):
        if s.opt.hack & 512 and m < 3: return
        for i in range(lo, lo + 2):
            s.lgop(f"ds_read_b128 {vr(dst[i], 4)}, v{ORD} offset:{i * 1024}", f"or{m}_{i}")
    ops.append(lambda: rd(0))
    ops.append(lambda: rd(2))
    def st(i):
        if s.opt.hack & 256 and m < 3: return
        so = (48 - 16 * m + 8 * i) * 512 if i < 2 else (62 + 16 * m + 8 * (i - 2)) * 512
        s.e(f"s_movk_i32 s{sT1}, {so}" if so < 32768 else f"s_mov_b32 s{sT1}, {so}")
        if m == 0 and i == 1: s.e("s_mov_b32 exec_hi, 0x00ffffff")
        if m == 0 and i == 2: s.e("s_mov_b32 exec_lo, 0xffffff00")
        s.wait(lg=f"or{m}_{i}")
        s.vmop(f"buffer_store_dwordx4 {vr(dst[i], 4)}, v{GST}, s[{SO}:{SO+3}], s{sT1} offen{ntf(i)}", f"st{m}")
        if m == 0 and i in (1, 2): s.e("s_mov_b64 exec, -1")
    sts = [(lambda i=i: st(i)) for i in range(4)]
    return ops, sts


def s_read1(s, m, ks, f, rd):
    s.lgop(f"ds_read_b64_tr_b16 {vr(f + 2 * rd, 2)}, v{SRD_} offset:{S_BASE + m * 16384 + ks * 1024 + rd * 512}", f"sr{m}_{ks}")


def g2_ops(s, steps, extra):
    def one(i, ct):
        m, ks, acc, _ = steps[i]
        if ct == 0: s.wait(lg=f"sr{m}_{ks}")
        s.e(mfma(acc + 16 * ct, (W1A, W1B)[ct] + 4 * ks, F[i % 4], ks == 0))
        if i + 3 < len(steps):
            m2, k2, _, pre2 = steps[i + 3]
            if pre2 and ct == 0: pre2()
            if m2 == 0 and k2 >= 8: w_tr1(s, k2, 1, ct)
            s_read1(s, m2, k2, F[(i + 3) % 4], ct)
        if 2 * i + ct in extra: extra.pop(2 * i + ct)()
    return [(lambda i=i, ct=ct: one(i, ct)) for i in range(len(steps)) for ct in range(2)]


def g2_prefetch(s, steps):
    for i in range(3):
        m, ks, _, pre = steps[i]
        assert pre is None
        s_read(s, m, ks, F[i])


def finish(s, grp):
    if s.opt.probe >= 0:
        s.e("s_waitcnt vmcnt(0)")
        s.ts(-1)
        if grp == 1:
            s.e("s_endpgm")
            return
        s.e("s_memrealtime s[96:97]\ns_waitcnt lgkmcnt(0)\ns_sub_u32 s94, s94, s92\ns_lshl_b32 s94, s94, 2")
        s.e(f"L_spin{grp}:")
        s.e("s_memrealtime s[98:99]\ns_waitcnt lgkmcnt(0)\ns_sub_u32 s98, s98, s96\ns_cmp_lt_u32 s98, s94")
        s.e(f"s_cbranch_scc1 L_spin{grp}")
    if s.opt.ts:
        s.e("s_waitcnt vmcnt(0)")
        s.ts(-1)
        s.e("s_memrealtime s[94:95]")
        s.e("s_load_dwordx2 s[96:97], s[0:1], 48")
        s.e("s_waitcnt lgkmcnt(0)")
        s.e("s_mov_b32 s98, 0x100000\ns_mov_b32 s99, 0x20000")
        s.e(f"s_lshl_b32 s3, s2, 3\ns_add_u32 s3, s3, s{sW}\ns_lshl_b32 s3, s3, 7\nv_mov_b32 v1, s3")
        s.e("v_mov_b32 v3, s92\nbuffer_store_dword v3, v1, s[96:99], 0 offen")
        s.e("v_mov_b32 v3, s94\nbuffer_store_dword v3, v1, s[96:99], 0 offen offset:4")
        for m in range(s.nts):
            s.e(f"s_sub_u32 s4, s{sTS + 2 * m}, s{90 if s.opt.ts == 1 else 92}\nv_mov_b32 v3, s4\nbuffer_store_dword v3, v1, s[96:99], 0 offen offset:{8 + 4 * m}")
    s.e("s_endpgm")


def dw_load(s):
    J, HH = 17, 18
    e = s.e
    e(f"s_lshl_b32 s{sT2}, s{sW}, 6")
    e(f"v_lshl_add_u32 v{DWC}, v{J}, 1, s{sT2}")
    e(f"v_lshl_add_u32 v{DWN}, v{HH}, 10, v{DWC}")
    e(f"v_xor_b32 v{DWP}, 1024, v{DWN}")
    e(f"s_mov_b32 s{SD+2}, 1536")
    e(f"s_mov_b32 s{SD+3}, 0x20000")
    s.vmop(f"buffer_load_ushort v{DWC}, v{DWC}, s[{SD}:{SD+3}], 0 offen offset:512", "dw")
    s.vmop(f"buffer_load_ushort v{DWN}, v{DWN}, s[{SD}:{SD+3}], 0 offen", "dw")
    s.vmop(f"buffer_load_ushort v{DWP}, v{DWP}, s[{SD}:{SD+3}], 0 offen", "dw")


def dw_fix(s):
    s.wait(vm="dw")
    for r in (DWP, DWC, DWN):
        s.e(f"v_lshlrev_b32 v{r}, 16, v{r}")
    for r in (DWP, DWC, DWN):
        s.e(f"v_mul_f32 v{r}, v{VC}, v{r}")


def early(s):
    o = s.opt
    e = s.e
    L_, J, HH, a, b, c, d = range(16, 23)
    e("s_cmp_ge_u32 s2, 256")
    e("s_cbranch_scc1 L_done")
    if o.ts or o.probe >= 0:
        e("s_memrealtime s[92:93]")
        e("s_memtime s[90:91]")
    e("s_load_dwordx4 s[4:7], s[0:1], 0")
    e(f"v_readfirstlane_b32 s{sW}, v0")
    e(f"v_and_b32 v{a}, 3, v0")
    e(f"v_bfe_u32 v{c}, v0, 4, 2")
    e(f"v_bfe_u32 v{b}, v0, 2, 2")
    if o.rot == 3:
        e(f"s_mul_i32 s3, s2, 45")
        e(f"s_lshr_b32 s3, s3, 3")
    else:
        e(f"s_lshr_b32 s3, s2, 3")
    if o.rot == 2:
        e(f"s_xor_b32 s3, s3, s2")
        e(f"s_lshr_b32 s{sT0}, s2, 6")
        e(f"s_xor_b32 s3, s3, s{sT0}")
    e(f"s_and_b32 s3, s3, {7 if o.rot else 0}")
    e(f"s_lshr_b32 s{sW}, s{sW}, 6")
    e(f"s_and_b32 s{sWQ}, s{sW}, 3")
    e(f"s_mov_b32 s{SX+3}, 0x20000")
    if o.pf & 4:
        e(f"s_cmp_lt_u32 s{sW}, 4")
        e("s_cbranch_scc1 L_e0")
        prefetch_code(s)
        e("L_e0:")
    e(f"s_and_b32 s{sT1}, s{sW}, 4")
    e(f"s_add_u32 s{sT1}, s{sT1}, s{sW}")
    e(f"s_add_u32 s{sXM0}, s{sT1}, {X_BASE >> 12}")
    e(f"s_lshl_b32 s{sXM0}, s{sXM0}, 12")
    e(f"v_lshl_add_u32 v{b}, s{sT1}, 2, v{b}")
    e(f"v_lshl_add_u32 v{d}, v{c}, 2, v{a}")
    e(f"s_lshl_b32 s{sT0}, s3, 1")
    e(f"s_and_b32 s{sXH0}, s{sT0}, 8")
    e(f"s_and_b32 s{sT0}, s{sT0}, 6")
    e(f"s_and_b32 s{sRING}, s{sW}, 1")
    e(f"s_add_u32 s{sT0}, s{sT0}, s{sRING}")
    e(f"s_lshl_b32 s{sT0}, s{sT0}, 1")
    e(f"v_xor_b32 v{d}, s{sT0}, v{d}")
    e(f"s_xor_b32 s{sXH1}, s{sXH0}, 8")
    e(f"s_lshl_b32 s{sXH0}, s{sXH0}, 5")
    e(f"s_lshl_b32 s{sXH1}, s{sXH1}, 5")
    e(f"s_lshr_b32 s{sT1}, s2, 7")
    e(f"s_lshl_b32 s{sT0}, s{sT1}, 7")
    e(f"s_sub_u32 s{sT0}, s2, s{sT0}")
    e(f"s_mulk_i32 s{sT0}, 125")
    e(f"s_add_u32 s{sT0}, s{sT0}, 62")
    e(f"v_sub_u32 v{c}, s{sT0}, v{b}")
    e(f"v_add3_u32 v{b}, v{b}, s{sT0}, 1")
    e(f"v_lshl_add_u32 v{XD0}, v{c}, 5, v{d}")
    e(f"v_xor_b32 v{d}, 1, v{d}")
    e(f"v_lshl_add_u32 v{XD1}, v{b}, 5, v{d}")
    e(f"v_lshlrev_b32 v{XD0}, 4, v{XD0}")
    e(f"v_lshlrev_b32 v{XD1}, 4, v{XD1}")
    e(f"s_mov_b32 s{SX+2}, 8192000")
    e(f"s_mul_i32 s{sXB}, s{sT1}, s{SX+2}")
    e(f"v_add_u32 v{XD2}, -8192, v{XD0}")
    e(f"v_add_u32 v{XD3}, 8192, v{XD1}")
    e(f"s_cmp_ge_u32 s{sW}, 4")
    e("s_cbranch_scc1 L_e1")
    if o.wf:
        e(f"v_bfe_u32 v{b}, v0, 2, 4")
        e(f"v_lshl_add_u32 v{b}, v{b}, 6, v{a}")
        e(f"v_lshlrev_b32 v{WDMA}, 4, v{b}")
        e(f"s_and_b32 s{sT0}, s{sW}, 2")
        e(f"s_lshl_b32 s{sT0}, s{sT0}, 1")
        e(f"s_add_u32 s{sT0}, s{sRING}, s{sT0}")
        e(f"s_lshl_b32 m0, s{sT0}, 14")
        e(f"s_lshl_b32 s{sT0}, s3, 15")
        e(f"s_lshl_b32 s{sT2}, s{sW}, 6")
        e(f"s_sub_u32 s{SW1+2}, 262144, s{sT2}")
        e(f"s_mov_b32 s{SW1+3}, s{SX+3}")
    else:
        e(f"s_mov_b32 m0, s{sXM0}")
    e("s_waitcnt lgkmcnt(0)")
    s.ts(1); s.ts(3)
    if o.wf:
        e(f"s_add_u32 s{SW1}, s6, s{sT2}")
        e(f"s_addc_u32 s{SW1+1}, s7, 0")
        for ks in range(o.wf):
            if ks:
                e("s_addk_i32 m0, 1536")
                e(f"s_addk_i32 s{sT0}, 16384")
            s.vmop(f"buffer_load_dwordx4 v{WDMA}, s[{SW1}:{SW1+3}], s{sT0} offen lds", f"w0a{ks}")
            e("s_addk_i32 m0, 512")
            e("s_nop 0")
            s.vmop(f"buffer_load_dwordx4 v{WDMA}, s[{SW1}:{SW1+3}], s{sT0} offen offset:512 lds", f"w0b{ks}")
        e(f"s_mov_b32 m0, s{sXM0}")
    e(f"s_add_u32 s{SX}, s4, s{sXB}")
    e(f"s_addc_u32 s{SX+1}, s5, 0")
    nt = "nt " if o.xnt else ""
    cur = 0
    for i in range(o.xn):
        mm, h, half = (i >> 1) & 1, i & 1, i >> 2
        if o.xn == 8 and o.xo: mm, h, half = i >> 2, (i >> 1) & 1, i & 1
        pos = mm * 16384 + h * 2048 + half * 1024
        if i:
            e(f"s_addk_i32 m0, {pos - cur}")
            e("s_nop 0")
        cur = pos
        s.vmop(f"buffer_load_dwordx4 v{(XD0, XD1, XD2, XD3)[2 * mm + h]}, s[{SX}:{SX+3}], s{sXH0 + half} offen {nt}lds", f"x{half}")
    if o.pf & 8:
        e(f"v_and_b32 v{c}, 15, v0")
        e(f"s_mov_b32 s{SC}, s6\ns_mov_b32 s{SC+1}, s7\ns_mov_b32 s{SC+2}, 262144\ns_mov_b32 s{SC+3}, s{SX+3}")
        e(f"v_lshlrev_b32 v{c}, 7, v{c}")
        e(f"s_lshr_b32 s{sT0}, s2, 3\ns_lshl_b32 s{sT0}, s{sT0}, 2\ns_add_u32 s{sT0}, s{sT0}, s{sWQ}\ns_lshl_b32 s{sT0}, s{sT0}, 11")
        s.vmop(f"buffer_load_dword v{C1}, v{c}, s[{SC}:{SC+3}], s{sT0} offen{' nt' if o.pnt else ''}", "pf")
    s.ts(3)
    e("L_e1:")
    e(f"s_load_dwordx2 s[{SD}:{SD+1}], s[0:1], 16")
    e(f"s_load_dwordx2 s[{SW2}:{SW2+1}], s[0:1], 24")
    e(f"s_load_dwordx2 s[{SO}:{SO+1}], s[0:1], 32")
    e(f"v_and_b32 v{L_}, 63, v0")
    e(f"v_and_b32 v{J}, 31, v0")
    e(f"v_bfe_u32 v{HH}, v0, 5, 1")
    e(f"v_lshrrev_b32 v{b}, 2, v{L_}")
    e(f"v_lshl_add_u32 v{b}, v{b}, 6, v{a}")
    e(f"v_lshlrev_b32 v{WDMA}, 4, v{b}")
    e(f"s_lshl_b32 s{sROT1}, s3, 15")
    e(f"s_and_b32 s{sT0}, s{sW}, 2")
    e(f"s_lshl_b32 s{sT0}, s{sT0}, 1")
    e(f"s_add_u32 s{sRING}, s{sRING}, s{sT0}")
    e(f"s_add_u32 s{sRING2}, s{sWQ}, {R3_BASE >> 14}")
    e(f"s_cmp_ge_u32 s{sW}, 4")
    e(f"s_cselect_b32 s{sRING}, s{sRING2}, s{sRING}")
    e(f"s_lshl_b32 s{sRING}, s{sRING}, 14")
    e(f"s_lshl_b32 s{sRING2}, s{sRING2}, 14")
    e(f"s_lshl_b32 s{sT2}, s{sW}, 6")
    e(f"s_sub_u32 s{SW1+2}, 262144, s{sT2}")
    e(f"s_mov_b32 s{SW1+3}, s{SX+3}")
    if o.a0:
        e(f"s_cmp_ge_u32 s{sW}, 4")
        e("s_cbranch_scc1 L_e4")
        e(f"s_add_u32 s{SW1}, s6, s{sT2}")
        e(f"s_addc_u32 s{SW1+1}, s7, 0")
        for ks in range(o.a0):
            w_dma(s, ks, 0)
        e("L_e4:")
    addr_common(s)
    e("s_waitcnt lgkmcnt(0)")
    e(f"s_add_u32 s{SX}, s4, s{sXB}")
    e(f"s_addc_u32 s{SX+1}, s5, 0")
    e(f"s_add_u32 s{SW1}, s6, s{sT2}")
    e(f"s_addc_u32 s{SW1+1}, s7, 0")
    dw_load(s)
    s.ts(3)
    e(f"s_cmp_ge_u32 s{sW}, 4")
    e("s_cbranch_scc1 L_e3")
    assert o.wf <= 2 and not (o.wf and o.a0)
    for ks in range(o.a0 + o.wf, o.d0):
        w_dma(s, ks, 0)
        i = o.xn + ks - o.xs
        if o.xn <= i < 8: x_dma1(s, (i >> 1) & 1, i & 1, 1)
    s.ts(1)
    s.wait(vm="x0" if o.xn < 8 else "x1")
    if o.pf & 2:
        e("s_branch L_e2")
        e("L_e3:")
        prefetch_w(s)
    else:
        e("L_e3:")
    e("L_e2:")
    s.ts(3)
    s.barrier()
    s.ts(); s.ts(3)
    e(f"s_cmp_ge_u32 s{sW}, 4")
    e("s_cbranch_scc1 L_grp_b")


def stream_a(s):
    o = s.opt
    D = max(o.d0, 6)
    wq = [(k, p) for k in range(o.d0, 16) for p in range(2)]
    s.prio(3)
    for ks in range(2):
        w_tr(s, ks, 0)
        x_read(s, 0, ks)
    late = Stream(o)
    addr_a(late)
    late = late.L
    def hook0(ks, pos):
        if pos in (0, 2) and wq:
            k, p = wq.pop(0); w_dma1(s, k, 0, p)
        if pos == 3:
            i = o.xn + ks + o.d0 - o.xs
            if o.xn <= i < 8: x_dma1(s, (i >> 1) & 1, i & 1, 1)
        if pos == 3 and o.dx <= ks < o.dx + D - o.d0:
            for _ in range(2):
                k, p = wq.pop(0); w_dma1(s, k, 0, p)
        if pos == 0 and ks == 6 and o.xn < 8: s.barrier(vm="x1")
        if pos == 2 and ks == o.b0b: s.barrier()
        if pos == 0 and ks == 16 - D: dw_fix(s)
        if ks > 16 - D and pos in (0, 2):
            for _ in range(5):
                if late: s.e(late.pop(0))
        if pos == 3 and ks == 15:
            assert not late
            s.e(f"v_mov_b32 v{WDMA}, v{W2DMA0}")
            s.e(f"v_mov_b32 v{WTR}, v{W2TR0}")
    g1(s, 0, True, hook0)
    s.ts()
    def pre2():
        s.barrier()
        x_read(s, 1, 0); x_read(s, 1, 1)
    wr = act2(s, 0, {(o.b1a, 'T'): lambda: s.barrier(), (o.b2a, 'S'): pre2}, (o.pa0, o.pa1), o.tog & 1, 99, (F[0], F[2]))
    s.ts()
    s.prio(3)
    dq = [(k, p) for k in range(8) for p in range(2)]
    tq = list(dq)
    def hook1(ks, pos):
        n = 4 * ks + pos
        if n == 24: s.barrier()
        if 25 <= n <= 28: wr[n - 25]()
        if n >= 30 and pos in (0, 2) and dq:
            k, p = dq.pop(0); w_dma1(s, k, 1, p)
        if n >= 30 + 4 * o.lag and pos in (1, 3):
            k, p = tq.pop(0); w_tr1(s, k, 1, p)
    g1(s, 1, False, hook1)
    assert not dq
    s.ts()
    accs = [G, ACC[0], ACC[1], G]
    lo = lambda m, f=None: [(m, ks, accs[m], f if ks == 0 else None) for ks in range(8)]
    hi = lambda m, f=None: [(m, ks, accs[m], f if ks == 8 else None) for ks in range(8, 16)]
    st4 = lo(0) + hi(0) + lo(1) + hi(1) + lo(2) + hi(2, lambda: s.barrier(lg="sw3")) + lo(3)
    def owa():
        for i, x in ((1, 16), (2, 64), (3, 80)): s.e(f"v_xor_b32 v{OW[i]}, {x}, v{OWR}")
        for k, p in tq: w_tr1(s, k, 1, p)
    ex = {}
    gops = g2_ops(s, st4, ex)
    ni = 2 * o.ninj
    assert o.ninj == 0 or o.inj0 >= o.b4a
    wr = act2(s, 1, {(o.b3a - 1 - o.tra, 'T'): owa, (o.b3a, 'S'): lambda: s.barrier(lg="w1r7"), (o.b4a, 'S'): lambda: s.barrier(lg="sw2"),
                     ((o.inj0 - 1, 'T') if ni else (-1, 'S')): lambda: g2_prefetch(s, st4)}, (o.pa2, o.pa3), o.tog & 4, 99,
              None, gops[:ni], o.inj0, o.injc, o.b4a - o.wa)
    assert len(wr) == 2
    s.ts()
    s.prio(3)
    for i in range(2): ex[26 + 2 * i] = wr[i]
    for m in range(3):
        ops, sts = epi_ops(s, m, accs[m])
        if m < 2 and (not o.epc or m >= o.epm):
            for i, f in enumerate(ops + [None] + sts):
                n = 32 * m + 34 + 2 * i
                if i < 8 and i % 2 == 0 and o.epf:
                    ex[n - 1] = (lambda f=f: f(hi=1)); ex[n] = (lambda f=f: f(lo=1, hi=3)); ex[n + 1] = (lambda f=f: f(lo=3))
                elif f: ex[n] = f
        elif m < 2:
            for i, f in enumerate(ops): ex[32 * m + 33 + i] = f
            for i, f in enumerate(sts): ex[32 * m + 44 + o.epc * (i + 1)] = f
        else:
            for i, f in enumerate(ops): ex[97 + i] = f
    FF = [ACC[0] + 4 * i for i in range(8)]
    def last(i):
        if i == 0: s.barrier()
        s_read(s, 3, 8 + 2 * i, FF[2 * i]); s_read(s, 3, 9 + 2 * i, FF[2 * i + 1])
    nb = 112 - o.b6a
    for i in range(4):
        if nb + i < 112: ex[nb + i] = (lambda i=i: last(i))
    for f in gops[ni:]: f()
    assert not ex, ex
    s.ts()
    for i in range(4):
        if nb + i >= 112: last(i)
    sts2 = sts
    ops, sts = epi_ops(s, 3, accs[3])
    for i in range(8):
        s.wait(lg=f"sr3_{8 + i}")
        s.e(mfma(accs[3], W1A + 4 * (8 + i), FF[i], False))
        if i < 4: sts2[i]()
    for i in range(8):
        s.e(mfma(accs[3] + 16, W1B + 4 * (8 + i), FF[i], False))
        if 2 <= i < 6: ops[i - 2]()
    s.ts()
    s.e("s_nop 11")
    for f in ops[4:] + sts: f()
    finish(s, 0)


def stream_b(s):
    s.isb = 1
    o = s.opt
    D = o.d1
    jt = 16 // o.n + 4
    dw_fix(s)
    addr_w2(s)
    if o.pf & 16:
        if o.s8:
            s.e(f"v_lshlrev_b32 v{ORD}, 9, v17")
            s.e(f"s_lshl_b32 s{sT1}, s{sSH}, 14")
        else:
            s.e(f"v_and_b32 v{ORD}, 7, v16")
            s.e(f"v_lshlrev_b32 v{ORD}, 9, v{ORD}")
            s.e(f"s_lshr_b32 s{sT1}, s2, 3\ns_lshl_b32 s{sT1}, s{sT1}, 12")
    s.prio(0)
    if o.xn < 8: s.barrier()
    s.barrier()
    for ks in range(D):
        w_dma(s, ks, 0)
    for ks in range(2):
        w_tr(s, ks, 0)
        x_read(s, 0, ks)
    if o.b1b < 0: s.barrier()
    s.ts()
    s.prio(o.pbg)
    assert o.b1b <= o.xb0
    def first_pass(xb0, xsp0, xb1, xsp1):
        dq = [(k, p) for k in range(D, 16) for p in range(2)]
        xq = {}
        for i in range(8):
            n = 4 * xb0 + 3 + xsp0 * i if i < 4 else 4 * xb1 + 3 + xsp1 * (i - 4)
            xq.setdefault(n, []).append(i)
        def hook0(ks, pos):
            if pos == 3 and ks == o.b1b: s.barrier()
            if pos in (0, 2) and dq:
                k, p = dq.pop(0); w_dma1(s, k, 0, p)
            for i in xq.pop(4 * ks + pos, []):
                assert len(dq) % 2 == 0
                x_dma1(s, (i >> 1) & 1, i & 1, i >> 2)
            if 4 * ks + pos == 47 and o.pf & 16:
                assert not dq and not xq
                s.vmop(f"buffer_load_dword v{OWR}, v{ORD}, s[{SW2}:{SW2+3}], s{sT1} offen{' nt' if o.pnt else ''}", "pf")
        g1(s, 0, True, hook0)
        assert not dq and not xq
    if o.cls:
        vm, lg, nts = list(s.vm), list(s.lg), s.nts
        s.e(f"s_bitcmp1_b32 s{sSH}, {o.cls - 1}")
        s.e("s_cbranch_scc1 L_cls1")
        assert o.b1b <= o.xe0
        first_pass(o.xe0, 0, o.xe1, 1 if o.xe1 >= 15 - D else 0)
        s.e("s_branch L_cls2")
        s.e("L_cls1:")
        s.vm, s.lg, s.nts = vm, lg, nts
        s.dup = 1
    first_pass(o.xb0, o.xsp0, o.xb1, o.xsp1)
    if o.cls: s.e("L_cls2:")
    s.ts()
    def pre():
        x_read(s, 1, 0); x_read(s, 1, 1)
        s.e(f"v_mov_b32 v{WDMA}, v{W2DMA0}")
    wr = act2(s, 0, {(o.b2b, 'S'): lambda: s.barrier(vm="x0"), (o.b2c, 'S'): lambda: s.barrier(vm="x1"), (-2, 'T'): pre},
              (o.pb0, o.pb1), o.tog & 2, 99, (F[0], F[2]))
    s.ts()
    s.prio(3)
    def hook1(ks, pos):
        if pos in (0, 2) and o.wb <= ks < o.wb + 2: wr[2 * (ks - o.wb) + (pos >> 1)]()
        if pos == 3 and ks == o.b3b: s.barrier()
        if pos in (0, 2) and o.b3b < ks <= o.b3b + 8: w_dma1(s, ks - o.b3b + 7, 1, pos >> 1)
    assert o.wb + 2 <= o.b3b + 1
    g1(s, 1, False, hook1)
    s.ts()
    act2(s, 1, {(o.b4b, 'T'): lambda: s.barrier(vm="w1b15", lg="sw1"), (jt + o.b5b, 'T'): lambda: s.barrier(lg="sw2")}, (o.pb2, o.pb3), o.tog & 8)
    s.ts()
    s.barrier(lg="sw3")
    finish(s, 1)


def prefetch_w(s):
    e = s.e
    e(f"v_lshlrev_b32 v{C0}, 7, v16")
    e(f"s_bfe_u32 s{sT0}, s2, 0x50003")
    e(f"s_lshl_b32 s{sT0}, s{sT0}, 2")
    e(f"s_add_u32 s{sT0}, s{sT0}, s{sWQ}")
    e(f"s_lshl_b32 s{sT1}, s{sT0}, 10")
    e(f"s_lshl_b32 s{sT0}, s{sT0}, 11")
    e(f"s_mov_b32 s{SC}, s6\ns_mov_b32 s{SC+1}, s7\ns_mov_b32 s{SC+2}, 262144\ns_mov_b32 s{SC+3}, 0x20000")
    e(f"s_mov_b32 s{SW2+2}, 131072\ns_mov_b32 s{SW2+3}, 0x20000")
    e("s_mov_b64 exec, 0xffff")
    e(f"buffer_load_dword v{C1}, v{C0}, s[{SC}:{SC+3}], s{sT0} offen")
    e("s_mov_b64 exec, 0xff")
    e(f"buffer_load_dword v{OWR}, v{C0}, s[{SW2}:{SW2+3}], s{sT1} offen")
    e("s_mov_b64 exec, -1")


def prefetch_code(s):
    e = s.e
    if s.opt.pbs: e("s_setprio 3")
    e(f"s_getpc_b64 s[{SC}:{SC+1}]")
    e("L_pc:")
    e(f"s_mov_b32 s{SC+2}, L_done-L_pc")
    e(f"s_mov_b32 s{SC+3}, s{SX+3}")
    if s.opt.hw:
        e(f"s_getreg_b32 s{sSH}, hwreg(HW_REG_HW_ID, 8, 3)")
    else:
        e(f"s_mov_b32 s{sSH}, s3")
    e(f"s_lshl_b32 s{sT0}, s{sSH}, 2")
    e(f"s_add_u32 s{sT0}, s{sT0}, s{sWQ}")
    e(f"s_lshl_b32 s{sT0}, s{sT0}, 6")
    e("L_pfl:")
    e(f"s_buffer_load_dword s44, s[{SC}:{SC+3}], s{sT0}")
    e(f"s_buffer_load_dword s45, s[{SC}:{SC+3}], s{sT0} offset:2048")
    e(f"s_addk_i32 s{sT0}, 4096")
    e(f"s_cmp_lt_u32 s{sT0}, s{SC+2}")
    e("s_cbranch_scc1 L_pfl")


def addr_common(s):
    e = s.e
    L_, J, HH, a, b, c, d, Gq, R, CC = range(16, 26)
    e(f"v_mov_b32 v{VC}, {LIT}")
    e(f"v_bfe_u32 v{Gq}, v{L_}, 4, 1")
    e(f"v_bfe_u32 v{R}, v{L_}, 2, 2")
    e(f"v_and_b32 v{CC}, 3, v{L_}")
    e(f"v_lshrrev_b32 v{a}, 2, v{J}")
    e(f"v_xor_b32 v{b}, v{HH}, v{R}")
    e(f"v_lshlrev_b32 v{b}, 4, v{b}")
    e(f"v_lshl_add_u32 v{b}, v{CC}, 6, v{b}")
    e(f"v_add_u32 v{a}, {X_BASE >> 11}, v{a}")
    e(f"v_lshl_add_u32 v{XRE}, v{a}, 11, v{b}")
    e(f"v_xor_b32 v{XRO}, 32, v{XRE}")
    e(f"v_lshl_add_u32 v{a}, v{HH}, 3, v{R}")
    e(f"v_lshl_add_u32 v{a}, v{a}, 1, v{Gq}")
    e(f"v_lshl_add_u32 v{a}, v{a}, 2, v{CC}")
    e(f"v_lshl_add_u32 v{WTR}, v{a}, 3, s{sRING}")
    e(f"s_lshl_b32 s{sT0}, s{sW}, 1")
    e(f"s_xor_b32 s{sT0}, s{sT0}, s3")
    e(f"s_lshl_b32 s{sT0}, s{sT0}, 4")
    e(f"v_xor_b32 v{a}, s{sT0}, v{J}")
    e(f"v_bfe_u32 v{c}, v{J}, 1, 2")
    e(f"v_lshlrev_b32 v{d}, 1, v{HH}")
    e(f"v_xor_b32 v{c}, v{c}, v{d}")
    e(f"v_lshl_add_u32 v{a}, v{a}, 2, v{c}")
    e(f"v_lshlrev_b32 v{SWR}, 4, v{a}")
    e(f"v_xor_b32 v{TMP}, 16, v{SWR}")
    e("s_mov_b32 vcc_lo, 0")
    e("s_mov_b32 vcc_hi, -1")


def addr_w2(s):
    e = s.e
    L_, J, HH, a, b, c, d, Gq, R, CC, t = range(16, 27)
    e(f"s_lshl_b32 s{sROT2}, s3, 13")
    e(f"s_lshl_b32 s{sT2}, s{sWQ}, 7")
    e(f"s_add_u32 s{SW2}, s{SW2}, s{sT2}")
    e(f"s_addc_u32 s{SW2+1}, s{SW2+1}, 0")
    e(f"s_sub_u32 s{SW2+2}, 131072, s{sT2}")
    e(f"s_mov_b32 s{SW2+3}, 0x20000")
    e(f"v_lshrrev_b32 v{a}, 2, v{J}")
    e(f"v_lshl_add_u32 v{a}, v{a}, 3, v{HH}")
    e(f"v_lshl_add_u32 v{a}, v{a}, 2, v{CC}")
    e(f"v_lshlrev_b32 v{W2DMA0}, 4, v{a}")


def addr_a(s):
    e = s.e
    L_, J, HH, a, b, c, d, Gq, R, CC, t = range(16, 27)
    addr_w2(s)
    e(f"s_mul_i32 s{sT1}, s2, 64000")
    e(f"s_add_u32 s{SO}, s{SO}, s{sT1}")
    e(f"s_addc_u32 s{SO+1}, s{SO+1}, 0")
    e(f"s_mov_b32 s{SO+2}, 64000")
    e(f"s_mov_b32 s{SO+3}, 0x20000")
    e(f"v_lshl_add_u32 v{a}, v{HH}, 2, v{R}")
    e(f"v_lshrrev_b32 v{b}, 1, v{CC}")
    e(f"v_lshl_add_u32 v{b}, v{Gq}, 1, v{b}")
    e(f"v_and_b32 v{c}, 1, v{CC}")
    e(f"v_lshl_add_u32 v{t}, v{a}, 1, v{c}")
    e(f"v_lshl_add_u32 v{t}, v{t}, 2, v{b}")
    e(f"v_lshl_add_u32 v{W2TR0}, v{t}, 3, s{sRING2}")
    e(f"v_lshrrev_b32 v{t}, 1, v{a}")
    e(f"v_xor_b32 v{b}, v{b}, v{t}")
    e(f"v_lshl_add_u32 v{a}, v{a}, 2, v{b}")
    e(f"v_lshl_add_u32 v{a}, v{a}, 1, v{c}")
    e(f"v_lshlrev_b32 v{SRD_}, 3, v{a}")
    e(f"v_sub_u32 v{a}, 1, v{Gq}")
    e(f"v_mul_u32_u24 v{a}, 15, v{a}")
    e(f"v_xor_b32 v{a}, v{a}, v{J}")
    e(f"v_and_b32 v{c}, 7, v{a}")
    e(f"v_xor_b32 v{c}, v{c}, v{d}")
    e(f"v_lshl_add_u32 v{a}, v{a}, 3, v{c}")
    e(f"v_lshl_add_u32 v{OWR}, v{a}, 4, s{sRING2}")
    e(f"v_lshrrev_b32 v{a}, 3, v{L_}")
    e(f"v_xor_b32 v{b}, v{a}, v{L_}")
    e(f"v_lshl_add_u32 v{ORD}, v{b}, 4, s{sRING2}")
    e(f"v_and_b32 v{b}, 7, v{L_}")
    e(f"v_lshl_add_u32 v{b}, v{a}, 5, v{b}")
    e(f"v_lshl_add_u32 v{GST}, v{b}, 4, s{sT2}")
    if s.opt.hack & 1024:
        e(f"s_lshl_b32 s{sT2}, s{sT2}, 3")
        e(f"v_lshl_add_u32 v{GST}, v{L_}, 4, s{sT2}")


TRANS = ("v_exp_f32", "v_rcp_f32")


def check(lines):
    ins = [l for x in lines for l in x.split("\n") if l and not l.endswith(":") and not l.startswith(".")]
    for p, q in zip(ins, ins[1:]):
        if p.startswith(TRANS) and q.startswith("v_") and not q.startswith(TRANS):
            d = re.match(r"\S+ (v\d+)", p).group(1)
            assert not re.search(r"\b" + d + r"\b", q), (p, q)


def flat(L):
    return [l for x in L for l in x.split("\n")]


def isize(l):
    if l.endswith(":") or l.startswith("."): return 0
    op = l.split()[0]
    if op.startswith(("v_mfma", "ds_", "buffer_", "v_cvt_pk", "v_fmaak", "v_lshl_add", "v_add3", "v_bfe", "s_load", "s_buffer", "s_mem")): return 8
    lits = re.findall(r"(?<![\w\[:(])(-?(?:0x[0-9a-f]+|\d+))(?![\w\].:)])", l.split(None, 1)[1] if " " in l else "")
    if op in ("s_nop", "s_setprio", "s_waitcnt"): return 4
    for x in lits:
        v = int(x, 0)
        if v > 64 or v < -16: return 8
    return 4


def add_pads(la, lb, opt):
    pos = []
    for si, L in enumerate((la, lb)):
        acc = 0; nxt = opt.hop0
        for i, l in enumerate(L):
            acc += isize(l)
            if acc >= nxt and l.startswith("v_") and "exec" not in "".join(L[max(0, i - 4):i + 4]):
                pos.append((acc + si * opt.hopb, si, i)); nxt = acc + opt.hop
    pos.sort()
    n = len(pos); c = opt.nch
    ins = {}
    for k, (_, si, i) in enumerate(pos):
        tgt = f"L_pad{k + c}" if k + c < n else "L_padend"
        ins[(si, i)] = [f"L_pad{k}:", f"s_cbranch_execz {tgt}"]
    res = []
    for si, L in enumerate((la, lb)):
        o = []
        for i, l in enumerate(L):
            o.append(l); o += ins.get((si, i), [])
        res.append(o)
    return res[0], res[1], ["L_padend:", "s_mov_b64 exec, -1", "s_branch L_back"]


def build(opt):
    pro = Stream(opt)
    early(pro)
    sa = Stream(opt); sa.nts = pro.nts; sa.vm = list(pro.vm)
    sb = Stream(opt); sb.nts = pro.nts; sb.vm = ["dw"] * 3
    stream_a(sa)
    stream_b(sb)
    assert sa.L.count("s_barrier") == sb.L.count("s_barrier") - (getattr(sb, "dup", 0) if opt.b1b >= 0 else 0)
    check(sa.L); check(sb.L)
    ref = open(f"cdna_kernels/{NAME}.s.ref").read().split("\n")
    head = [l for l in ref if l.startswith(";") and "@launch" not in l]
    out = head + ["; @launch grid=(256,1,1) block=(512,1,1) lds=163840",
                  '.amdgcn_target "amdgcn-amd-amdhsa--gfx950"', ".text", f".globl {NAME}_kernel", ".p2align 8",
                  f".type {NAME}_kernel,@function", f"{NAME}_kernel:"]
    la, lb = flat(sa.L), flat(sb.L)
    tail = []
    if opt.hop:
        la, lb, tail = add_pads(la, lb, opt)
    out += pro.L + la + [".p2align 6", "L_grp_b:"] + lb + tail + ["L_done:", "s_endpgm"]
    out += ['.section .rodata,"a"', ".p2align 6", f".amdhsa_kernel {NAME}_kernel",
            "  .amdhsa_next_free_vgpr 256", "  .amdhsa_next_free_sgpr 102", "  .amdhsa_accum_offset 256",
            "  .amdhsa_group_segment_fixed_size 0", "  .amdhsa_kernarg_size 56", "  .amdhsa_user_sgpr_count 2",
            "  .amdhsa_user_sgpr_kernarg_segment_ptr 1", "  .amdhsa_system_sgpr_workgroup_id_x 1",
            ".end_amdhsa_kernel", ""]
    return "\n".join(out)


if __name__ == "__main__":
    ap = argparse.ArgumentParser()
    ap.add_argument("-o", default=f"cdna_kernels/{NAME}.s")
    for k, v in dict(ts=0, probe=-1, tl=0, xnt=1, ont=4444, rot=3, pf=20, wnt=0, hw=1, epc=1, epm=1, wf=2, cls=0, xe0=2, xe1=10, s8=1, pnt=0, a0=0, d0=8, d1=6, b0b=7, n=2, hack=0, swp=0, w2p=1, hop=0,
                     b2a=-1, b2b=4, b2c=10, b1a=3, b1b=2, pbg=2, tra=0, wa=2, ninj=12, inj0=13, injc=24, epf=1, b3a=5, b3b=3, b4a=13, b4b=0, b5b=0, b6a=4, xb0=9, xb1=10, xsp0=1, xsp1=1, xn=8, xo=1, pbs=1, xs=0, dx=3, wb=0, lag=5,
                     tog=0, pa0=0, pa1=1, pa2=0, pa3=1, pb0=0, pb1=1, pb2=0, pb3=1).items():
        ap.add_argument("--" + k, type=int, default=v)
    opt = ap.parse_args()
    open(opt.o, "w").write(build(opt))
```

```python
import sys, argparse, re

NAME = "standalone__conformer_conv_module__speech"
LIT = "0xbfb8aa3b"

S_BASE, X_BASE, R3_BASE = 0, 32768, 98304

XRE, XRO, SWR, C0, C1, DWP, DWC, DWN, VC, WDMA, WTR, SRD_, OWR, ORD, GST, TMP = range(16)
F = [16, 20, 24, 28]
G = 32
XF = [32, 36, 40, 44, 48, 52]
XD0, XD1, W2DMA0, W2TR0, XD2, XD3 = 56, 57, 58, 59, 60, 61
ACC = [64, 96]
W1A, W1B = 128, 192

SX, SW1, SW2, SO, SD = 8, 12, 16, 20, 24
sW, sWQ, sROT1, sROT2, sXH0, sXH1, sXM0, sRING, sRING2, sT0, sT1, sT2 = range(28, 40)
SC = 40
sXB = 46
sSH = 47
sTS = 48


class Stream:
    def __init__(self, opt):
        self.L = []; self.vm = []; self.lg = []; self.opt = opt; self.nts = 0

    def e(self, s):
        self.L.append(s)

    def vmop(self, s, tag):
        self.L.append(s); self.vm.append(tag)

    def lgop(self, s, tag):
        self.L.append(s); self.lg.append(tag)

    def _cnt(self, q, tag):
        idx = [i for i, t in enumerate(q) if t == tag]
        if not idx:
            return None
        n = len(q) - 1 - idx[-1]
        del q[:idx[-1] + 1]
        return n

    def wait(self, vm=None, lg=None):
        parts = []
        if vm is not None:
            n = self._cnt(self.vm, vm)
            if n is not None:
                assert n <= 63
                parts.append(f"vmcnt({n})")
        if lg is not None:
            n = self._cnt(self.lg, lg)
            if n is not None:
                parts.append(f"lgkmcnt({min(n, 15)})")
        if parts:
            self.e("s_waitcnt " + " ".join(parts))

    def ts(self, lvl=0):
        if lvl != self.opt.tl and lvl != -1:
            return
        if self.opt.probe >= 0:
            if self.nts == self.opt.probe:
                self.e("s_memrealtime s[94:95]")
            self.nts += 1
        if self.opt.ts:
            op = "s_memtime" if self.opt.ts == 1 else "s_memrealtime"
            assert self.nts < 21
            self.e(f"{op} s[{sTS + 2 * self.nts}:{sTS + 2 * self.nts + 1}]")
            self.nts += 1

    def barrier(self, vm=None, lg=None):
        self.wait(vm=vm, lg=lg)
        self.ts(2)
        self.e("s_barrier")
        self.ts(2)

    def prio(self, p):
        self.e(f"s_setprio {p}")


def vr(a, n):
    return f"v[{a}:{a + n - 1}]"


def mfma(d, a, b, first):
    c = "0" if first else vr(d, 16)
    return f"v_mfma_f32_32x32x16_bf16 {vr(d, 16)}, {vr(a, 4)}, {vr(b, 4)}, {c}"


def x_dma1(s, mm, h, half):
    nt = "nt " if s.opt.xnt else ""
    r = (XD0, XD1, XD2, XD3)[2 * mm + h]
    s.e(f"s_add_u32 m0, s{sXM0}, {mm * 16384 + h * 2048 + half * 1024}")
    s.e("s_nop 0")
    s.vmop(f"buffer_load_dwordx4 v{r}, s[{SX}:{SX+3}], s{sXH0 + half} offen {nt}lds", f"x{half}")


def w_dma1(s, ks, which, part):
    wnt = ["", "nt ", "sc1 ", "sc0 sc1 "][s.opt.wnt]
    if which == 1 and s.opt.hack & 2: return
    slot = (ks & 7) * 2
    ring, rot, step, srd, off = ((sRING, sROT1, 16384, SW1, 512), (sRING2, sROT2, 8192, SW2, 64))[which]
    if which == 1 and s.opt.hack & 4: srd = SW1
    if which == 1 and s.opt.w2p:
        s.e(f"s_add_u32 m0, s{ring}, {(slot + part) * 1024}")
        s.e(f"s_xor_b32 s{sT0}, s{rot}, {ks * step + part * 4096}")
        s.vmop(f"buffer_load_dwordx4 v{WDMA}, s[{srd}:{srd+3}], s{sT0} offen {wnt}lds", f"w{which}{'ab'[part]}{ks}")
    elif part == 0:
        s.e(f"s_add_u32 m0, s{ring}, {slot * 1024}")
        s.e(f"s_xor_b32 s{sT0}, s{rot}, {ks * step}")
        s.vmop(f"buffer_load_dwordx4 v{WDMA}, s[{srd}:{srd+3}], s{sT0} offen {wnt}lds", f"w{which}a{ks}")
        s.e(f"s_add_u32 m0, s{ring}, {slot * 1024 + 1024 - off}")
    else:
        if s.L[-1].startswith("s_add_u32 m0"):
            s.e("s_nop 0")
        s.vmop(f"buffer_load_dwordx4 v{WDMA}, s[{srd}:{srd+3}], s{sT0} offen offset:{off} {wnt}lds", f"w{which}b{ks}")


def w_dma(s, ks, which):
    w_dma1(s, ks, which, 0)
    w_dma1(s, ks, which, 1)


def w_tr1(s, ks, which, part):
    slot = (ks & 7) * 2
    if not (which == 1 and s.opt.hack & 1): s.wait(vm=f"w{which}{'ab'[part]}{ks}")
    base = (W1A, W1B)[part]
    if which == 1 and s.opt.hack & 8: return
    if which == 1 and s.opt.w2p:
        for ct in range(2):
            s.lgop(f"ds_read_b64_tr_b16 {vr((W1A, W1B)[ct] + 4 * ks + 2 * part, 2)}, v{WTR} offset:{(slot + part) * 1024 + ct * 512}", f"w{which}r{ks}")
        return
    for rd in range(2):
        s.lgop(f"ds_read_b64_tr_b16 {vr(base + 4 * ks + 2 * rd, 2)}, v{WTR} offset:{(slot + part) * 1024 + rd * (512 if which else 256)}", f"w{which}r{ks}")


def w_tr(s, ks, which):
    w_tr1(s, ks, which, 0)
    w_tr1(s, ks, which, 1)


def x_read1(s, mp, ks, mm):
    if s.opt.hack & 32 and mp == 1: return
    a = XRO if ks & 1 else XRE
    s.lgop(f"ds_read_b128 {vr(XF[(ks % 3) * 2 + mm], 4)}, v{a} offset:{(2 * mp + mm) * 16384 + (ks >> 1) * 256}", f"xr{mp}_{ks}_{mm}")


def x_read(s, mp, ks):
    for mm in range(2):
        x_read1(s, mp, ks, mm)


def s_read(s, m, ks, f):
    for rd in range(2):
        s.lgop(f"ds_read_b64_tr_b16 {vr(f + 2 * rd, 2)}, v{SRD_} offset:{S_BASE + m * 16384 + ks * 1024 + rd * 512}", f"sr{m}_{ks}")


def g1(s, mp, stream, hook):
    for ks in range(16):
        for mm in range(2):
            f = XF[(ks % 3) * 2 + mm]
            s.wait(lg=f"xr{mp}_{ks}_{1 if stream else mm}")
            if mm == 0 and ks % 4 == 0: s.ts(1)
            s.e(mfma(ACC[mm] + 16, f, W1B + 4 * ks, ks == 0))
            hook(ks, 2 * mm)
            s.e(mfma(ACC[mm], f, W1A + 4 * ks, ks == 0))
            if ks + 2 < 16:
                if stream:
                    w_tr1(s, ks + 2, 0, mm)
                x_read1(s, mp, ks + 2, mm)
            hook(ks, 2 * mm + 1)


def act2(s, mp, hooks, base, toggle, wfrom=0, pk=None, inj=(), inj0=99, injc=0, wonce=-99):
    n = s.opt.n
    ng = 32 // n
    a_in = lambda u: ACC[u >> 4] + (u & 15)
    b = lambda u: ACC[u >> 4] + 16 + (u & 15)
    h = lambda u: C0 if u in (-2, 30) else C1 if u in (-1, 31) else a_in(u)
    hooks = dict(hooks)
    cur = [None]
    pend = []
    pk = pk or (ACC[0] + 16, ACC[1] + 16)
    inj = list(inj); cost = [0]
    def emit(t, j):
        s.e(t)
        if j >= inj0 and inj:
            cost[0] += 8 if t.startswith(TRANS) else 4
            if cost[0] >= injc:
                inj.pop(0)(); cost[0] = 0
    def setp(p):
        if cur[0] != p:
            s.prio(p); cur[0] = p
    hooks = {((k if k >= 0 else ng + 4 + k), t): f for (k, t), f in hooks.items()}
    for j in range(ng + 4):
        e = lambda k: [(j - k) * n + i for i in range(n)] if 0 <= j - k < ng else []
        S = []; T = []
        S += [f"v_mul_f32 v{b(u)}, v{VC}, v{b(u)}" for u in e(0)]
        S += [f"v_mul_f32 v{h(u)}, v{a_in(u)}, v{b(u)}" for u in e(2)]
        if mp == 0 and j == 2:
            S += [f"v_mov_b32 v{C0}, v{a_in(0)}", f"v_mov_b32 v{C1}, v{a_in(0)}"]
        S += [f"v_add_f32 v{b(u)}, 1.0, v{b(u)}" for u in e(1)]
        if mp == 0 and j == 2:
            S += [f"v_permlane32_swap_b32 v{C0}, v{C1}", f"v_cndmask_b32 v{C1}, v{C1}, v{C0}, vcc"]
        S += [f"v_mul_f32 v{b(u)}, v{DWN}, v{h(u)}" for u in e(2)]
        S += [f"v_fmac_f32 v{b(u)}, v{DWC}, v{h(u - 1)}" for u in e(2)]
        S += [f"v_fmac_f32 v{b(u)}, v{DWP}, v{h(u - 2)}" for u in e(2)]
        S += [f"v_fmaak_f32 v{h(u - 2)}, v{VC}, v{h(u - 2)}, {LIT}" for u in e(3)]
        S += [f"v_mul_f32 v{b(u)}, v{b(u)}, v{h(u - 2)}" for u in e(4)]
        T += [f"v_exp_f32 v{b(u)}, v{b(u)}" for u in e(0)]
        T += [f"v_rcp_f32 v{b(u)}, v{b(u)}" for u in e(1)]
        T += [f"v_exp_f32 v{h(u - 2)}, v{b(u)}" for u in e(2)]
        T += [f"v_rcp_f32 v{h(u - 2)}, v{h(u - 2)}" for u in e(3)]
        T += [f"v_cvt_pk_bf16_f32 v{pk[u >> 4] + ((u & 15) >> 1)}, v{b(u)}, v{b(u + 1)}" for u in e(4)[::2]]
        bp = base[0] if j < ng // 2 + 2 else base[1]
        if j >= inj0: bp = s.opt.pinj
        setp(bp)
        if (j, 'S') in hooks: hooks.pop((j, 'S'))()
        if s.opt.hack & 16 and getattr(s, 'isb', 0) and mp == 1: S = []; T = []
        for t in S: emit(t, j)
        if toggle: setp(bp + 1)
        if (j, 'T') in hooks: hooks.pop((j, 'T'))()
        for t in T: emit(t, j)
        done = (j - 3) * n
        if done > 0 and done % 8 == 0:
            mm = (done - 8) >> 4; q = ((done - 8) >> 3) & 1
            pend.append((f"ds_write_b128 v{TMP if q else SWR}, {vr(pk[mm] + 4 * q, 4)} offset:{S_BASE + (2 * mp + mm) * 16384}", f"sw{2 * mp + mm}"))
        if j >= (wfrom if wfrom >= 0 else ng + 4 + wfrom) or j == wonce:
            while pend: s.lgop(*pend.pop(0))
    assert not hooks and not inj, (hooks, len(inj))
    return [(lambda w=w: s.lgop(*w)) for w in pend]


OW = [OWR, XRE, XRO, WDMA]


def epi_ops(s, m, acc):
    pol = int(f"{s.opt.ont:04d}"[m])
    ntf = lambda i: ["", " nt", " sc1", " sc0 sc1", " sc0 sc1 nt", " sc1 nt"][pol if pol < 6 else (2, 5)[i & 1]]
    ops = []
    for ct in range(2):
        for q in range(2):
            d = acc + 16 * ct + 4 * q
            def cv(ct=ct, q=q, d=d, lo=0, hi=4):
                for i in range(lo, hi):
                    if s.opt.hack & 64 and m < 3: continue
                    s.e(f"v_cvt_pk_bf16_f32 v{d + i}, v{acc + 16 * ct + 8 * q + 2 * i}, v{acc + 16 * ct + 8 * q + 2 * i + 1}")
            def wr(ct=ct, q=q, d=d):
                if s.opt.hack & 128 and m < 3: return
                s.lgop(f"ds_write_b128 v{OW[2 * ct + q]}, {vr(d, 4)}", f"ow{m}")
            ops += [cv, wr]
    dst = [acc + 8, acc + 12, acc + 24, acc + 28]
    def rd(lo):
        if s.opt.hack & 512 and m < 3: return
        for i in range(lo, lo + 2):
            s.lgop(f"ds_read_b128 {vr(dst[i], 4)}, v{ORD} offset:{i * 1024}", f"or{m}_{i}")
    ops.append(lambda: rd(0))
    ops.append(lambda: rd(2))
    def st(i):
        if s.opt.hack & 256 and m < 3: return
        so = (48 - 16 * m + 8 * i) * 512 if i < 2 else (62 + 16 * m + 8 * (i - 2)) * 512
        s.e(f"s_movk_i32 s{sT1}, {so}" if so < 32768 else f"s_mov_b32 s{sT1}, {so}")
        if m == 0 and i == 1: s.e("s_mov_b32 exec_hi, 0x00ffffff")
        if m == 0 and i == 2: s.e("s_mov_b32 exec_lo, 0xffffff00")
        s.wait(lg=f"or{m}_{i}")
        s.vmop(f"buffer_store_dwordx4 {vr(dst[i], 4)}, v{GST}, s[{SO}:{SO+3}], s{sT1} offen{ntf(i)}", f"st{m}")
        if m == 0 and i in (1, 2): s.e("s_mov_b64 exec, -1")
    sts = [(lambda i=i: st(i)) for i in range(4)]
    return ops, sts


def s_read1(s, m, ks, f, rd):
    s.lgop(f"ds_read_b64_tr_b16 {vr(f + 2 * rd, 2)}, v{SRD_} offset:{S_BASE + m * 16384 + ks * 1024 + rd * 512}", f"sr{m}_{ks}")


def g2_ops(s, steps, extra):
    def one(i, ct):
        m, ks, acc, _ = steps[i]
        if ct == 0: s.wait(lg=f"sr{m}_{ks}")
        s.e(mfma(acc + 16 * ct, (W1A, W1B)[ct] + 4 * ks, F[i % 4], ks == 0))
        if i + 3 < len(steps):
            m2, k2, _, pre2 = steps[i + 3]
            if pre2 and ct == 0: pre2()
            if m2 == 0 and k2 >= 8: w_tr1(s, k2, 1, ct)
            s_read1(s, m2, k2, F[(i + 3) % 4], ct)
        if 2 * i + ct in extra: extra.pop(2 * i + ct)()
    return [(lambda i=i, ct=ct: one(i, ct)) for i in range(len(steps)) for ct in range(2)]


def g2_prefetch(s, steps):
    for i in range(3):
        m, ks, _, pre = steps[i]
        assert pre is None
        s_read(s, m, ks, F[i])


def finish(s, grp):
    if s.opt.probe >= 0:
        s.e("s_waitcnt vmcnt(0)")
        s.ts(-1)
        if grp == 1:
            s.e("s_endpgm")
            return
        s.e("s_memrealtime s[96:97]\ns_waitcnt lgkmcnt(0)\ns_sub_u32 s94, s94, s92\ns_lshl_b32 s94, s94, 2")
        s.e(f"L_spin{grp}:")
        s.e("s_memrealtime s[98:99]\ns_waitcnt lgkmcnt(0)\ns_sub_u32 s98, s98, s96\ns_cmp_lt_u32 s98, s94")
        s.e(f"s_cbranch_scc1 L_spin{grp}")
    if s.opt.ts:
        s.e("s_waitcnt vmcnt(0)")
        s.ts(-1)
        s.e("s_memrealtime s[94:95]")
        s.e("s_load_dwordx2 s[96:97], s[0:1], 48")
        s.e("s_waitcnt lgkmcnt(0)")
        s.e("s_mov_b32 s98, 0x100000\ns_mov_b32 s99, 0x20000")
        s.e(f"s_lshl_b32 s3, s2, 3\ns_add_u32 s3, s3, s{sW}\ns_lshl_b32 s3, s3, 7\nv_mov_b32 v1, s3")
        s.e("v_mov_b32 v3, s92\nbuffer_store_dword v3, v1, s[96:99], 0 offen")
        s.e("v_mov_b32 v3, s94\nbuffer_store_dword v3, v1, s[96:99], 0 offen offset:4")
        for m in range(s.nts):
            s.e(f"s_sub_u32 s4, s{sTS + 2 * m}, s{90 if s.opt.ts == 1 else 92}\nv_mov_b32 v3, s4\nbuffer_store_dword v3, v1, s[96:99], 0 offen offset:{8 + 4 * m}")
    s.e("s_endpgm")


def dw_load(s):
    J, HH = 17, 18
    e = s.e
    e(f"s_lshl_b32 s{sT2}, s{sW}, 6")
    e(f"v_lshl_add_u32 v{DWC}, v{J}, 1, s{sT2}")
    e(f"v_lshl_add_u32 v{DWN}, v{HH}, 10, v{DWC}")
    e(f"v_xor_b32 v{DWP}, 1024, v{DWN}")
    e(f"s_mov_b32 s{SD+2}, 1536")
    e(f"s_mov_b32 s{SD+3}, 0x20000")
    s.vmop(f"buffer_load_ushort v{DWC}, v{DWC}, s[{SD}:{SD+3}], 0 offen offset:512", "dw")
    s.vmop(f"buffer_load_ushort v{DWN}, v{DWN}, s[{SD}:{SD+3}], 0 offen", "dw")
    s.vmop(f"buffer_load_ushort v{DWP}, v{DWP}, s[{SD}:{SD+3}], 0 offen", "dw")


def dw_fix(s):
    s.wait(vm="dw")
    for r in (DWP, DWC, DWN):
        s.e(f"v_lshlrev_b32 v{r}, 16, v{r}")
    for r in (DWP, DWC, DWN):
        s.e(f"v_mul_f32 v{r}, v{VC}, v{r}")


def early(s):
    o = s.opt
    e = s.e
    L_, J, HH, a, b, c, d = range(16, 23)
    e("s_cmp_ge_u32 s2, 256")
    e("s_cbranch_scc1 L_done")
    if o.ts or o.probe >= 0:
        e("s_memrealtime s[92:93]")
        e("s_memtime s[90:91]")
    e("s_load_dwordx4 s[4:7], s[0:1], 0")
    e(f"v_readfirstlane_b32 s{sW}, v0")
    e(f"v_and_b32 v{a}, 3, v0")
    e(f"v_bfe_u32 v{c}, v0, 4, 2")
    e(f"v_bfe_u32 v{b}, v0, 2, 2")
    if o.rot == 3:
        e(f"s_mul_i32 s3, s2, 45")
        e(f"s_lshr_b32 s3, s3, 3")
    else:
        e(f"s_lshr_b32 s3, s2, 3")
    if o.rot == 2:
        e(f"s_xor_b32 s3, s3, s2")
        e(f"s_lshr_b32 s{sT0}, s2, 6")
        e(f"s_xor_b32 s3, s3, s{sT0}")
    e(f"s_and_b32 s3, s3, {7 if o.rot else 0}")
    e(f"s_lshr_b32 s{sW}, s{sW}, 6")
    e(f"s_and_b32 s{sWQ}, s{sW}, 3")
    e(f"s_mov_b32 s{SX+3}, 0x20000")
    if o.pf & 4:
        e(f"s_cmp_lt_u32 s{sW}, 4")
        e("s_cbranch_scc1 L_e0")
        prefetch_code(s)
        e("L_e0:")
    e(f"s_and_b32 s{sT1}, s{sW}, 4")
    e(f"s_add_u32 s{sT1}, s{sT1}, s{sW}")
    e(f"s_add_u32 s{sXM0}, s{sT1}, {X_BASE >> 12}")
    e(f"s_lshl_b32 s{sXM0}, s{sXM0}, 12")
    e(f"v_lshl_add_u32 v{b}, s{sT1}, 2, v{b}")
    e(f"v_lshl_add_u32 v{d}, v{c}, 2, v{a}")
    e(f"s_lshl_b32 s{sT0}, s3, 1")
    e(f"s_and_b32 s{sXH0}, s{sT0}, 8")
    e(f"s_and_b32 s{sT0}, s{sT0}, 6")
    e(f"s_and_b32 s{sRING}, s{sW}, 1")
    e(f"s_add_u32 s{sT0}, s{sT0}, s{sRING}")
    e(f"s_lshl_b32 s{sT0}, s{sT0}, 1")
    e(f"v_xor_b32 v{d}, s{sT0}, v{d}")
    e(f"s_xor_b32 s{sXH1}, s{sXH0}, 8")
    e(f"s_lshl_b32 s{sXH0}, s{sXH0}, 5")
    e(f"s_lshl_b32 s{sXH1}, s{sXH1}, 5")
    e(f"s_lshr_b32 s{sT1}, s2, 7")
    e(f"s_lshl_b32 s{sT0}, s{sT1}, 7")
    e(f"s_sub_u32 s{sT0}, s2, s{sT0}")
    e(f"s_mulk_i32 s{sT0}, 125")
    e(f"s_add_u32 s{sT0}, s{sT0}, 62")
    e(f"v_sub_u32 v{c}, s{sT0}, v{b}")
    e(f"v_add3_u32 v{b}, v{b}, s{sT0}, 1")
    e(f"v_lshl_add_u32 v{XD0}, v{c}, 5, v{d}")
    e(f"v_xor_b32 v{d}, 1, v{d}")
    e(f"v_lshl_add_u32 v{XD1}, v{b}, 5, v{d}")
    e(f"v_lshlrev_b32 v{XD0}, 4, v{XD0}")
    e(f"v_lshlrev_b32 v{XD1}, 4, v{XD1}")
    e(f"s_mov_b32 s{SX+2}, 8192000")
    e(f"s_mul_i32 s{sXB}, s{sT1}, s{SX+2}")
    e(f"v_add_u32 v{XD2}, -8192, v{XD0}")
    e(f"v_add_u32 v{XD3}, 8192, v{XD1}")
    e(f"s_cmp_ge_u32 s{sW}, 4")
    e("s_cbranch_scc1 L_e1")
    if o.wf:
        e(f"v_bfe_u32 v{b}, v0, 2, 4")
        e(f"v_lshl_add_u32 v{b}, v{b}, 6, v{a}")
        e(f"v_lshlrev_b32 v{WDMA}, 4, v{b}")
        e(f"s_and_b32 s{sT0}, s{sW}, 2")
        e(f"s_lshl_b32 s{sT0}, s{sT0}, 1")
        e(f"s_add_u32 s{sT0}, s{sRING}, s{sT0}")
        e(f"s_lshl_b32 m0, s{sT0}, 14")
        e(f"s_lshl_b32 s{sT0}, s3, 15")
        e(f"s_lshl_b32 s{sT2}, s{sW}, 6")
        e(f"s_sub_u32 s{SW1+2}, 262144, s{sT2}")
        e(f"s_mov_b32 s{SW1+3}, s{SX+3}")
    else:
        e(f"s_mov_b32 m0, s{sXM0}")
    e("s_waitcnt lgkmcnt(0)")
    s.ts(1); s.ts(3)
    if o.wf:
        e(f"s_add_u32 s{SW1}, s6, s{sT2}")
        e(f"s_addc_u32 s{SW1+1}, s7, 0")
        for ks in range(o.wf):
            if ks:
                e("s_addk_i32 m0, 1536")
                e(f"s_addk_i32 s{sT0}, 16384")
            s.vmop(f"buffer_load_dwordx4 v{WDMA}, s[{SW1}:{SW1+3}], s{sT0} offen lds", f"w0a{ks}")
            e("s_addk_i32 m0, 512")
            e("s_nop 0")
            s.vmop(f"buffer_load_dwordx4 v{WDMA}, s[{SW1}:{SW1+3}], s{sT0} offen offset:512 lds", f"w0b{ks}")
        e(f"s_mov_b32 m0, s{sXM0}")
    e(f"s_add_u32 s{SX}, s4, s{sXB}")
    e(f"s_addc_u32 s{SX+1}, s5, 0")
    nt = "nt " if o.xnt else ""
    cur = 0
    for i in range(o.xn):
        mm, h, half = (i >> 1) & 1, i & 1, i >> 2
        if o.xn == 8 and o.xo: mm, h, half = i >> 2, (i >> 1) & 1, i & 1
        pos = mm * 16384 + h * 2048 + half * 1024
        if i:
            e(f"s_addk_i32 m0, {pos - cur}")
            e("s_nop 0")
        cur = pos
        s.vmop(f"buffer_load_dwordx4 v{(XD0, XD1, XD2, XD3)[2 * mm + h]}, s[{SX}:{SX+3}], s{sXH0 + half} offen {nt}lds", f"x{half}")
    if o.pf & 8:
        e(f"v_and_b32 v{c}, 15, v0")
        e(f"s_mov_b32 s{SC}, s6\ns_mov_b32 s{SC+1}, s7\ns_mov_b32 s{SC+2}, 262144\ns_mov_b32 s{SC+3}, s{SX+3}")
        e(f"v_lshlrev_b32 v{c}, 7, v{c}")
        e(f"s_lshr_b32 s{sT0}, s2, 3\ns_lshl_b32 s{sT0}, s{sT0}, 2\ns_add_u32 s{sT0}, s{sT0}, s{sWQ}\ns_lshl_b32 s{sT0}, s{sT0}, 11")
        s.vmop(f"buffer_load_dword v{C1}, v{c}, s[{SC}:{SC+3}], s{sT0} offen{' nt' if o.pnt else ''}", "pf")
    s.ts(3)
    e("L_e1:")
    e(f"s_load_dwordx2 s[{SD}:{SD+1}], s[0:1], 16")
    e(f"s_load_dwordx2 s[{SW2}:{SW2+1}], s[0:1], 24")
    e(f"s_load_dwordx2 s[{SO}:{SO+1}], s[0:1], 32")
    e(f"v_and_b32 v{L_}, 63, v0")
    e(f"v_and_b32 v{J}, 31, v0")
    e(f"v_bfe_u32 v{HH}, v0, 5, 1")
    e(f"v_lshrrev_b32 v{b}, 2, v{L_}")
    e(f"v_lshl_add_u32 v{b}, v{b}, 6, v{a}")
    e(f"v_lshlrev_b32 v{WDMA}, 4, v{b}")
    e(f"s_lshl_b32 s{sROT1}, s3, 15")
    e(f"s_and_b32 s{sT0}, s{sW}, 2")
    e(f"s_lshl_b32 s{sT0}, s{sT0}, 1")
    e(f"s_add_u32 s{sRING}, s{sRING}, s{sT0}")
    e(f"s_add_u32 s{sRING2}, s{sWQ}, {R3_BASE >> 14}")
    e(f"s_cmp_ge_u32 s{sW}, 4")
    e(f"s_cselect_b32 s{sRING}, s{sRING2}, s{sRING}")
    e(f"s_lshl_b32 s{sRING}, s{sRING}, 14")
    e(f"s_lshl_b32 s{sRING2}, s{sRING2}, 14")
    e(f"s_lshl_b32 s{sT2}, s{sW}, 6")
    e(f"s_sub_u32 s{SW1+2}, 262144, s{sT2}")
    e(f"s_mov_b32 s{SW1+3}, s{SX+3}")
    if o.a0:
        e(f"s_cmp_ge_u32 s{sW}, 4")
        e("s_cbranch_scc1 L_e4")
        e(f"s_add_u32 s{SW1}, s6, s{sT2}")
        e(f"s_addc_u32 s{SW1+1}, s7, 0")
        for ks in range(o.a0):
            w_dma(s, ks, 0)
        e("L_e4:")
    addr_common(s)
    e("s_waitcnt lgkmcnt(0)")
    e(f"s_add_u32 s{SX}, s4, s{sXB}")
    e(f"s_addc_u32 s{SX+1}, s5, 0")
    e(f"s_add_u32 s{SW1}, s6, s{sT2}")
    e(f"s_addc_u32 s{SW1+1}, s7, 0")
    dw_load(s)
    s.ts(3)
    e(f"s_cmp_ge_u32 s{sW}, 4")
    e("s_cbranch_scc1 L_e3")
    assert o.wf <= 2 and not (o.wf and o.a0)
    for ks in range(o.a0 + o.wf, o.d0):
        w_dma(s, ks, 0)
        i = o.xn + ks - o.xs
        if o.xn <= i < 8: x_dma1(s, (i >> 1) & 1, i & 1, 1)
    s.ts(1)
    s.wait(vm="x0" if o.xn < 8 else "x1")
    if o.pf & 2:
        e("s_branch L_e2")
        e("L_e3:")
        prefetch_w(s)
    else:
        e("L_e3:")
    e("L_e2:")
    s.ts(3)
    s.barrier()
    s.ts(); s.ts(3)
    e(f"s_cmp_ge_u32 s{sW}, 4")
    e("s_cbranch_scc1 L_grp_b")


def stream_a(s):
    o = s.opt
    D = max(o.d0, 6)
    wq = [(k, p) for k in range(o.d0, 16) for p in range(2)]
    s.prio(3)
    for ks in range(2):
        w_tr(s, ks, 0)
        x_read(s, 0, ks)
    late = Stream(o)
    addr_a(late)
    late = late.L
    def hook0(ks, pos):
        if pos in (0, 2) and wq:
            k, p = wq.pop(0); w_dma1(s, k, 0, p)
        if pos == 3:
            i = o.xn + ks + o.d0 - o.xs
            if o.xn <= i < 8: x_dma1(s, (i >> 1) & 1, i & 1, 1)
        if pos == 3 and o.dx <= ks < o.dx + D - o.d0:
            for _ in range(2):
                k, p = wq.pop(0); w_dma1(s, k, 0, p)
        if pos == 0 and ks == 6 and o.xn < 8: s.barrier(vm="x1")
        if pos == 2 and ks == o.b0b: s.barrier()
        if pos == 0 and ks == 16 - D: dw_fix(s)
        if ks > 16 - D and pos in (0, 2):
            for _ in range(5):
                if late: s.e(late.pop(0))
        if pos == 3 and ks == 15:
            assert not late
            s.e(f"v_mov_b32 v{WDMA}, v{W2DMA0}")
            s.e(f"v_mov_b32 v{WTR}, v{W2TR0}")
    g1(s, 0, True, hook0)
    s.ts()
    def pre2():
        s.barrier()
        x_read(s, 1, 0); x_read(s, 1, 1)
    wr = act2(s, 0, {(o.b1a, 'T'): lambda: s.barrier(), (o.b2a, 'S'): pre2}, (o.pa0, o.pa1), o.tog & 1, 99, (F[0], F[2]))
    s.ts()
    s.prio(3)
    dq = [(k, p) for k in range(8) for p in range(2)]
    tq = list(dq)
    def hook1(ks, pos):
        n = 4 * ks + pos
        if n == 24: s.barrier()
        if 25 <= n <= 28: wr[n - 25]()
        if n >= 30 and pos in (0, 2) and dq:
            k, p = dq.pop(0); w_dma1(s, k, 1, p)
        if n >= 30 + 4 * o.lag and pos in (1, 3):
            k, p = tq.pop(0); w_tr1(s, k, 1, p)
    g1(s, 1, False, hook1)
    assert not dq
    s.ts()
    accs = [G, ACC[0], ACC[1], G]
    lo = lambda m, f=None: [(m, ks, accs[m], f if ks == 0 else None) for ks in range(8)]
    hi = lambda m, f=None: [(m, ks, accs[m], f if ks == 8 else None) for ks in range(8, 16)]
    st4 = lo(0) + hi(0) + lo(1) + hi(1) + lo(2) + hi(2, lambda: s.barrier(lg="sw3")) + lo(3)
    def owa():
        for i, x in ((1, 16), (2, 64), (3, 80)): s.e(f"v_xor_b32 v{OW[i]}, {x}, v{OWR}")
        for k, p in tq: w_tr1(s, k, 1, p)
    ex = {}
    gops = g2_ops(s, st4, ex)
    ni = 2 * o.ninj
    assert o.ninj == 0 or o.inj0 >= o.b4a
    for m in range(3):
        ops, sts = epi_ops(s, m, accs[m])
        if m < 2 and (not o.epc or m >= o.epm):
            for i, f in enumerate(ops + [None] + sts):
                n = 32 * m + 34 + 2 * i
                if i < 8 and i % 2 == 0 and o.epf:
                    ex[n - 1] = (lambda f=f: f(hi=1)); ex[n] = (lambda f=f: f(lo=1, hi=3)); ex[n + 1] = (lambda f=f: f(lo=3))
                elif f: ex[n] = f
        elif m < 2:
            for i, f in enumerate(ops): ex[32 * m + 33 + i] = f
            for i, f in enumerate(sts): ex[32 * m + 44 + o.epc * (i + 1)] = f
        else:
            for i, f in enumerate(ops): ex[97 + i] = f
    wr = act2(s, 1, {(o.b3a - 1 - o.tra, 'T'): owa, (o.b3a, 'S'): lambda: s.barrier(lg="w1r7"), (o.b4a, 'S'): lambda: s.barrier(lg="sw2"),
                     ((o.inj0 - 1, 'T') if ni else (-1, 'S')): lambda: g2_prefetch(s, st4)}, (o.pa2, o.pa3), o.tog & 4, 99,
              None, gops[:ni], o.inj0, o.injc, o.b4a - o.wa)
    assert len(wr) == 2
    s.ts()
    s.prio(3)
    free = [n for n in range(max(26, ni), 63) if n not in ex]
    ex[free[0]] = wr[0]; ex[free[2]] = wr[1]
    FF = [ACC[0] + 4 * i for i in range(8)]
    def last(i):
        if i == 0: s.barrier()
        s_read(s, 3, 8 + 2 * i, FF[2 * i]); s_read(s, 3, 9 + 2 * i, FF[2 * i + 1])
    nb = 112 - o.b6a
    for i in range(4):
        if nb + i < 112: ex[nb + i] = (lambda i=i: last(i))
    for f in gops[ni:]: f()
    assert not ex, ex
    s.ts()
    for i in range(4):
        if nb + i >= 112: last(i)
    sts2 = sts
    ops, sts = epi_ops(s, 3, accs[3])
    for i in range(8):
        s.wait(lg=f"sr3_{8 + i}")
        s.e(mfma(accs[3], W1A + 4 * (8 + i), FF[i], False))
        if i < 4: sts2[i]()
    for i in range(8):
        s.e(mfma(accs[3] + 16, W1B + 4 * (8 + i), FF[i], False))
        if 2 <= i < 6: ops[i - 2]()
    s.ts()
    s.e("s_nop 11")
    for f in ops[4:] + sts: f()
    finish(s, 0)


def stream_b(s):
    s.isb = 1
    o = s.opt
    D = o.d1
    jt = 16 // o.n + 4
    dw_fix(s)
    addr_w2(s)
    if o.pf & 16:
        if o.s8:
            s.e(f"v_lshlrev_b32 v{ORD}, 9, v17")
            s.e(f"s_lshl_b32 s{sT1}, s{sSH}, 14")
        else:
            s.e(f"v_and_b32 v{ORD}, 7, v16")
            s.e(f"v_lshlrev_b32 v{ORD}, 9, v{ORD}")
            s.e(f"s_lshr_b32 s{sT1}, s2, 3\ns_lshl_b32 s{sT1}, s{sT1}, 12")
    s.prio(0)
    if o.xn < 8: s.barrier()
    s.barrier()
    for ks in range(D):
        w_dma(s, ks, 0)
    for ks in range(2):
        w_tr(s, ks, 0)
        x_read(s, 0, ks)
    if o.b1b < 0: s.barrier()
    s.ts()
    s.prio(o.pbg)
    assert o.b1b <= o.xb0
    def first_pass(xb0, xsp0, xb1, xsp1):
        dq = [(k, p) for k in range(D, 16) for p in range(2)]
        xq = {}
        for i in range(8):
            n = 4 * xb0 + 3 + xsp0 * i if i < 4 else 4 * xb1 + 3 + xsp1 * (i - 4)
            xq.setdefault(n, []).append(i)
        def hook0(ks, pos):
            if pos == 3 and ks == o.b1b: s.barrier()
            if pos in (0, 2) and dq:
                k, p = dq.pop(0); w_dma1(s, k, 0, p)
            for i in xq.pop(4 * ks + pos, []):
                assert len(dq) % 2 == 0
                x_dma1(s, (i >> 1) & 1, i & 1, i >> 2)
            if 4 * ks + pos == 47 and o.pf & 16:
                assert not dq and not xq
                s.vmop(f"buffer_load_dword v{OWR}, v{ORD}, s[{SW2}:{SW2+3}], s{sT1} offen{' nt' if o.pnt else ''}", "pf")
        g1(s, 0, True, hook0)
        assert not dq and not xq
    if o.cls:
        vm, lg, nts = list(s.vm), list(s.lg), s.nts
        s.e(f"s_bitcmp1_b32 s{sSH}, {o.cls - 1}")
        s.e("s_cbranch_scc1 L_cls1")
        assert o.b1b <= o.xe0
        first_pass(o.xe0, 0, o.xe1, 1 if o.xe1 >= 15 - D else 0)
        s.e("s_branch L_cls2")
        s.e("L_cls1:")
        s.vm, s.lg, s.nts = vm, lg, nts
        s.dup = 1
    first_pass(o.xb0, o.xsp0, o.xb1, o.xsp1)
    if o.cls: s.e("L_cls2:")
    s.ts()
    def pre():
        x_read(s, 1, 0); x_read(s, 1, 1)
        s.e(f"v_mov_b32 v{WDMA}, v{W2DMA0}")
    wr = act2(s, 0, {(o.b2b, 'S'): lambda: s.barrier(vm="x0"), (o.b2c, 'S'): lambda: s.barrier(vm="x1"), (-2, 'T'): pre},
              (o.pb0, o.pb1), o.tog & 2, 99, (F[0], F[2]))
    s.ts()
    s.prio(3)
    def hook1(ks, pos):
        if pos in (0, 2) and o.wb <= ks < o.wb + 2: wr[2 * (ks - o.wb) + (pos >> 1)]()
        if pos == 3 and ks == o.b3b: s.barrier()
        if pos in (0, 2) and o.b3b < ks <= o.b3b + 8: w_dma1(s, ks - o.b3b + 7, 1, pos >> 1)
    assert o.wb + 2 <= o.b3b + 1
    g1(s, 1, False, hook1)
    s.ts()
    act2(s, 1, {(o.b4b, 'T'): lambda: s.barrier(vm="w1b15", lg="sw1"), (jt + o.b5b, 'T'): lambda: s.barrier(lg="sw2")}, (o.pb2, o.pb3), o.tog & 8)
    s.ts()
    s.barrier(lg="sw3")
    finish(s, 1)


def prefetch_w(s):
    e = s.e
    e(f"v_lshlrev_b32 v{C0}, 7, v16")
    e(f"s_bfe_u32 s{sT0}, s2, 0x50003")
    e(f"s_lshl_b32 s{sT0}, s{sT0}, 2")
    e(f"s_add_u32 s{sT0}, s{sT0}, s{sWQ}")
    e(f"s_lshl_b32 s{sT1}, s{sT0}, 10")
    e(f"s_lshl_b32 s{sT0}, s{sT0}, 11")
    e(f"s_mov_b32 s{SC}, s6\ns_mov_b32 s{SC+1}, s7\ns_mov_b32 s{SC+2}, 262144\ns_mov_b32 s{SC+3}, 0x20000")
    e(f"s_mov_b32 s{SW2+2}, 131072\ns_mov_b32 s{SW2+3}, 0x20000")
    e("s_mov_b64 exec, 0xffff")
    e(f"buffer_load_dword v{C1}, v{C0}, s[{SC}:{SC+3}], s{sT0} offen")
    e("s_mov_b64 exec, 0xff")
    e(f"buffer_load_dword v{OWR}, v{C0}, s[{SW2}:{SW2+3}], s{sT1} offen")
    e("s_mov_b64 exec, -1")


def prefetch_code(s):
    e = s.e
    if s.opt.pbs: e("s_setprio 3")
    e(f"s_getpc_b64 s[{SC}:{SC+1}]")
    e("L_pc:")
    e(f"s_mov_b32 s{SC+2}, L_done-L_pc")
    e(f"s_mov_b32 s{SC+3}, s{SX+3}")
    if s.opt.hw:
        e(f"s_getreg_b32 s{sSH}, hwreg(HW_REG_HW_ID, 8, 3)")
    else:
        e(f"s_mov_b32 s{sSH}, s3")
    e(f"s_lshl_b32 s{sT0}, s{sSH}, 2")
    e(f"s_add_u32 s{sT0}, s{sT0}, s{sWQ}")
    e(f"s_lshl_b32 s{sT0}, s{sT0}, 6")
    e("L_pfl:")
    e(f"s_buffer_load_dword s44, s[{SC}:{SC+3}], s{sT0}")
    e(f"s_buffer_load_dword s45, s[{SC}:{SC+3}], s{sT0} offset:2048")
    e(f"s_addk_i32 s{sT0}, 4096")
    e(f"s_cmp_lt_u32 s{sT0}, s{SC+2}")
    e("s_cbranch_scc1 L_pfl")


def addr_common(s):
    e = s.e
    L_, J, HH, a, b, c, d, Gq, R, CC = range(16, 26)
    e(f"v_mov_b32 v{VC}, {LIT}")
    e(f"v_bfe_u32 v{Gq}, v{L_}, 4, 1")
    e(f"v_bfe_u32 v{R}, v{L_}, 2, 2")
    e(f"v_and_b32 v{CC}, 3, v{L_}")
    e(f"v_lshrrev_b32 v{a}, 2, v{J}")
    e(f"v_xor_b32 v{b}, v{HH}, v{R}")
    e(f"v_lshlrev_b32 v{b}, 4, v{b}")
    e(f"v_lshl_add_u32 v{b}, v{CC}, 6, v{b}")
    e(f"v_add_u32 v{a}, {X_BASE >> 11}, v{a}")
    e(f"v_lshl_add_u32 v{XRE}, v{a}, 11, v{b}")
    e(f"v_xor_b32 v{XRO}, 32, v{XRE}")
    e(f"v_lshl_add_u32 v{a}, v{HH}, 3, v{R}")
    e(f"v_lshl_add_u32 v{a}, v{a}, 1, v{Gq}")
    e(f"v_lshl_add_u32 v{a}, v{a}, 2, v{CC}")
    e(f"v_lshl_add_u32 v{WTR}, v{a}, 3, s{sRING}")
    e(f"s_lshl_b32 s{sT0}, s{sW}, 1")
    e(f"s_xor_b32 s{sT0}, s{sT0}, s3")
    e(f"s_lshl_b32 s{sT0}, s{sT0}, 4")
    e(f"v_xor_b32 v{a}, s{sT0}, v{J}")
    e(f"v_bfe_u32 v{c}, v{J}, 1, 2")
    e(f"v_lshlrev_b32 v{d}, 1, v{HH}")
    e(f"v_xor_b32 v{c}, v{c}, v{d}")
    e(f"v_lshl_add_u32 v{a}, v{a}, 2, v{c}")
    e(f"v_lshlrev_b32 v{SWR}, 4, v{a}")
    e(f"v_xor_b32 v{TMP}, 16, v{SWR}")
    e("s_mov_b32 vcc_lo, 0")
    e("s_mov_b32 vcc_hi, -1")


def addr_w2(s):
    e = s.e
    L_, J, HH, a, b, c, d, Gq, R, CC, t = range(16, 27)
    e(f"s_lshl_b32 s{sROT2}, s3, 13")
    e(f"s_lshl_b32 s{sT2}, s{sWQ}, 7")
    e(f"s_add_u32 s{SW2}, s{SW2}, s{sT2}")
    e(f"s_addc_u32 s{SW2+1}, s{SW2+1}, 0")
    e(f"s_sub_u32 s{SW2+2}, 131072, s{sT2}")
    e(f"s_mov_b32 s{SW2+3}, 0x20000")
    e(f"v_lshrrev_b32 v{a}, 2, v{J}")
    e(f"v_lshl_add_u32 v{a}, v{a}, 3, v{HH}")
    e(f"v_lshl_add_u32 v{a}, v{a}, 2, v{CC}")
    e(f"v_lshlrev_b32 v{W2DMA0}, 4, v{a}")


def addr_a(s):
    e = s.e
    L_, J, HH, a, b, c, d, Gq, R, CC, t = range(16, 27)
    addr_w2(s)
    e(f"s_mul_i32 s{sT1}, s2, 64000")
    e(f"s_add_u32 s{SO}, s{SO}, s{sT1}")
    e(f"s_addc_u32 s{SO+1}, s{SO+1}, 0")
    e(f"s_mov_b32 s{SO+2}, 64000")
    e(f"s_mov_b32 s{SO+3}, 0x20000")
    e(f"v_lshl_add_u32 v{a}, v{HH}, 2, v{R}")
    e(f"v_lshrrev_b32 v{b}, 1, v{CC}")
    e(f"v_lshl_add_u32 v{b}, v{Gq}, 1, v{b}")
    e(f"v_and_b32 v{c}, 1, v{CC}")
    e(f"v_lshl_add_u32 v{t}, v{a}, 1, v{c}")
    e(f"v_lshl_add_u32 v{t}, v{t}, 2, v{b}")
    e(f"v_lshl_add_u32 v{W2TR0}, v{t}, 3, s{sRING2}")
    e(f"v_lshrrev_b32 v{t}, 1, v{a}")
    e(f"v_xor_b32 v{b}, v{b}, v{t}")
    e(f"v_lshl_add_u32 v{a}, v{a}, 2, v{b}")
    e(f"v_lshl_add_u32 v{a}, v{a}, 1, v{c}")
    e(f"v_lshlrev_b32 v{SRD_}, 3, v{a}")
    e(f"v_sub_u32 v{a}, 1, v{Gq}")
    e(f"v_mul_u32_u24 v{a}, 15, v{a}")
    e(f"v_xor_b32 v{a}, v{a}, v{J}")
    e(f"v_and_b32 v{c}, 7, v{a}")
    e(f"v_xor_b32 v{c}, v{c}, v{d}")
    e(f"v_lshl_add_u32 v{a}, v{a}, 3, v{c}")
    e(f"v_lshl_add_u32 v{OWR}, v{a}, 4, s{sRING2}")
    e(f"v_lshrrev_b32 v{a}, 3, v{L_}")
    e(f"v_xor_b32 v{b}, v{a}, v{L_}")
    e(f"v_lshl_add_u32 v{ORD}, v{b}, 4, s{sRING2}")
    e(f"v_and_b32 v{b}, 7, v{L_}")
    e(f"v_lshl_add_u32 v{b}, v{a}, 5, v{b}")
    e(f"v_lshl_add_u32 v{GST}, v{b}, 4, s{sT2}")
    if s.opt.hack & 1024:
        e(f"s_lshl_b32 s{sT2}, s{sT2}, 3")
        e(f"v_lshl_add_u32 v{GST}, v{L_}, 4, s{sT2}")


TRANS = ("v_exp_f32", "v_rcp_f32")


def check(lines):
    ins = [l for x in lines for l in x.split("\n") if l and not l.endswith(":") and not l.startswith(".")]
    for p, q in zip(ins, ins[1:]):
        if p.startswith(TRANS) and q.startswith("v_") and not q.startswith(TRANS):
            d = re.match(r"\S+ (v\d+)", p).group(1)
            assert not re.search(r"\b" + d + r"\b", q), (p, q)


def flat(L):
    return [l for x in L for l in x.split("\n")]


def regs(t):
    r = set()
    for a, b in re.findall(r"v\[(\d+):(\d+)\]", t): r |= set(range(int(a), int(b) + 1))
    for a in re.findall(r"\bv(\d+)\b", t): r.add(int(a))
    return r


def pad_mfma(L):
    ins = {}
    for i, l in enumerate(L):
        if not l.startswith("v_mfma"): continue
        D = regs(l.split(None, 1)[1].split(", ")[0]); st = ins.get(i, 0); at = [i]
        for k in range(i + 1, len(L)):
            q = L[k]
            if st >= 12 or q.startswith("s_endpgm"): break
            if q.endswith(":"): continue
            if q.startswith("v_mfma"):
                o = q.split(None, 1)[1].split(", ")
                assert not (regs(o[1]) | regs(o[2])) & D
                if regs(o[0]) == D: break
                at.append(k); st += 1 + ins.get(k, 0)
            elif q.startswith(("v_", "ds_", "buffer_")) and regs(q) & D:
                gaps = at[:-1] or at
                for n in range(12 - st): ins[gaps[n % len(gaps)]] = ins.get(gaps[n % len(gaps)], 0) + 1
                break
            else:
                st += int(q.split()[1]) + 1 if q.startswith("s_nop") else 1
    out = []
    for i, l in enumerate(L):
        out.append(l)
        if i in ins: out.append(f"s_nop {ins[i] - 1}")
    return out


def isize(l):
    if l.endswith(":") or l.startswith("."): return 0
    op = l.split()[0]
    if op.startswith(("v_mfma", "ds_", "buffer_", "v_cvt_pk", "v_fmaak", "v_lshl_add", "v_add3", "v_bfe", "s_load", "s_buffer", "s_mem")): return 8
    lits = re.findall(r"(?<![\w\[:(])(-?(?:0x[0-9a-f]+|\d+))(?![\w\].:)])", l.split(None, 1)[1] if " " in l else "")
    if op in ("s_nop", "s_setprio", "s_waitcnt"): return 4
    for x in lits:
        v = int(x, 0)
        if v > 64 or v < -16: return 8
    return 4


def add_pads(la, lb, opt):
    pos = []
    for si, L in enumerate((la, lb)):
        acc = 0; nxt = opt.hop0
        for i, l in enumerate(L):
            acc += isize(l)
            if acc >= nxt and l.startswith("v_") and "exec" not in "".join(L[max(0, i - 4):i + 4]):
                pos.append((acc + si * opt.hopb, si, i)); nxt = acc + opt.hop
    pos.sort()
    n = len(pos); c = opt.nch
    ins = {}
    for k, (_, si, i) in enumerate(pos):
        tgt = f"L_pad{k + c}" if k + c < n else "L_padend"
        ins[(si, i)] = [f"L_pad{k}:", f"s_cbranch_execz {tgt}"]
    res = []
    for si, L in enumerate((la, lb)):
        o = []
        for i, l in enumerate(L):
            o.append(l); o += ins.get((si, i), [])
        res.append(o)
    return res[0], res[1], ["L_padend:", "s_mov_b64 exec, -1", "s_branch L_back"]


DOC = """; Fused pointwise GEMM -> GLU -> depthwise conv(3) -> SiLU -> pointwise GEMM, one workgroup per CU.
; Weights and x arrive by LDS-DMA; weights and s are read with the transposing LDS load."""


def build(opt):
    pro = Stream(opt)
    early(pro)
    sa = Stream(opt); sa.nts = pro.nts; sa.vm = list(pro.vm)
    sb = Stream(opt); sb.nts = pro.nts; sb.vm = ["dw"] * 3
    stream_a(sa)
    stream_b(sb)
    assert sa.L.count("s_barrier") == sb.L.count("s_barrier") - (getattr(sb, "dup", 0) if opt.b1b >= 0 else 0)
    check(sa.L); check(sb.L)
    ref = open(f"cdna_kernels/{NAME}.s.ref").read().split("\n")
    head = [l for l in ref if l.startswith(";") and "@launch" not in l]
    out = head + ["; @launch grid=(256,1,1) block=(512,1,1) lds=163840",
                  '.amdgcn_target "amdgcn-amd-amdhsa--gfx950"', DOC, ".text", f".globl {NAME}_kernel", ".p2align 8",
                  f".type {NAME}_kernel,@function", f"{NAME}_kernel:"]
    la, lb = pad_mfma(flat(sa.L)), pad_mfma(flat(sb.L))
    tail = []
    if opt.hop:
        la, lb, tail = add_pads(la, lb, opt)
    out += pro.L + la + [".p2align 6", "L_grp_b:"] + lb + tail + ["L_done:", "s_endpgm"]
    out += ['.section .rodata,"a"', ".p2align 6", f".amdhsa_kernel {NAME}_kernel",
            "  .amdhsa_next_free_vgpr 256", "  .amdhsa_next_free_sgpr 102", "  .amdhsa_accum_offset 256",
            "  .amdhsa_group_segment_fixed_size 0", "  .amdhsa_kernarg_size 56", "  .amdhsa_user_sgpr_count 2",
            "  .amdhsa_user_sgpr_kernarg_segment_ptr 1", "  .amdhsa_system_sgpr_workgroup_id_x 1",
            ".end_amdhsa_kernel", ""]
    return "\n".join(out)


if __name__ == "__main__":
    ap = argparse.ArgumentParser()
    ap.add_argument("-o", default=f"cdna_kernels/{NAME}.s")
    for k, v in dict(ts=0, probe=-1, tl=0, xnt=1, ont=5552, rot=3, pf=20, wnt=0, hw=1, pinj=1, epc=1, epm=1, wf=2, cls=0, xe0=2, xe1=10, s8=1, pnt=0, a0=0, d0=8, d1=6, b0b=7, n=2, hack=0, swp=0, w2p=1, hop=0,
                     b2a=-1, b2b=4, b2c=10, b1a=3, b1b=2, pbg=2, tra=0, wa=2, ninj=12, inj0=13, injc=24, epf=1, b3a=5, b3b=3, b4a=13, b4b=0, b5b=0, b6a=4, xb0=9, xb1=10, xsp0=1, xsp1=1, xn=8, xo=1, pbs=1, xs=0, dx=3, wb=0, lag=5,
                     tog=0, pa0=0, pa1=1, pa2=0, pa3=1, pb0=0, pb1=1, pb2=0, pb3=1).items():
        ap.add_argument("--" + k, type=int, default=v)
    opt = ap.parse_args()
    open(opt.o, "w").write(build(opt))
```

```python
import sys, argparse, re

NAME = "standalone__conformer_conv_module__speech"
LIT = "0xbfb8aa3b"

S_BASE, X_BASE, R3_BASE = 0, 32768, 98304

XRE, XRO, SWR, C0, C1, DWP, DWC, DWN, VC, WDMA, WTR, SRD_, OWR, ORD, GST, TMP = range(16)
F = [16, 20, 24, 28]
G = 32
XF = [32, 36, 40, 44, 48, 52]
XD0, XD1, W2DMA0, W2TR0, XD2, XD3 = 56, 57, 58, 59, 60, 61
ACC = [64, 96]
W1A, W1B = 128, 192

SX, SW1, SW2, SO, SD = 8, 12, 16, 20, 24
sW, sWQ, sROT1, sROT2, sXH0, sXH1, sXM0, sRING, sRING2, sT0, sT1, sT2 = range(28, 40)
SC = 40
sXB = 46
sSH = 47
sTS = 48


class Stream:
    def __init__(self, opt):
        self.L = []; self.vm = []; self.lg = []; self.opt = opt; self.nts = 0

    def e(self, s):
        self.L.append(s)

    def vmop(self, s, tag):
        self.L.append(s); self.vm.append(tag)

    def lgop(self, s, tag):
        self.L.append(s); self.lg.append(tag)

    def _cnt(self, q, tag):
        idx = [i for i, t in enumerate(q) if t == tag]
        if not idx:
            return None
        n = len(q) - 1 - idx[-1]
        del q[:idx[-1] + 1]
        return n

    def wait(self, vm=None, lg=None):
        parts = []
        if vm is not None:
            n = self._cnt(self.vm, vm)
            if n is not None:
                assert n <= 63
                parts.append(f"vmcnt({n})")
        if lg is not None:
            n = self._cnt(self.lg, lg)
            if n is not None:
                parts.append(f"lgkmcnt({min(n, 15)})")
        if parts:
            self.e("s_waitcnt " + " ".join(parts))

    def ts(self, lvl=0):
        if lvl != self.opt.tl and lvl != -1:
            return
        if self.opt.probe >= 0:
            if self.nts == self.opt.probe:
                self.e("s_memrealtime s[94:95]")
            self.nts += 1
        if self.opt.ts:
            op = "s_memtime" if self.opt.ts == 1 else "s_memrealtime"
            assert self.nts < 21
            self.e(f"{op} s[{sTS + 2 * self.nts}:{sTS + 2 * self.nts + 1}]")
            self.nts += 1

    def barrier(self, vm=None, lg=None):
        self.wait(vm=vm, lg=lg)
        self.ts(2)
        self.e("s_barrier")
        self.ts(2)

    def prio(self, p):
        self.e(f"s_setprio {p}")


def vr(a, n):
    return f"v[{a}:{a + n - 1}]"


def mfma(d, a, b, first):
    c = "0" if first else vr(d, 16)
    return f"v_mfma_f32_32x32x16_bf16 {vr(d, 16)}, {vr(a, 4)}, {vr(b, 4)}, {c}"


def x_dma1(s, mm, h, half):
    nt = "nt " if s.opt.xnt else ""
    r = (XD0, XD1, XD2, XD3)[2 * mm + h]
    s.e(f"s_add_u32 m0, s{sXM0}, {mm * 16384 + h * 2048 + half * 1024}")
    s.e("s_nop 0")
    s.vmop(f"buffer_load_dwordx4 v{r}, s[{SX}:{SX+3}], s{sXH0 + half} offen {nt}lds", f"x{half}")


def w_dma1(s, ks, which, part):
    wnt = ["", "nt ", "sc1 ", "sc0 sc1 "][s.opt.wnt]
    if which == 1 and s.opt.hack & 2: return
    slot = (ks & 7) * 2
    ring, rot, step, srd, off = ((sRING, sROT1, 16384, SW1, 512), (sRING2, sROT2, 8192, SW2, 64))[which]
    if which == 1 and s.opt.hack & 4: srd = SW1
    if which == 1 and s.opt.w2p:
        s.e(f"s_add_u32 m0, s{ring}, {(slot + part) * 1024}")
        s.e(f"s_xor_b32 s{sT0}, s{rot}, {ks * step + part * 4096}")
        s.vmop(f"buffer_load_dwordx4 v{WDMA}, s[{srd}:{srd+3}], s{sT0} offen {wnt}lds", f"w{which}{'ab'[part]}{ks}")
    elif part == 0:
        s.e(f"s_add_u32 m0, s{ring}, {slot * 1024}")
        s.e(f"s_xor_b32 s{sT0}, s{rot}, {ks * step}")
        s.vmop(f"buffer_load_dwordx4 v{WDMA}, s[{srd}:{srd+3}], s{sT0} offen {wnt}lds", f"w{which}a{ks}")
        s.e(f"s_add_u32 m0, s{ring}, {slot * 1024 + 1024 - off}")
    else:
        if s.L[-1].startswith("s_add_u32 m0"):
            s.e("s_nop 0")
        s.vmop(f"buffer_load_dwordx4 v{WDMA}, s[{srd}:{srd+3}], s{sT0} offen offset:{off} {wnt}lds", f"w{which}b{ks}")


def w_dma(s, ks, which):
    w_dma1(s, ks, which, 0)
    w_dma1(s, ks, which, 1)


def w_tr1(s, ks, which, part):
    slot = (ks & 7) * 2
    if not (which == 1 and s.opt.hack & 1): s.wait(vm=f"w{which}{'ab'[part]}{ks}")
    base = (W1A, W1B)[part]
    if which == 1 and s.opt.hack & 8: return
    if which == 1 and s.opt.w2p:
        for ct in range(2):
            s.lgop(f"ds_read_b64_tr_b16 {vr((W1A, W1B)[ct] + 4 * ks + 2 * part, 2)}, v{WTR} offset:{(slot + part) * 1024 + ct * 512}", f"w{which}r{ks}")
        return
    for rd in range(2):
        s.lgop(f"ds_read_b64_tr_b16 {vr(base + 4 * ks + 2 * rd, 2)}, v{WTR} offset:{(slot + part) * 1024 + rd * (512 if which else 256)}", f"w{which}r{ks}")


def w_tr(s, ks, which):
    w_tr1(s, ks, which, 0)
    w_tr1(s, ks, which, 1)


def x_read1(s, mp, ks, mm):
    if s.opt.hack & 32 and mp == 1: return
    a = XRO if ks & 1 else XRE
    s.lgop(f"ds_read_b128 {vr(XF[(ks % 3) * 2 + mm], 4)}, v{a} offset:{(2 * mp + mm) * 16384 + (ks >> 1) * 256}", f"xr{mp}_{ks}_{mm}")


def x_read(s, mp, ks):
    for mm in range(2):
        x_read1(s, mp, ks, mm)


def s_read(s, m, ks, f):
    for rd in range(2):
        s.lgop(f"ds_read_b64_tr_b16 {vr(f + 2 * rd, 2)}, v{SRD_} offset:{S_BASE + m * 16384 + ks * 1024 + rd * 512}", f"sr{m}_{ks}")


def g1(s, mp, stream, hook):
    for ks in range(16):
        for mm in range(2):
            f = XF[(ks % 3) * 2 + mm]
            s.wait(lg=f"xr{mp}_{ks}_{1 if stream else mm}")
            if mm == 0 and ks % 4 == 0: s.ts(1)
            s.e(mfma(ACC[mm] + 16, f, W1B + 4 * ks, ks == 0))
            hook(ks, 2 * mm)
            s.e(mfma(ACC[mm], f, W1A + 4 * ks, ks == 0))
            if ks + 2 < 16:
                if stream:
                    w_tr1(s, ks + 2, 0, mm)
                x_read1(s, mp, ks + 2, mm)
            hook(ks, 2 * mm + 1)


def act2(s, mp, hooks, base, toggle, wfrom=0, pk=None, inj=(), inj0=99, injc=0, wonce=-99):
    n = s.opt.n
    ng = 32 // n
    a_in = lambda u: ACC[u >> 4] + (u & 15)
    b = lambda u: ACC[u >> 4] + 16 + (u & 15)
    h = lambda u: C0 if u in (-2, 30) else C1 if u in (-1, 31) else a_in(u)
    hooks = dict(hooks)
    cur = [None]
    pend = []
    pk = pk or (ACC[0] + 16, ACC[1] + 16)
    inj = list(inj); cost = [0]
    def emit(t, j):
        s.e(t)
        if j >= inj0 and inj:
            cost[0] += 8 if t.startswith(TRANS) else 4
            if cost[0] >= injc:
                inj.pop(0)(); cost[0] = 0
    def setp(p):
        if cur[0] != p:
            s.prio(p); cur[0] = p
    hooks = {((k if k >= 0 else ng + 4 + k), t): f for (k, t), f in hooks.items()}
    for j in range(ng + 4):
        e = lambda k: [(j - k) * n + i for i in range(n)] if 0 <= j - k < ng else []
        S = []; T = []
        S += [f"v_mul_f32 v{b(u)}, v{VC}, v{b(u)}" for u in e(0)]
        S += [f"v_mul_f32 v{h(u)}, v{a_in(u)}, v{b(u)}" for u in e(2)]
        if mp == 0 and j == 2:
            S += [f"v_mov_b32 v{C0}, v{a_in(0)}", f"v_mov_b32 v{C1}, v{a_in(0)}"]
        S += [f"v_add_f32 v{b(u)}, 1.0, v{b(u)}" for u in e(1)]
        if mp == 0 and j == 2:
            S += [f"v_permlane32_swap_b32 v{C0}, v{C1}", f"v_cndmask_b32 v{C1}, v{C1}, v{C0}, vcc"]
        S += [f"v_mul_f32 v{b(u)}, v{DWN}, v{h(u)}" for u in e(2)]
        S += [f"v_fmac_f32 v{b(u)}, v{DWC}, v{h(u - 1)}" for u in e(2)]
        S += [f"v_fmac_f32 v{b(u)}, v{DWP}, v{h(u - 2)}" for u in e(2)]
        S += [f"v_fmaak_f32 v{h(u - 2)}, v{VC}, v{h(u - 2)}, {LIT}" for u in e(3)]
        S += [f"v_mul_f32 v{b(u)}, v{b(u)}, v{h(u - 2)}" for u in e(4)]
        T += [f"v_exp_f32 v{b(u)}, v{b(u)}" for u in e(0)]
        T += [f"v_rcp_f32 v{b(u)}, v{b(u)}" for u in e(1)]
        T += [f"v_exp_f32 v{h(u - 2)}, v{b(u)}" for u in e(2)]
        T += [f"v_rcp_f32 v{h(u - 2)}, v{h(u - 2)}" for u in e(3)]
        T += [f"v_cvt_pk_bf16_f32 v{pk[u >> 4] + ((u & 15) >> 1)}, v{b(u)}, v{b(u + 1)}" for u in e(4)[::2]]
        bp = base[0] if j < ng // 2 + 2 else base[1]
        if j >= inj0: bp = s.opt.pinj
        setp(bp)
        if (j, 'S') in hooks: hooks.pop((j, 'S'))()
        if s.opt.hack & 16 and getattr(s, 'isb', 0) and mp == 1: S = []; T = []
        for t in S: emit(t, j)
        if toggle: setp(bp + 1)
        if (j, 'T') in hooks: hooks.pop((j, 'T'))()
        for t in T: emit(t, j)
        done = (j - 3) * n
        if done > 0 and done % 8 == 0:
            mm = (done - 8) >> 4; q = ((done - 8) >> 3) & 1
            pend.append((f"ds_write_b128 v{TMP if q else SWR}, {vr(pk[mm] + 4 * q, 4)} offset:{S_BASE + (2 * mp + mm) * 16384}", f"sw{2 * mp + mm}"))
        if j >= (wfrom if wfrom >= 0 else ng + 4 + wfrom) or j == wonce:
            while pend: s.lgop(*pend.pop(0))
    assert not hooks and not inj, (hooks, len(inj))
    return [(lambda w=w: s.lgop(*w)) for w in pend]


OW = [OWR, XRE, XRO, WDMA]


def epi_ops(s, m, acc):
    pol = int(f"{s.opt.ont:04d}"[m])
    ntf = lambda i: ["", " nt", " sc1", " sc0 sc1", " sc0 sc1 nt", " sc1 nt"][pol if pol < 6 else (2, 5)[i & 1]]
    ops = []
    for ct in range(2):
        for q in range(2):
            d = acc + 16 * ct + 4 * q
            def cv(ct=ct, q=q, d=d, lo=0, hi=4):
                for i in range(lo, hi):
                    if s.opt.hack & 64 and m < 3: continue
                    s.e(f"v_cvt_pk_bf16_f32 v{d + i}, v{acc + 16 * ct + 8 * q + 2 * i}, v{acc + 16 * ct + 8 * q + 2 * i + 1}")
            def wr(ct=ct, q=q, d=d):
                if s.opt.hack & 128 and m < 3: return
                s.lgop(f"ds_write_b128 v{OW[2 * ct + q]}, {vr(d, 4)}", f"ow{m}")
            ops += [cv, wr]
    dst = [acc + 8, acc + 12, acc + 24, acc + 28]
    def rd(lo):
        if s.opt.hack & 512 and m < 3: return
        for i in range(lo, lo + 2):
            s.lgop(f"ds_read_b128 {vr(dst[i], 4)}, v{ORD} offset:{i * 1024}", f"or{m}_{i}")
    ops.append(lambda: rd(0))
    ops.append(lambda: rd(2))
    def st(i):
        if s.opt.hack & 256 and m < 3: return
        so = (48 - 16 * m + 8 * i) * 512 if i < 2 else (62 + 16 * m + 8 * (i - 2)) * 512
        s.e(f"s_movk_i32 s{sT1}, {so}" if so < 32768 else f"s_mov_b32 s{sT1}, {so}")
        if m == 0 and i == 1: s.e("s_mov_b32 exec_hi, 0x00ffffff")
        if m == 0 and i == 2: s.e("s_mov_b32 exec_lo, 0xffffff00")
        s.wait(lg=f"or{m}_{i}")
        s.vmop(f"buffer_store_dwordx4 {vr(dst[i], 4)}, v{GST}, s[{SO}:{SO+3}], s{sT1} offen{ntf(i)}", f"st{m}")
        if m == 0 and i in (1, 2): s.e("s_mov_b64 exec, -1")
    sts = [(lambda i=i: st(i)) for i in range(4)]
    return ops, sts


def s_read1(s, m, ks, f, rd):
    s.lgop(f"ds_read_b64_tr_b16 {vr(f + 2 * rd, 2)}, v{SRD_} offset:{S_BASE + m * 16384 + ks * 1024 + rd * 512}", f"sr{m}_{ks}")


def g2_ops(s, steps, extra):
    def one(i, ct):
        m, ks, acc, _ = steps[i]
        if ct == 0: s.wait(lg=f"sr{m}_{ks}")
        s.e(mfma(acc + 16 * ct, (W1A, W1B)[ct] + 4 * ks, F[i % 4], ks == 0))
        if i + 3 < len(steps):
            m2, k2, _, pre2 = steps[i + 3]
            if pre2 and ct == 0: pre2()
            if m2 == 0 and k2 >= 8: w_tr1(s, k2, 1, ct)
            s_read1(s, m2, k2, F[(i + 3) % 4], ct)
        if 2 * i + ct in extra: extra.pop(2 * i + ct)()
    return [(lambda i=i, ct=ct: one(i, ct)) for i in range(len(steps)) for ct in range(2)]


def g2_prefetch(s, steps):
    for i in range(3):
        m, ks, _, pre = steps[i]
        assert pre is None
        s_read(s, m, ks, F[i])


def finish(s, grp):
    if s.opt.probe >= 0:
        s.e("s_waitcnt vmcnt(0)")
        s.ts(-1)
        if grp == 1:
            s.e("s_endpgm")
            return
        s.e("s_memrealtime s[96:97]\ns_waitcnt lgkmcnt(0)\ns_sub_u32 s94, s94, s92\ns_lshl_b32 s94, s94, 2")
        s.e(f"L_spin{grp}:")
        s.e("s_memrealtime s[98:99]\ns_waitcnt lgkmcnt(0)\ns_sub_u32 s98, s98, s96\ns_cmp_lt_u32 s98, s94")
        s.e(f"s_cbranch_scc1 L_spin{grp}")
    if s.opt.ts:
        s.e("s_waitcnt vmcnt(0)")
        s.ts(-1)
        s.e("s_memrealtime s[94:95]")
        s.e("s_load_dwordx2 s[96:97], s[0:1], 48")
        s.e("s_waitcnt lgkmcnt(0)")
        s.e("s_mov_b32 s98, 0x100000\ns_mov_b32 s99, 0x20000")
        s.e(f"s_lshl_b32 s3, s2, 3\ns_add_u32 s3, s3, s{sW}\ns_lshl_b32 s3, s3, 7\nv_mov_b32 v1, s3")
        s.e("v_mov_b32 v3, s92\nbuffer_store_dword v3, v1, s[96:99], 0 offen")
        s.e("v_mov_b32 v3, s94\nbuffer_store_dword v3, v1, s[96:99], 0 offen offset:4")
        for m in range(s.nts):
            s.e(f"s_sub_u32 s4, s{sTS + 2 * m}, s{90 if s.opt.ts == 1 else 92}\nv_mov_b32 v3, s4\nbuffer_store_dword v3, v1, s[96:99], 0 offen offset:{8 + 4 * m}")
    s.e("s_endpgm")


def dw_load(s):
    J, HH = 17, 18
    e = s.e
    e(f"s_lshl_b32 s{sT2}, s{sW}, 6")
    e(f"v_lshl_add_u32 v{DWC}, v{J}, 1, s{sT2}")
    e(f"v_lshl_add_u32 v{DWN}, v{HH}, 10, v{DWC}")
    e(f"v_xor_b32 v{DWP}, 1024, v{DWN}")
    e(f"s_mov_b32 s{SD+2}, 1536")
    e(f"s_mov_b32 s{SD+3}, 0x20000")
    s.vmop(f"buffer_load_ushort v{DWC}, v{DWC}, s[{SD}:{SD+3}], 0 offen offset:512", "dw")
    s.vmop(f"buffer_load_ushort v{DWN}, v{DWN}, s[{SD}:{SD+3}], 0 offen", "dw")
    s.vmop(f"buffer_load_ushort v{DWP}, v{DWP}, s[{SD}:{SD+3}], 0 offen", "dw")


def dw_fix(s):
    s.wait(vm="dw")
    for r in (DWP, DWC, DWN):
        s.e(f"v_lshlrev_b32 v{r}, 16, v{r}")
    for r in (DWP, DWC, DWN):
        s.e(f"v_mul_f32 v{r}, v{VC}, v{r}")


def early(s):
    o = s.opt
    e = s.e
    L_, J, HH, a, b, c, d = range(16, 23)
    e("s_cmp_ge_u32 s2, 256")
    e("s_cbranch_scc1 L_done")
    if o.ts or o.probe >= 0:
        e("s_memrealtime s[92:93]")
        e("s_memtime s[90:91]")
    e("s_load_dwordx4 s[4:7], s[0:1], 0")
    e(f"v_readfirstlane_b32 s{sW}, v0")
    e(f"v_and_b32 v{a}, 3, v0")
    e(f"v_bfe_u32 v{c}, v0, 4, 2")
    e(f"v_bfe_u32 v{b}, v0, 2, 2")
    if o.rot == 3:
        e(f"s_mul_i32 s3, s2, 45")
        e(f"s_lshr_b32 s3, s3, 3")
    else:
        e(f"s_lshr_b32 s3, s2, 3")
    if o.rot == 2:
        e(f"s_xor_b32 s3, s3, s2")
        e(f"s_lshr_b32 s{sT0}, s2, 6")
        e(f"s_xor_b32 s3, s3, s{sT0}")
    e(f"s_and_b32 s3, s3, {7 if o.rot else 0}")
    e(f"s_lshr_b32 s{sW}, s{sW}, 6")
    e(f"s_and_b32 s{sWQ}, s{sW}, 3")
    e(f"s_mov_b32 s{SX+3}, 0x20000")
    if o.pf & 4:
        e(f"s_cmp_lt_u32 s{sW}, 4")
        e("s_cbranch_scc1 L_e0")
        (prefetch_code_v if o.pv else prefetch_code)(s)
        e("L_e0:")
    e(f"s_and_b32 s{sT1}, s{sW}, 4")
    e(f"s_add_u32 s{sT1}, s{sT1}, s{sW}")
    e(f"s_add_u32 s{sXM0}, s{sT1}, {X_BASE >> 12}")
    e(f"s_lshl_b32 s{sXM0}, s{sXM0}, 12")
    e(f"v_lshl_add_u32 v{b}, s{sT1}, 2, v{b}")
    e(f"v_lshl_add_u32 v{d}, v{c}, 2, v{a}")
    e(f"s_lshl_b32 s{sT0}, s3, 1")
    e(f"s_and_b32 s{sXH0}, s{sT0}, 8")
    e(f"s_and_b32 s{sT0}, s{sT0}, 6")
    e(f"s_and_b32 s{sRING}, s{sW}, 1")
    e(f"s_add_u32 s{sT0}, s{sT0}, s{sRING}")
    e(f"s_lshl_b32 s{sT0}, s{sT0}, 1")
    e(f"v_xor_b32 v{d}, s{sT0}, v{d}")
    e(f"s_xor_b32 s{sXH1}, s{sXH0}, 8")
    e(f"s_lshl_b32 s{sXH0}, s{sXH0}, 5")
    e(f"s_lshl_b32 s{sXH1}, s{sXH1}, 5")
    e(f"s_lshr_b32 s{sT1}, s2, 7")
    e(f"s_lshl_b32 s{sT0}, s{sT1}, 7")
    e(f"s_sub_u32 s{sT0}, s2, s{sT0}")
    e(f"s_mulk_i32 s{sT0}, 125")
    e(f"s_add_u32 s{sT0}, s{sT0}, 62")
    e(f"v_sub_u32 v{c}, s{sT0}, v{b}")
    e(f"v_add3_u32 v{b}, v{b}, s{sT0}, 1")
    e(f"v_lshl_add_u32 v{XD0}, v{c}, 5, v{d}")
    e(f"v_xor_b32 v{d}, 1, v{d}")
    e(f"v_lshl_add_u32 v{XD1}, v{b}, 5, v{d}")
    e(f"v_lshlrev_b32 v{XD0}, 4, v{XD0}")
    e(f"v_lshlrev_b32 v{XD1}, 4, v{XD1}")
    e(f"s_mov_b32 s{SX+2}, 8192000")
    e(f"s_mul_i32 s{sXB}, s{sT1}, s{SX+2}")
    e(f"v_add_u32 v{XD2}, -8192, v{XD0}")
    e(f"v_add_u32 v{XD3}, 8192, v{XD1}")
    e(f"s_cmp_ge_u32 s{sW}, 4")
    e("s_cbranch_scc1 L_e1")
    if o.wf:
        e(f"v_bfe_u32 v{b}, v0, 2, 4")
        e(f"v_lshl_add_u32 v{b}, v{b}, 6, v{a}")
        e(f"v_lshlrev_b32 v{WDMA}, 4, v{b}")
        e(f"s_and_b32 s{sT0}, s{sW}, 2")
        e(f"s_lshl_b32 s{sT0}, s{sT0}, 1")
        e(f"s_add_u32 s{sT0}, s{sRING}, s{sT0}")
        e(f"s_lshl_b32 m0, s{sT0}, 14")
        e(f"s_lshl_b32 s{sT0}, s3, 15")
        e(f"s_lshl_b32 s{sT2}, s{sW}, 6")
        e(f"s_sub_u32 s{SW1+2}, 262144, s{sT2}")
        e(f"s_mov_b32 s{SW1+3}, s{SX+3}")
    else:
        e(f"s_mov_b32 m0, s{sXM0}")
    e("s_waitcnt lgkmcnt(0)")
    s.ts(1); s.ts(3)
    if o.wf:
        e(f"s_add_u32 s{SW1}, s6, s{sT2}")
        e(f"s_addc_u32 s{SW1+1}, s7, 0")
        for ks in range(o.wf):
            if ks:
                e("s_addk_i32 m0, 1536")
                e(f"s_addk_i32 s{sT0}, 16384")
            s.vmop(f"buffer_load_dwordx4 v{WDMA}, s[{SW1}:{SW1+3}], s{sT0} offen lds", f"w0a{ks}")
            e("s_addk_i32 m0, 512")
            e("s_nop 0")
            s.vmop(f"buffer_load_dwordx4 v{WDMA}, s[{SW1}:{SW1+3}], s{sT0} offen offset:512 lds", f"w0b{ks}")
        e(f"s_mov_b32 m0, s{sXM0}")
    e(f"s_add_u32 s{SX}, s4, s{sXB}")
    e(f"s_addc_u32 s{SX+1}, s5, 0")
    nt = "nt " if o.xnt else ""
    cur = 0
    for i in range(o.xn):
        mm, h, half = (i >> 1) & 1, i & 1, i >> 2
        if o.xn == 8 and o.xo: mm, h, half = i >> 2, (i >> 1) & 1, i & 1
        pos = mm * 16384 + h * 2048 + half * 1024
        if i:
            e(f"s_addk_i32 m0, {pos - cur}")
            e("s_nop 0")
        cur = pos
        s.vmop(f"buffer_load_dwordx4 v{(XD0, XD1, XD2, XD3)[2 * mm + h]}, s[{SX}:{SX+3}], s{sXH0 + half} offen {nt}lds", f"x{half}")
    if o.pf & 8:
        e(f"v_and_b32 v{c}, 15, v0")
        e(f"s_mov_b32 s{SC}, s6\ns_mov_b32 s{SC+1}, s7\ns_mov_b32 s{SC+2}, 262144\ns_mov_b32 s{SC+3}, s{SX+3}")
        e(f"v_lshlrev_b32 v{c}, 7, v{c}")
        e(f"s_lshr_b32 s{sT0}, s2, 3\ns_lshl_b32 s{sT0}, s{sT0}, 2\ns_add_u32 s{sT0}, s{sT0}, s{sWQ}\ns_lshl_b32 s{sT0}, s{sT0}, 11")
        s.vmop(f"buffer_load_dword v{C1}, v{c}, s[{SC}:{SC+3}], s{sT0} offen{' nt' if o.pnt else ''}", "pf")
    s.ts(3)
    e("L_e1:")
    e(f"s_load_dwordx2 s[{SD}:{SD+1}], s[0:1], 16")
    e(f"s_load_dwordx2 s[{SW2}:{SW2+1}], s[0:1], 24")
    e(f"s_load_dwordx2 s[{SO}:{SO+1}], s[0:1], 32")
    e(f"v_and_b32 v{L_}, 63, v0")
    e(f"v_and_b32 v{J}, 31, v0")
    e(f"v_bfe_u32 v{HH}, v0, 5, 1")
    e(f"v_lshrrev_b32 v{b}, 2, v{L_}")
    e(f"v_lshl_add_u32 v{b}, v{b}, 6, v{a}")
    e(f"v_lshlrev_b32 v{WDMA}, 4, v{b}")
    e(f"s_lshl_b32 s{sROT1}, s3, 15")
    e(f"s_and_b32 s{sT0}, s{sW}, 2")
    e(f"s_lshl_b32 s{sT0}, s{sT0}, 1")
    e(f"s_add_u32 s{sRING}, s{sRING}, s{sT0}")
    e(f"s_add_u32 s{sRING2}, s{sWQ}, {R3_BASE >> 14}")
    e(f"s_cmp_ge_u32 s{sW}, 4")
    e(f"s_cselect_b32 s{sRING}, s{sRING2}, s{sRING}")
    e(f"s_lshl_b32 s{sRING}, s{sRING}, 14")
    e(f"s_lshl_b32 s{sRING2}, s{sRING2}, 14")
    e(f"s_lshl_b32 s{sT2}, s{sW}, 6")
    e(f"s_sub_u32 s{SW1+2}, 262144, s{sT2}")
    e(f"s_mov_b32 s{SW1+3}, s{SX+3}")
    if o.a0:
        e(f"s_cmp_ge_u32 s{sW}, 4")
        e("s_cbranch_scc1 L_e4")
        e(f"s_add_u32 s{SW1}, s6, s{sT2}")
        e(f"s_addc_u32 s{SW1+1}, s7, 0")
        for ks in range(o.a0):
            w_dma(s, ks, 0)
        e("L_e4:")
    addr_common(s)
    e("s_waitcnt lgkmcnt(0)")
    e(f"s_add_u32 s{SX}, s4, s{sXB}")
    e(f"s_addc_u32 s{SX+1}, s5, 0")
    e(f"s_add_u32 s{SW1}, s6, s{sT2}")
    e(f"s_addc_u32 s{SW1+1}, s7, 0")
    dw_load(s)
    s.ts(3)
    e(f"s_cmp_ge_u32 s{sW}, 4")
    e("s_cbranch_scc1 L_e3")
    assert o.wf <= 2 and not (o.wf and o.a0)
    for ks in range(o.a0 + o.wf, o.d0):
        w_dma(s, ks, 0)
        i = o.xn + ks - o.xs
        if o.xn <= i < 8: x_dma1(s, (i >> 1) & 1, i & 1, 1)
    s.ts(1)
    s.wait(vm="x0" if o.xn < 8 else "x1")
    if o.pf & 2:
        e("s_branch L_e2")
        e("L_e3:")
        prefetch_w(s)
    else:
        e("L_e3:")
    e("L_e2:")
    s.ts(3)
    s.barrier()
    s.ts(); s.ts(3)
    e(f"s_cmp_ge_u32 s{sW}, 4")
    e("s_cbranch_scc1 L_grp_b")


def stream_a(s):
    o = s.opt
    D = max(o.d0, 6)
    wq = [(k, p) for k in range(o.d0, 16) for p in range(2)]
    s.prio(3)
    for ks in range(2):
        w_tr(s, ks, 0)
        x_read(s, 0, ks)
    late = Stream(o)
    addr_a(late)
    late = late.L
    def hook0(ks, pos):
        if pos in (0, 2) and wq:
            k, p = wq.pop(0); w_dma1(s, k, 0, p)
        if pos == 3:
            i = o.xn + ks + o.d0 - o.xs
            if o.xn <= i < 8: x_dma1(s, (i >> 1) & 1, i & 1, 1)
        if pos == 3 and o.dx <= ks < o.dx + D - o.d0:
            for _ in range(2):
                k, p = wq.pop(0); w_dma1(s, k, 0, p)
        if pos == 0 and ks == 6 and o.xn < 8: s.barrier(vm="x1")
        if pos == 2 and ks == o.b0b: s.barrier()
        if pos == 0 and ks == 16 - D: dw_fix(s)
        if ks > 16 - D and pos in (0, 2):
            for _ in range(5):
                if late: s.e(late.pop(0))
        if pos == 3 and ks == 15:
            assert not late
            s.e(f"v_mov_b32 v{WDMA}, v{W2DMA0}")
            s.e(f"v_mov_b32 v{WTR}, v{W2TR0}")
    g1(s, 0, True, hook0)
    s.ts()
    def pre2():
        s.barrier()
        x_read(s, 1, 0); x_read(s, 1, 1)
    wr = act2(s, 0, {(o.b1a, 'T'): lambda: s.barrier(), (o.b2a, 'S'): pre2}, (o.pa0, o.pa1), o.tog & 1, 99, (F[0], F[2]))
    s.ts()
    s.prio(3)
    dq = [(k, p) for k in range(8) for p in range(2)]
    tq = list(dq)
    def hook1(ks, pos):
        n = 4 * ks + pos
        if n == 24: s.barrier()
        if 25 <= n <= 28: wr[n - 25]()
        if n >= 30 and pos in (0, 2) and dq:
            k, p = dq.pop(0); w_dma1(s, k, 1, p)
        if n >= 30 + 4 * o.lag and pos in (1, 3):
            k, p = tq.pop(0); w_tr1(s, k, 1, p)
    g1(s, 1, False, hook1)
    assert not dq
    s.ts()
    accs = [G, ACC[0], ACC[1], G]
    lo = lambda m, f=None: [(m, ks, accs[m], f if ks == 0 else None) for ks in range(8)]
    hi = lambda m, f=None: [(m, ks, accs[m], f if ks == 8 else None) for ks in range(8, 16)]
    st4 = lo(0) + hi(0) + lo(1) + hi(1) + lo(2) + hi(2, lambda: s.barrier(lg="sw3")) + lo(3)
    def owa():
        for i, x in ((1, 16), (2, 64), (3, 80)): s.e(f"v_xor_b32 v{OW[i]}, {x}, v{OWR}")
        for k, p in tq: w_tr1(s, k, 1, p)
    ex = {}
    gops = g2_ops(s, st4, ex)
    ni = 2 * o.ninj
    assert o.ninj == 0 or o.inj0 >= o.b4a
    for m in range(3):
        ops, sts = epi_ops(s, m, accs[m])
        if m < 2 and (not o.epc or m >= o.epm):
            for i, f in enumerate(ops + [None] + sts):
                n = 32 * m + 34 + 2 * i
                if i < 8 and i % 2 == 0 and o.epf:
                    ex[n - 1] = (lambda f=f: f(hi=1)); ex[n] = (lambda f=f: f(lo=1, hi=3)); ex[n + 1] = (lambda f=f: f(lo=3))
                elif f: ex[n] = f
        elif m < 2:
            for i, f in enumerate(ops): ex[32 * m + 33 + i] = f
            for i, f in enumerate(sts): ex[32 * m + 44 + o.epc * (i + 1)] = f
        else:
            for i, f in enumerate(ops): ex[97 + i] = f
    wr = act2(s, 1, {(o.b3a - 1 - o.tra, 'T'): owa, (o.b3a, 'S'): lambda: s.barrier(lg="w1r7"), (o.b4a, 'S'): lambda: s.barrier(lg="sw2"),
                     ((o.inj0 - 1, 'T') if ni else (-1, 'S')): lambda: g2_prefetch(s, st4)}, (o.pa2, o.pa3), o.tog & 4, 99,
              None, gops[:ni], o.inj0, o.injc, o.b4a - o.wa)
    assert len(wr) == 2
    s.ts()
    s.prio(3)
    free = [n for n in range(max(26, ni), 63) if n not in ex]
    ex[free[0]] = wr[0]; ex[free[2]] = wr[1]
    FF = [ACC[0] + 4 * i for i in range(8)]
    def last(i):
        if i == 0: s.barrier()
        s_read(s, 3, 8 + 2 * i, FF[2 * i]); s_read(s, 3, 9 + 2 * i, FF[2 * i + 1])
    nb = 112 - o.b6a
    for i in range(4):
        if nb + i < 112: ex[nb + i] = (lambda i=i: last(i))
    for f in gops[ni:]: f()
    assert not ex, ex
    s.ts()
    for i in range(4):
        if nb + i >= 112: last(i)
    sts2 = sts
    ops, sts = epi_ops(s, 3, accs[3])
    for i in range(8):
        s.wait(lg=f"sr3_{8 + i}")
        s.e(mfma(accs[3], W1A + 4 * (8 + i), FF[i], False))
        if i < 4: sts2[i]()
    for i in range(8):
        s.e(mfma(accs[3] + 16, W1B + 4 * (8 + i), FF[i], False))
        if 2 <= i < 6: ops[i - 2]()
    s.ts()
    s.e("s_nop 11")
    for f in ops[4:] + sts: f()
    finish(s, 0)


def stream_b(s):
    s.isb = 1
    o = s.opt
    D = o.d1
    jt = 16 // o.n + 4
    dw_fix(s)
    addr_w2(s)
    if o.pf & 16:
        if o.s8:
            s.e(f"v_lshlrev_b32 v{ORD}, 9, v17")
            s.e(f"s_lshl_b32 s{sT1}, s{sSH}, 14")
        else:
            s.e(f"v_and_b32 v{ORD}, 7, v16")
            s.e(f"v_lshlrev_b32 v{ORD}, 9, v{ORD}")
            s.e(f"s_lshr_b32 s{sT1}, s2, 3\ns_lshl_b32 s{sT1}, s{sT1}, 12")
    s.prio(0)
    if o.xn < 8: s.barrier()
    s.barrier()
    for ks in range(D):
        w_dma(s, ks, 0)
    for ks in range(2):
        w_tr(s, ks, 0)
        x_read(s, 0, ks)
    if o.b1b < 0: s.barrier()
    s.ts()
    s.prio(o.pbg)
    assert o.b1b <= o.xb0
    def first_pass(xb0, xsp0, xb1, xsp1):
        dq = [(k, p) for k in range(D, 16) for p in range(2)]
        xq = {}
        for i in range(8):
            n = 4 * xb0 + 3 + xsp0 * i if i < 4 else 4 * xb1 + 3 + xsp1 * (i - 4)
            xq.setdefault(n, []).append(i)
        def hook0(ks, pos):
            if pos == 3 and ks == o.b1b: s.barrier()
            if pos in (0, 2) and dq:
                k, p = dq.pop(0); w_dma1(s, k, 0, p)
            for i in xq.pop(4 * ks + pos, []):
                assert len(dq) % 2 == 0
                x_dma1(s, (i >> 1) & 1, i & 1, i >> 2)
            if 4 * ks + pos == 47 and o.pf & 16:
                assert not dq and not xq
                s.vmop(f"buffer_load_dword v{OWR}, v{ORD}, s[{SW2}:{SW2+3}], s{sT1} offen{' nt' if o.pnt else ''}", "pf")
        g1(s, 0, True, hook0)
        assert not dq and not xq
    if o.cls:
        vm, lg, nts = list(s.vm), list(s.lg), s.nts
        s.e(f"s_bitcmp1_b32 s{sSH}, {o.cls - 1}")
        s.e("s_cbranch_scc1 L_cls1")
        assert o.b1b <= o.xe0
        first_pass(o.xe0, 0, o.xe1, 1 if o.xe1 >= 15 - D else 0)
        s.e("s_branch L_cls2")
        s.e("L_cls1:")
        s.vm, s.lg, s.nts = vm, lg, nts
        s.dup = 1
    first_pass(o.xb0, o.xsp0, o.xb1, o.xsp1)
    if o.cls: s.e("L_cls2:")
    s.ts()
    def pre():
        x_read(s, 1, 0); x_read(s, 1, 1)
        s.e(f"v_mov_b32 v{WDMA}, v{W2DMA0}")
    wr = act2(s, 0, {(o.b2b, 'S'): lambda: s.barrier(vm="x0"), (o.b2c, 'S'): lambda: s.barrier(vm="x1"), (-2, 'T'): pre},
              (o.pb0, o.pb1), o.tog & 2, 99, (F[0], F[2]))
    s.ts()
    s.prio(3)
    def hook1(ks, pos):
        if pos in (0, 2) and o.wb <= ks < o.wb + 2: wr[2 * (ks - o.wb) + (pos >> 1)]()
        if pos == 3 and ks == o.b3b: s.barrier()
        if pos in (0, 2) and o.b3b < ks <= o.b3b + 8: w_dma1(s, ks - o.b3b + 7, 1, pos >> 1)
    assert o.wb + 2 <= o.b3b + 1
    g1(s, 1, False, hook1)
    s.ts()
    act2(s, 1, {(o.b4b, 'T'): lambda: s.barrier(vm="w1b15", lg="sw1"), (jt + o.b5b, 'T'): lambda: s.barrier(lg="sw2")}, (o.pb2, o.pb3), o.tog & 8)
    s.ts()
    s.barrier(lg="sw3")
    finish(s, 1)


def prefetch_w(s):
    e = s.e
    e(f"v_lshlrev_b32 v{C0}, 7, v16")
    e(f"s_bfe_u32 s{sT0}, s2, 0x50003")
    e(f"s_lshl_b32 s{sT0}, s{sT0}, 2")
    e(f"s_add_u32 s{sT0}, s{sT0}, s{sWQ}")
    e(f"s_lshl_b32 s{sT1}, s{sT0}, 10")
    e(f"s_lshl_b32 s{sT0}, s{sT0}, 11")
    e(f"s_mov_b32 s{SC}, s6\ns_mov_b32 s{SC+1}, s7\ns_mov_b32 s{SC+2}, 262144\ns_mov_b32 s{SC+3}, 0x20000")
    e(f"s_mov_b32 s{SW2+2}, 131072\ns_mov_b32 s{SW2+3}, 0x20000")
    e("s_mov_b64 exec, 0xffff")
    e(f"buffer_load_dword v{C1}, v{C0}, s[{SC}:{SC+3}], s{sT0} offen")
    e("s_mov_b64 exec, 0xff")
    e(f"buffer_load_dword v{OWR}, v{C0}, s[{SW2}:{SW2+3}], s{sT1} offen")
    e("s_mov_b64 exec, -1")


def prefetch_code(s):
    e = s.e
    if s.opt.pbs: e("s_setprio 3")
    e(f"s_getpc_b64 s[{SC}:{SC+1}]")
    e("L_pc:")
    e(f"s_mov_b32 s{SC+2}, L_done-L_pc")
    e(f"s_mov_b32 s{SC+3}, s{SX+3}")
    if s.opt.hw:
        e(f"s_getreg_b32 s{sSH}, hwreg(HW_REG_HW_ID, 8, 3)")
    else:
        e(f"s_mov_b32 s{sSH}, s3")
    e(f"s_lshl_b32 s{sT0}, s{sSH}, 2")
    e(f"s_add_u32 s{sT0}, s{sT0}, s{sWQ}")
    e(f"s_lshl_b32 s{sT0}, s{sT0}, 6")
    e("L_pfl:")
    e(f"s_buffer_load_dword s44, s[{SC}:{SC+3}], s{sT0}")
    e(f"s_buffer_load_dword s45, s[{SC}:{SC+3}], s{sT0} offset:2048")
    e(f"s_addk_i32 s{sT0}, 4096")
    e(f"s_cmp_lt_u32 s{sT0}, s{SC+2}")
    e("s_cbranch_scc1 L_pfl")


def prefetch_code_v(s):
    e = s.e
    e("s_setprio 3")
    e(f"s_getpc_b64 s[{SC}:{SC+1}]")
    e("L_pc:")
    e(f"s_getreg_b32 s{sSH}, hwreg(HW_REG_HW_ID, 8, 3)")
    e("v_and_b32 v30, 63, v0")
    e(f"s_lshl_b32 s{sT0}, s{sSH}, 2")
    e(f"s_add_u32 s{sT0}, s{sT0}, s{sWQ}")
    e(f"s_lshl_b32 s{sT0}, s{sT0}, 7")
    e(f"v_lshl_add_u32 v30, v30, 12, s{sT0}")
    e(f"v_mov_b32 v29, s{SC+1}")
    e(f"v_add_co_u32 v28, vcc, s{SC}, v30")
    e(f"s_mov_b32 s{SC+2}, L_done-L_pc")
    e("s_nop 0")
    e("v_addc_co_u32 v29, vcc, 0, v29, vcc")
    e(f"v_cmp_gt_u32 vcc, s{SC+2}, v30")
    e("s_nop 1")
    e("s_mov_b64 exec, vcc")
    e(f"global_load_dword v{C1}, v[28:29], off")
    e("s_mov_b64 exec, -1")


def addr_common(s):
    e = s.e
    L_, J, HH, a, b, c, d, Gq, R, CC = range(16, 26)
    e(f"v_mov_b32 v{VC}, {LIT}")
    e(f"v_bfe_u32 v{Gq}, v{L_}, 4, 1")
    e(f"v_bfe_u32 v{R}, v{L_}, 2, 2")
    e(f"v_and_b32 v{CC}, 3, v{L_}")
    e(f"v_lshrrev_b32 v{a}, 2, v{J}")
    e(f"v_xor_b32 v{b}, v{HH}, v{R}")
    e(f"v_lshlrev_b32 v{b}, 4, v{b}")
    e(f"v_lshl_add_u32 v{b}, v{CC}, 6, v{b}")
    e(f"v_add_u32 v{a}, {X_BASE >> 11}, v{a}")
    e(f"v_lshl_add_u32 v{XRE}, v{a}, 11, v{b}")
    e(f"v_xor_b32 v{XRO}, 32, v{XRE}")
    e(f"v_lshl_add_u32 v{a}, v{HH}, 3, v{R}")
    e(f"v_lshl_add_u32 v{a}, v{a}, 1, v{Gq}")
    e(f"v_lshl_add_u32 v{a}, v{a}, 2, v{CC}")
    e(f"v_lshl_add_u32 v{WTR}, v{a}, 3, s{sRING}")
    e(f"s_lshl_b32 s{sT0}, s{sW}, 1")
    e(f"s_xor_b32 s{sT0}, s{sT0}, s3")
    e(f"s_lshl_b32 s{sT0}, s{sT0}, 4")
    e(f"v_xor_b32 v{a}, s{sT0}, v{J}")
    e(f"v_bfe_u32 v{c}, v{J}, 1, 2")
    e(f"v_lshlrev_b32 v{d}, 1, v{HH}")
    e(f"v_xor_b32 v{c}, v{c}, v{d}")
    e(f"v_lshl_add_u32 v{a}, v{a}, 2, v{c}")
    e(f"v_lshlrev_b32 v{SWR}, 4, v{a}")
    e(f"v_xor_b32 v{TMP}, 16, v{SWR}")
    e("s_mov_b32 vcc_lo, 0")
    e("s_mov_b32 vcc_hi, -1")


def addr_w2(s):
    e = s.e
    L_, J, HH, a, b, c, d, Gq, R, CC, t = range(16, 27)
    e(f"s_lshl_b32 s{sROT2}, s3, 13")
    e(f"s_lshl_b32 s{sT2}, s{sWQ}, 7")
    e(f"s_add_u32 s{SW2}, s{SW2}, s{sT2}")
    e(f"s_addc_u32 s{SW2+1}, s{SW2+1}, 0")
    e(f"s_sub_u32 s{SW2+2}, 131072, s{sT2}")
    e(f"s_mov_b32 s{SW2+3}, 0x20000")
    e(f"v_lshrrev_b32 v{a}, 2, v{J}")
    e(f"v_lshl_add_u32 v{a}, v{a}, 3, v{HH}")
    e(f"v_lshl_add_u32 v{a}, v{a}, 2, v{CC}")
    e(f"v_lshlrev_b32 v{W2DMA0}, 4, v{a}")


def addr_a(s):
    e = s.e
    L_, J, HH, a, b, c, d, Gq, R, CC, t = range(16, 27)
    addr_w2(s)
    e(f"s_mul_i32 s{sT1}, s2, 64000")
    e(f"s_add_u32 s{SO}, s{SO}, s{sT1}")
    e(f"s_addc_u32 s{SO+1}, s{SO+1}, 0")
    e(f"s_mov_b32 s{SO+2}, 64000")
    e(f"s_mov_b32 s{SO+3}, 0x20000")
    e(f"v_lshl_add_u32 v{a}, v{HH}, 2, v{R}")
    e(f"v_lshrrev_b32 v{b}, 1, v{CC}")
    e(f"v_lshl_add_u32 v{b}, v{Gq}, 1, v{b}")
    e(f"v_and_b32 v{c}, 1, v{CC}")
    e(f"v_lshl_add_u32 v{t}, v{a}, 1, v{c}")
    e(f"v_lshl_add_u32 v{t}, v{t}, 2, v{b}")
    e(f"v_lshl_add_u32 v{W2TR0}, v{t}, 3, s{sRING2}")
    e(f"v_lshrrev_b32 v{t}, 1, v{a}")
    e(f"v_xor_b32 v{b}, v{b}, v{t}")
    e(f"v_lshl_add_u32 v{a}, v{a}, 2, v{b}")
    e(f"v_lshl_add_u32 v{a}, v{a}, 1, v{c}")
    e(f"v_lshlrev_b32 v{SRD_}, 3, v{a}")
    e(f"v_sub_u32 v{a}, 1, v{Gq}")
    e(f"v_mul_u32_u24 v{a}, 15, v{a}")
    e(f"v_xor_b32 v{a}, v{a}, v{J}")
    e(f"v_and_b32 v{c}, 7, v{a}")
    e(f"v_xor_b32 v{c}, v{c}, v{d}")
    e(f"v_lshl_add_u32 v{a}, v{a}, 3, v{c}")
    e(f"v_lshl_add_u32 v{OWR}, v{a}, 4, s{sRING2}")
    e(f"v_lshrrev_b32 v{a}, 3, v{L_}")
    e(f"v_xor_b32 v{b}, v{a}, v{L_}")
    e(f"v_lshl_add_u32 v{ORD}, v{b}, 4, s{sRING2}")
    e(f"v_and_b32 v{b}, 7, v{L_}")
    e(f"v_lshl_add_u32 v{b}, v{a}, 5, v{b}")
    e(f"v_lshl_add_u32 v{GST}, v{b}, 4, s{sT2}")
    if s.opt.hack & 1024:
        e(f"s_lshl_b32 s{sT2}, s{sT2}, 3")
        e(f"v_lshl_add_u32 v{GST}, v{L_}, 4, s{sT2}")


TRANS = ("v_exp_f32", "v_rcp_f32")


def check(lines):
    ins = [l for x in lines for l in x.split("\n") if l and not l.endswith(":") and not l.startswith(".")]
    for p, q in zip(ins, ins[1:]):
        if p.startswith(TRANS) and q.startswith("v_") and not q.startswith(TRANS):
            d = re.match(r"\S+ (v\d+)", p).group(1)
            assert not re.search(r"\b" + d + r"\b", q), (p, q)


def flat(L):
    return [l for x in L for l in x.split("\n")]


def regs(t):
    r = set()
    for a, b in re.findall(r"v\[(\d+):(\d+)\]", t): r |= set(range(int(a), int(b) + 1))
    for a in re.findall(r"\bv(\d+)\b", t): r.add(int(a))
    return r


def pad_mfma(L):
    ins = {}
    for i, l in enumerate(L):
        if not l.startswith("v_mfma"): continue
        D = regs(l.split(None, 1)[1].split(", ")[0]); st = ins.get(i, 0); at = [i]
        for k in range(i + 1, len(L)):
            q = L[k]
            if st >= 12 or q.startswith("s_endpgm"): break
            if q.endswith(":"): continue
            if q.startswith("v_mfma"):
                o = q.split(None, 1)[1].split(", ")
                assert not (regs(o[1]) | regs(o[2])) & D
                if regs(o[0]) == D: break
                at.append(k); st += 1 + ins.get(k, 0)
            elif q.startswith(("v_", "ds_", "buffer_")) and regs(q) & D:
                gaps = at[:-1] or at
                for n in range(12 - st): ins[gaps[n % len(gaps)]] = ins.get(gaps[n % len(gaps)], 0) + 1
                break
            else:
                st += int(q.split()[1]) + 1 if q.startswith("s_nop") else 1
    out = []
    for i, l in enumerate(L):
        out.append(l)
        if i in ins: out.append(f"s_nop {ins[i] - 1}")
    return out


def isize(l):
    if l.endswith(":") or l.startswith("."): return 0
    op = l.split()[0]
    if op.startswith(("v_mfma", "ds_", "buffer_", "v_cvt_pk", "v_fmaak", "v_lshl_add", "v_add3", "v_bfe", "s_load", "s_buffer", "s_mem")): return 8
    lits = re.findall(r"(?<![\w\[:(])(-?(?:0x[0-9a-f]+|\d+))(?![\w\].:)])", l.split(None, 1)[1] if " " in l else "")
    if op in ("s_nop", "s_setprio", "s_waitcnt"): return 4
    for x in lits:
        v = int(x, 0)
        if v > 64 or v < -16: return 8
    return 4


def add_pads(la, lb, opt):
    pos = []
    for si, L in enumerate((la, lb)):
        acc = 0; nxt = opt.hop0
        for i, l in enumerate(L):
            acc += isize(l)
            if acc >= nxt and l.startswith("v_") and "exec" not in "".join(L[max(0, i - 4):i + 4]):
                pos.append((acc + si * opt.hopb, si, i)); nxt = acc + opt.hop
    pos.sort()
    n = len(pos); c = opt.nch
    ins = {}
    for k, (_, si, i) in enumerate(pos):
        tgt = f"L_pad{k + c}" if k + c < n else "L_padend"
        ins[(si, i)] = [f"L_pad{k}:", f"s_cbranch_execz {tgt}"]
    res = []
    for si, L in enumerate((la, lb)):
        o = []
        for i, l in enumerate(L):
            o.append(l); o += ins.get((si, i), [])
        res.append(o)
    return res[0], res[1], ["L_padend:", "s_mov_b64 exec, -1", "s_branch L_back"]


DOC = """; Fused pointwise GEMM -> GLU -> depthwise conv(3) -> SiLU -> pointwise GEMM, one workgroup per CU.
; Weights and x arrive by LDS-DMA; weights and s are read with the transposing LDS load."""


def build(opt):
    pro = Stream(opt)
    early(pro)
    sa = Stream(opt); sa.nts = pro.nts; sa.vm = list(pro.vm)
    sb = Stream(opt); sb.nts = pro.nts; sb.vm = ["dw"] * 3
    stream_a(sa)
    stream_b(sb)
    assert sa.L.count("s_barrier") == sb.L.count("s_barrier") - (getattr(sb, "dup", 0) if opt.b1b >= 0 else 0)
    check(sa.L); check(sb.L)
    ref = open(f"cdna_kernels/{NAME}.s.ref").read().split("\n")
    head = [l for l in ref if l.startswith(";") and "@launch" not in l]
    out = head + ["; @launch grid=(256,1,1) block=(512,1,1) lds=163840",
                  '.amdgcn_target "amdgcn-amd-amdhsa--gfx950"', DOC, ".text", f".globl {NAME}_kernel", ".p2align 8",
                  f".type {NAME}_kernel,@function", f"{NAME}_kernel:"]
    la, lb = pad_mfma(flat(sa.L)), pad_mfma(flat(sb.L))
    tail = []
    if opt.hop:
        la, lb, tail = add_pads(la, lb, opt)
    out += pro.L + la + [".p2align 6", "L_grp_b:"] + lb + tail + ["L_done:", "s_endpgm"]
    out += ['.section .rodata,"a"', ".p2align 6", f".amdhsa_kernel {NAME}_kernel",
            "  .amdhsa_next_free_vgpr 256", "  .amdhsa_next_free_sgpr 102", "  .amdhsa_accum_offset 256",
            "  .amdhsa_group_segment_fixed_size 0", "  .amdhsa_kernarg_size 56", "  .amdhsa_user_sgpr_count 2",
            "  .amdhsa_user_sgpr_kernarg_segment_ptr 1", "  .amdhsa_system_sgpr_workgroup_id_x 1",
            ".end_amdhsa_kernel", ""]
    return "\n".join(out)


if __name__ == "__main__":
    ap = argparse.ArgumentParser()
    ap.add_argument("-o", default=f"cdna_kernels/{NAME}.s")
    for k, v in dict(ts=0, probe=-1, tl=0, xnt=1, ont=5552, rot=3, pf=20, wnt=0, hw=1, pv=1, pinj=1, epc=1, epm=1, wf=2, cls=0, xe0=2, xe1=10, s8=1, pnt=0, a0=0, d0=8, d1=6, b0b=7, n=2, hack=0, swp=0, w2p=1, hop=0,
                     b2a=-1, b2b=4, b2c=10, b1a=3, b1b=2, pbg=2, tra=0, wa=2, ninj=12, inj0=13, injc=24, epf=1, b3a=5, b3b=3, b4a=13, b4b=0, b5b=0, b6a=4, xb0=9, xb1=10, xsp0=1, xsp1=1, xn=8, xo=1, pbs=1, xs=0, dx=3, wb=0, lag=5,
                     tog=0, pa0=0, pa1=1, pa2=0, pa3=1, pb0=0, pb1=1, pb2=0, pb3=1).items():
        ap.add_argument("--" + k, type=int, default=v)
    opt = ap.parse_args()
    open(opt.o, "w").write(build(opt))
```
